```python
import torch

def _softmax(x, axis=-1):
    return torch.softmax(x, dim=axis)
def _gelu(x):
    return torch.nn.functional.gelu(x, approximate="tanh")
def _silu(x):
    return torch.nn.functional.silu(x)
def _sigmoid(x):
    return torch.sigmoid(x)
def _layernorm(x, axis=-1, eps=1e-5):
    m = x.mean(dim=axis, keepdim=True)
    v = x.var(dim=axis, keepdim=True, unbiased=False)
    return (x - m) / torch.sqrt(v + eps)
def _scatter_add(tgt, idx, src, axis=0):
    return tgt.clone().index_add_(axis, idx, src)
def _segment_sum(src, seg, n):
    out = torch.zeros((n,) + src.shape[1:], dtype=src.dtype)
    return out.index_add_(0, seg, src)
def _pad(x, pw):
    flat = tuple(v for pair in reversed(pw) for v in pair)
    return torch.nn.functional.pad(x, flat)

kernel_name = 'parallel_sum__sliding_block_cached__dense_activation_mish__decode'

def setup_inputs():

    _w = (lambda a: (lambda t: t.to(torch.bfloat16) if t.is_floating_point() else t)(torch.as_tensor(a)))
    def _A_setup():
        B, Sq, D = 4, 1, 448
        Hq, Hkv, Sk, Dh = 16, 8, 4096, 256
        assert Hq % Hkv == 0, (Hq, Hkv)
        return {
            "x": _w((lambda *s: torch.randn(*s, dtype=torch.bfloat16) * 0.05)(B, Sq, D)),
            "k_cache": _w((lambda *s: torch.randn(*s, dtype=torch.bfloat16) * 1.6)(B, Hkv, Sk, Dh)),
            "v_cache": _w((lambda *s: torch.randn(*s, dtype=torch.bfloat16) * 0.4)(B, Hkv, Sk, Dh)),
            "wq": _w((lambda *s: torch.randn(*s, dtype=torch.bfloat16) * 1.6)(D, Hq * Dh) * (D ** -0.5)),
            "wo": _w((lambda *s: torch.randn(*s, dtype=torch.bfloat16) * 0.4)(Hq * Dh, D) * ((Hq * Dh) ** -0.5)),
        }
    _A_in = _A_setup()

    def _B_setup():
        B, S, D, F = 4, 1, 448, 1792
        return {
            "x": _w((lambda *s: torch.randn(*s, dtype=torch.bfloat16) * 0.05)(B, S, D)),
            "w1": _w((lambda *s: torch.randn(*s, dtype=torch.bfloat16) * 0.8)(D, F) * (D ** -0.5)),
            "b1": _w((lambda *s: torch.randn(*s, dtype=torch.bfloat16) * 0.2)(F)),
            "w2": _w((lambda *s: torch.randn(*s, dtype=torch.bfloat16) * 0.1)(F, D) * (F ** -0.5)),
        }
    _B_in = _B_setup()

    return {
        "A_x": _A_in["x"],
        "A_k_cache": _A_in["k_cache"],
        "A_v_cache": _A_in["v_cache"],
        "A_wq": _A_in["wq"],
        "A_wo": _A_in["wo"],
        "B_x": _B_in["x"],
        "B_w1": _B_in["w1"],
        "B_b1": _B_in["b1"],
        "B_w2": _B_in["w2"],
    }

def reference(A_x, A_k_cache, A_v_cache, A_wq, A_wo, B_x, B_w1, B_b1, B_w2):
    def _A_ref(x, k_cache, v_cache, wq, wo):
        B, Sq, D = x.shape
        Hq, Dh = 16, 256
        Hkv, Sk = k_cache.shape[1], k_cache.shape[2]
        W = min(4096, max(256, Sk // 4))
        rep = Hq // Hkv
        q = (lambda x, *d: x.permute(*d))((x @ wq).reshape(B, Sq, Hq, Dh), 0, 2, 1, 3)
        k = (lambda x, n, axis: torch.repeat_interleave(x, n, dim=axis))(k_cache[:, :, Sk - W:, :], rep, axis=1)
        v = (lambda x, n, axis: torch.repeat_interleave(x, n, dim=axis))(v_cache[:, :, Sk - W:, :], rep, axis=1)
        scores = torch.einsum("bhqd,bhkd->bhqk", q, k) * (Dh ** -0.5)
        p = _softmax(scores, axis=-1)
        o = torch.einsum("bhqk,bhkd->bhqd", p, v)
        return (lambda x, *d: x.permute(*d))(o, 0, 2, 1, 3).reshape(B, Sq, Hq * Dh) @ wo

    def _B_ref(x, w1, b1, w2):
        h = torch.einsum("bsd,df->bsf", x, w1) + b1
        sp = torch.log1p(torch.exp(-torch.abs(h))) + torch.where(h > 0, h, torch.zeros_like(h))
        act = h * torch.tanh(sp)
        return torch.einsum("bsf,fd->bsd", act, w2)

    x = A_x
    xn = _layernorm(x, axis=-1)
    return x + _A_ref(xn, A_k_cache, A_v_cache, A_wq, A_wo) + _B_ref(xn, B_w1, B_b1, B_w2)
```

```python
import sys, math
NAME = "parallel_sum__sliding_block_cached__dense_activation_mish__decode_kernel"
opts = dict(a.split('=') for a in sys.argv[1:] if '=' in a)
STAMPS = int(opts.get('stamps', 0))
ROT = int(opts.get('rot', 1))
PPOL = opts.get('ppol', '').replace('_', ' ')
WPOL = opts.get('wpol', 'nt').replace('_', ' ')
KVPOL = opts.get('kvpol', 'nt').replace('_', ' ')
SPIN = int(opts.get('spin', 40000))

L = []
def e(s): L.append("    " + s)
def lab(s): L.append(s + ":")
def nop(n):
    if n > 0: e(f"s_nop {n-1}")
QBASE, ABASE, FBASE, OBASE, WSN = 0x1000, 0x11000, 0x20000, 0x100000, 0x200000
L_T, L_KF, L_WC = 0, 16, 32
L_SC, L_ONES, L_X0, L_X1, L_WQ, L_W1, L_WO, L_W2, L_OG = 0x100, 0x500, 0x1000, 0x2000, 0x3000, 0x6800, 0xA000, 0xE000, 0x10000
LDS_BYTES = 0x18000
stamp_used = {}
def stamp(slot):
    if STAMPS:
        i = slot % 8
        e(f"s_memrealtime s[{64+2*i}:{65+2*i}]")
        e("s_waitcnt lgkmcnt(0)")
def stamp_flush(base, n, cond_wave):
    if not STAMPS: return
    lbl = f"L_sf{base}"
    e(f"s_cmp_lg_u32 s3, {cond_wave}")
    e(f"s_cbranch_scc1 {lbl}")
    e("s_lshl_b32 s60, s2, 8")
    e(f"s_add_u32 s60, s60, {0x8000000 + base*8}")
    e("s_add_u32 s62, s26, s60")
    e("s_addc_u32 s63, s27, 0")
    e("s_mov_b64 exec, 1")
    e("v_mov_b32 v2, 0")
    for i in range(n):
        e(f"v_mov_b32 v4, s{64+2*i}")
        e(f"v_mov_b32 v5, s{65+2*i}")
        e(f"global_store_dwordx2 v2, v[4:5], s[62:63] offset:{8*i}")
        nop(1)
    lab(lbl)

def ws_srd():
    e("s_mov_b32 s36, s26"); e("s_mov_b32 s37, s27"); e(f"s_mov_b32 s38, {WSN}"); e("s_mov_b32 s39, 0x20000")

def get_T(tag, vt, vz):
    e(f"s_mov_b32 s45, {SPIN*8}")
    lab(f"L_gt{tag}")
    e(f"ds_read_b32 v{vt}, v{vz} offset:{L_T}")
    e("s_sub_u32 s45, s45, 1")
    e("s_cbranch_scc1 L_gtd" + tag)
    e("s_waitcnt lgkmcnt(0)")
    e(f"v_readfirstlane_b32 s44, v{vt}")
    e("s_cmp_eq_u32 s44, 0")
    e(f"s_cbranch_scc1 L_gt{tag}")
    lab(f"L_gtd{tag}")

if STAMPS: e("s_memrealtime s[64:65]")
e("s_cmp_ge_u32 s2, 256")
e("s_cbranch_scc1 L_end")
e("s_load_dwordx16 s[4:19], s[0:1], 0")
e("s_load_dwordx8 s[20:27], s[0:1], 64")
e("v_lshrrev_b32 v1, 6, v0")
e("v_and_b32 v0, 63, v0")
e("s_and_b32 s28, s2, 7")
e("v_readfirstlane_b32 s3, v1")
e("s_lshr_b32 s29, s2, 3")
e("s_lshr_b32 s30, s29, 3")
e("s_and_b32 s31, s29, 7")
e("v_lshrrev_b32 v1, 4, v0")
e("v_and_b32 v2, 15, v0")
e("s_cmp_ge_u32 s3, 2")
e("s_cbranch_scc1 L_notP")
e("s_waitcnt lgkmcnt(0)")
e("s_mov_b32 s51, 0")
e("s_cmp_eq_u32 s3, 0")
e("s_cbranch_scc1 L_P0")
e("s_cmp_lt_u32 s29, 18")
e("s_cbranch_scc1 L_bar")
e("s_mov_b32 s32, s16"); e("s_mov_b32 s33, s17"); e(f"s_mov_b32 s34, {448*1792*2}")
e("s_mov_b32 s46, 3584")
e("s_mul_i32 s47, s28, 224")
e("s_sub_u32 s48, s29, 18")
e("s_lshl_b32 s48, s48, 4")
e("s_add_u32 s47, s47, s48")
e(f"s_mov_b32 s48, {L_X1}")
e(f"s_mov_b32 s49, {L_W1}")
e("s_lshl_b32 s50, s47, 4")
e(f"s_add_u32 s50, s50, {ABASE}")
e("s_mov_b32 s51, 64")
e("s_branch L_Pc")
lab("L_P0")
e("s_load_dword s44, s[26:27], 0")
e("s_mov_b32 s32, s10"); e("s_mov_b32 s33, s11"); e(f"s_mov_b32 s34, {448*4096*2}")
e("s_mov_b32 s46, 8192")
e("s_lshl_b32 s47, s28, 9")
e("s_lshl_b32 s48, s29, 4")
e("s_add_u32 s47, s47, s48")
e(f"s_mov_b32 s48, {L_X0}")
e(f"s_mov_b32 s49, {L_WQ}")
e("s_lshl_b32 s50, s47, 4")
e(f"s_add_u32 s50, s50, {QBASE}")
e("s_mov_b32 s51, 64")
lab("L_Pc")
e("s_mov_b32 s35, 0x20000")
e("s_mov_b32 s40, s4"); e("s_mov_b32 s41, s5"); e("s_mov_b32 s42, 3584"); e("s_mov_b32 s43, 0x20000")
e("v_lshlrev_b32 v3, 4, v0")
e("s_mov_b32 m0, s48")
e("v_lshrrev_b32 v4, 1, v0")
for i in range(4):
    e(f"buffer_load_dwordx4 v3, s[40:43], 0 offen offset:{i*1024} lds")
e("v_mul_lo_u32 v4, v4, s46")
e("v_and_b32 v5, 1, v0")
e("v_lshl_add_u32 v4, v5, 4, v4")
e("s_lshl_b32 s52, s47, 1")
e("s_lshl_b32 s53, s46, 5")
e("s_mov_b32 m0, s49")
for i in range(14):
    if i:
        e("s_add_u32 s52, s52, s53")
        e("s_add_u32 m0, m0, 1024")
    nop(1)
    e(f"buffer_load_dwordx4 v4, s[32:35], s52 offen {PPOL} lds")
e("s_mov_b32 s40, s18"); e("s_mov_b32 s41, s19"); e("s_mov_b32 s42, 3584")
e("v_lshlrev_b32 v5, 3, v1")
e("s_lshl_b32 s52, s47, 1")
e("buffer_load_dwordx2 v[6:7], v5, s[40:43], s52 offen")
e("s_branch L_bar")
lab("L_notP")
e("s_cmp_lg_u32 s3, 2")
e("s_cbranch_scc1 L_noinit")
e("s_getpc_b64 s[40:41]")
lab("L_pc")
e("v_lshlrev_b32 v3, 7, v0")
e("v_min_u32 v3, L_end-L_pc, v3")
e("global_load_dword v4, v3, s[40:41]")
e("v_lshlrev_b32 v3, 2, v0")
e("v_mov_b32 v5, 0")
e("ds_write_b32 v3, v5")
lab("L_noinit")
e("s_lshl_b32 s46, s30, 3")
e("s_add_u32 s46, s46, s28")
e("s_lshl_b32 s47, s46, 21")
e("s_lshl_b32 s48, s31, 16")
e("s_add_u32 s47, s47, s48")
e("s_add_u32 s47, s47, 0x180000")
if ROT == 0: e("s_mov_b32 s49, 0")
elif ROT == 1: e("s_mul_i32 s49, s2, 37");
elif ROT == 2: e("s_mov_b32 s49, s29")
elif ROT == 3: e("s_mul_i32 s49, s2, 5"); e("s_add_u32 s49, s49, s29")
e("s_lshl_b32 s49, s49, 12")
e("s_and_b32 s50, s3, 3")
e("s_cmp_ge_u32 s3, 8")
e("s_cselect_b32 s51, 2, 3")
e("s_and_b32 s51, s50, s51")
e("s_lshl_b32 s51, s51, 11")
e("s_add_u32 s49, s49, s51")
e("v_lshrrev_b32 v3, 2, v2")
e("v_lshlrev_b32 v3, 9, v3")
e("v_lshl_add_u32 v3, v1, 6, v3")
e("v_and_b32 v4, 3, v0")
e("v_lshl_add_u32 v3, v4, 4, v3")
e("s_and_b32 s52, s3, 1")
e("s_lshl_b32 s52, s52, 8")
e("v_lshlrev_b32 v4, 9, v1")
e("v_lshl_add_u32 v4, v2, 4, v4")
e("v_add_u32 v4, s52, v4")
e("s_cmp_ge_u32 s3, 8")
e("s_cselect_b64 vcc, -1, 0")
e("s_cselect_b32 s53, 8, 1")
e("s_lshl_b32 s53, s53, 8")
e("v_cndmask_b32 v3, v3, v4, vcc")
e("v_add_u32 v4, s53, v3")
e("s_cmp_ge_u32 s3, 8")
e("s_waitcnt lgkmcnt(0)")
e("s_cselect_b64 s[32:33], s[8:9], s[6:7]")
e("s_add_u32 s32, s32, s47")
e("s_addc_u32 s33, s33, 0")
e("s_mov_b32 s34, 0x10000")
e("s_mov_b32 s35, 0x20000")
lab("L_bar")
e("s_barrier")
e("s_cmp_lt_u32 s3, 4")
e("s_cbranch_scc1 L_P")
e("s_cmp_ge_u32 s3, 12")
e("s_cbranch_scc1 L_W")
DV = 64
stamp(1)
for j in range(8):
    if j: e(f"s_add_u32 s49, s49, 8192")
    e("s_and_b32 s54, s49, 0xffff")
    e(f"buffer_load_dwordx4 v[{DV+8*j}:{DV+8*j+3}], v3, s[32:35], s54 offen {KVPOL}")
    e(f"buffer_load_dwordx4 v[{DV+8*j+4}:{DV+8*j+7}], v4, s[32:35], s54 offen {KVPOL}")
stamp(2)
ws_srd()
e("v_mov_b32 v5, 0")
e("s_cmp_ge_u32 s3, 8")
e("s_cbranch_scc1 L_V")
e("v_bfe_u32 v6, v0, 2, 1")
e("v_lshlrev_b32 v6, 12, v6")
e("v_lshl_add_u32 v6, v1, 9, v6")
e("v_bfe_u32 v7, v0, 1, 1")
e("v_lshl_add_u32 v6, v7, 8, v6")
e("v_and_b32 v7, 1, v0")
e("v_lshl_add_u32 v6, v7, 5, v6")
e("s_lshl_b32 s55, s28, 13")
e("s_lshl_b32 s56, s30, 6")
e("s_add_u32 s55, s55, s56")
e(f"s_add_u32 s55, s55, {QBASE}")
get_T("k", 7, 5)
e(f"s_mov_b32 s45, {SPIN}")
lab("L_kpoll")
for tt in range(2):
    for ee in range(2):
        r = 8 + (tt*2+ee)*4
        e(f"buffer_load_dwordx4 v[{r}:{r+3}], v6, s[36:39], s55 offen offset:{tt*2048+ee*16} sc1")
e("s_sub_u32 s45, s45, 1")
e("s_cbranch_scc1 L_kgo")
e("s_waitcnt vmcnt(0)")
e("v_bitop3_b32 v24, v11, v15, s44 bitop3:0x7e")
e("v_bitop3_b32 v25, v19, v23, s44 bitop3:0x7e")
e("v_or_b32 v24, v24, v25")
e("v_cmp_ne_u32 vcc, 0, v24")
e("s_cbranch_vccnz L_kpoll")
lab("L_kgo")
e("s_waitcnt vmcnt(0)")
stamp(3)
e("v_mov_b32 v10, v12"); e("v_mov_b32 v11, v13")
e("v_mov_b32 v18, v20"); e("v_mov_b32 v19, v21")
e("v_bfe_u32 v6, v0, 2, 1")
e("v_lshlrev_b32 v6, 9, v6")
e("v_lshl_add_u32 v6, v1, 6, v6")
e("s_lshr_b32 s56, s50, 1")
e("s_lshl_b32 s56, s56, 8")
e("s_and_b32 s57, s50, 1")
e("s_lshl_b32 s57, s57, 5")
e("s_add_u32 s56, s56, s57")
e("v_add_u32 v6, s56, v6")
AC = 24
for j in range(8):
    e(f"v_mfma_f32_16x16x32_bf16 v[{AC+4*j}:{AC+4*j+3}], v[{DV+8*j}:{DV+8*j+3}], v[8:11], 0")
for j in range(8):
    e(f"v_mfma_f32_16x16x32_bf16 v[{AC+4*j}:{AC+4*j+3}], v[{DV+8*j+4}:{DV+8*j+7}], v[16:19], v[{AC+4*j}:{AC+4*j+3}]")
nop(2)
for r in range(4):
    for j in range(8):
        if r == 0 and j == 7: nop(2)
        if r == 0:
            e(f"v_mov_b32_dpp v{56+j}, v{AC+4*j} quad_perm:[0,0,0,0] row_mask:0xf bank_mask:0xf")
        else:
            e(f"v_add_f32_dpp v{56+j}, v{AC+4*j+r}, v{56+j} quad_perm:[{r},{r},{r},{r}] row_mask:0xf bank_mask:0xf")
e(f"ds_write_b128 v6, v[56:59] offset:{L_SC}")
e(f"ds_write_b128 v6, v[60:63] offset:{L_SC+16}")
e("s_lshl_b32 s56, s50, 2")
e("v_mov_b32 v7, s56")
e("v_mov_b32 v8, 1")
e("s_waitcnt lgkmcnt(0)")
e(f"ds_write_b32 v7, v8 offset:{L_KF}")
stamp(4)
stamp_flush(8, 5, 4)
e("s_endpgm")

lab("L_V")
e("v_and_b32 v6, 1, v0")
e("v_cmp_eq_u32 vcc, 1, v6")
e("v_mov_b32 v7, 0xffff")
e("v_mov_b32 v12, 0xffff0000")
e("v_cndmask_b32 v7, v7, v12, vcc")
e("v_bfe_u32 v6, v0, 1, 2")
for j in range(4):
    e(f"v_cmp_eq_u32 vcc, {j}, v6")
    nop(2)
    e(f"v_cndmask_b32 v{8+j}, 0, v7, vcc")
e("v_bfe_u32 v6, v0, 3, 1")
e("v_lshlrev_b32 v6, 9, v6")
e("v_lshl_add_u32 v6, v1, 6, v6")
e("s_lshr_b32 s56, s50, 1")
e("s_lshl_b32 s57, s56, 8")
e("v_add_u32 v6, s57, v6")
e("s_lshl_b32 s57, s56, 3")
e("v_mov_b32 v7, s57")
e("s_lshl_b32 s59, s31, 1")
e("s_add_u32 s59, s59, s56")
e("v_lshrrev_b32 v12, 1, v1")
e("v_lshlrev_b32 v12, 16, v12")
e("v_and_b32 v13, 1, v1")
e("v_lshl_add_u32 v12, v13, 8, v12")
e("v_xor_b32 v13, s59, v2")
e("v_lshl_add_u32 v12, v13, 4, v12")
e("s_lshl_b32 s58, s59, 9")
e("s_lshl_b32 s59, s28, 17")
e("s_add_u32 s58, s58, s59")
e("s_and_b32 s59, s3, 1")
e("s_lshl_b32 s59, s59, 15")
e("s_add_u32 s58, s58, s59")
e("s_lshl_b32 s59, s30, 13")
e("s_add_u32 s58, s58, s59")
e(f"s_add_u32 s58, s58, {OBASE}")
get_T("v", 13, 5)
e("v_mov_b32 v59, s44")
e(f"s_mov_b32 s45, {SPIN*8}")
lab("L_vwait")
e(f"ds_read_b64 v[14:15], v7 offset:{L_KF}")
e("s_sub_u32 s45, s45, 1")
e("s_cbranch_scc1 L_vgo")
e("s_waitcnt lgkmcnt(0)")
e("v_and_b32 v14, v14, v15")
e("v_cmp_eq_u32 vcc, 0, v14")
e("s_cbranch_vccz L_vgo")
e("s_sleep 1")
e("s_branch L_vwait")
lab("L_vgo")
SC = 16
for i in range(4):
    e(f"ds_read_b128 v[{SC+4*i}:{SC+4*i+3}], v6 offset:{L_SC+16*i}")
e("s_waitcnt lgkmcnt(0)")
stamp(3)
e(f"v_max3_f32 v13, v{SC}, v{SC+1}, v{SC+2}")
for i in range(3, 15, 2):
    e(f"v_max3_f32 v13, v13, v{SC+i}, v{SC+i+1}")
e(f"v_max_f32 v13, v13, v{SC+15}")
e("v_mov_b32 v14, v13")
nop(2)
e("v_permlane32_swap_b32 v13, v14")
e("v_max_f32 v13, v13, v14")
e("v_mov_b32 v14, v13")
nop(2)
e("v_permlane16_swap_b32 v13, v14")
e("v_max_f32 v13, v13, v14")
c = math.log2(math.e)/16
import struct
chex = struct.unpack('<I', struct.pack('<f', c))[0]
e(f"s_mov_b32 s59, {chex:#x}")
e("v_mul_f32 v13, s59, v13")
for i in range(16):
    e(f"v_fma_f32 v{SC+i}, v{SC+i}, s59, -v13")
for i in range(16):
    e(f"v_exp_f32 v{SC+i}, v{SC+i}")
nop(1)
e(f"v_add_f32 v14, v{SC}, v{SC+1}")
for i in range(2, 16):
    e(f"v_add_f32 v14, v14, v{SC+i}")
for i in range(16):
    e(f"v_cvt_pk_bf16_f32 v{SC+i}, v{SC+i}, v{SC+i}")
e("v_mov_b32 v15, v14")
nop(2)
e("v_permlane32_swap_b32 v14, v15")
e("v_add_f32 v14, v14, v15")
e("v_mov_b32 v15, v14")
nop(2)
e("v_permlane16_swap_b32 v14, v15")
e("v_add_f32 v14, v14, v15")
nop(2)
e("v_mov_b32_dpp v58, v13 row_newbcast:0 row_mask:0x1 bank_mask:0xf")
e("v_mov_b32_dpp v58, v14 row_newbcast:0 row_mask:0x2 bank_mask:0xf")
e("v_mov_b32_dpp v58, v13 row_newbcast:8 row_mask:0x4 bank_mask:0xf")
e("v_mov_b32_dpp v58, v14 row_newbcast:8 row_mask:0x8 bank_mask:0xf")
stamp(4)
for i in range(16):
    j, lo = i >> 1, i & 1
    t = lo*8 + j
    a = 32 + 4*(i & 1)
    for k in range(4):
        e(f"v_and_b32 v{a+k}, v{SC+t}, v{8+k}")
    nop(1)
    e(f"s_waitcnt vmcnt({15-i})")
    src = "0" if i == 0 else "v[40:43]"
    e(f"v_mfma_f32_16x16x32_bf16 v[40:43], v[{a}:{a+3}], v[{DV+4*i}:{DV+4*i+3}], {src}")
nop(8)
e("v_cvt_pk_bf16_f32 v56, v40, v41")
e("v_cvt_pk_bf16_f32 v57, v42, v43")
e("buffer_store_dwordx4 v[56:59], v12, s[36:39], s58 offen sc1")
stamp(5)
stamp_flush(16, 6, 8)
e("s_endpgm")

lab("L_P")
e("s_cmp_ge_u32 s3, 2")
e("s_cbranch_scc1 L_end")
e("s_cmp_eq_u32 s51, 0")
e("s_cbranch_scc1 L_end")
stamp(1)
ws_srd()
e("v_mov_b32 v8, 0x3f803f80"); e("v_mov_b32 v9, v8"); e("v_mov_b32 v10, v8"); e("v_mov_b32 v11, v8")
e(f"ds_write_b128 v3, v[8:11] offset:{L_ONES}")
e("v_mov_b32 v5, 0")
e("s_cmp_eq_u32 s3, 0")
e("s_cbranch_scc0 L_P1T")
e("s_waitcnt lgkmcnt(0)")
e("s_mul_i32 s44, s44, 0x9E3779B5")
e("s_add_u32 s44, s44, 0x7F4A7C15")
e("s_cmp_eq_u32 s44, 0")
e("s_cselect_b32 s44, 0x7F4A7C15, s44")
e("v_mov_b32 v12, s44")
e(f"ds_write_b32 v5, v12 offset:{L_T}")
e("s_branch L_PT")
lab("L_P1T")
get_T("p", 12, 5)
lab("L_PT")
e("v_and_b32 v12, 3, v0")
e("v_mul_u32_u24 v12, 896, v12")
e("v_lshrrev_b32 v13, 2, v0")
e("v_lshl_add_u32 v12, v13, 6, v12")
e("v_cmp_gt_u32 vcc, 14, v13")
e("v_mov_b32 v13, 3584")
nop(1)
e("v_cndmask_b32 v12, v13, v12, vcc")
e("v_add_u32 v12, s48, v12")
e("v_mul_u32_u24 v13, 896, v2")
e("v_add_u32 v13, s48, v13")
e("v_cmp_gt_u32 vcc, 4, v2")
e(f"v_mov_b32 v14, {L_ONES}")
nop(1)
e("v_cndmask_b32 v13, v14, v13, vcc")
e("v_lshl_add_u32 v13, v1, 4, v13")
e("v_lshlrev_b32 v14, 8, v1")
e("v_lshl_add_u32 v14, v2, 3, v14")
e("v_add_u32 v14, s49, v14")
e("v_mul_lo_u32 v15, v2, s51")
e("v_lshl_add_u32 v15, v1, 4, v15")
e("s_waitcnt vmcnt(15)")
stamp(2)
for i in range(4):
    e(f"ds_read_b128 v[{16+4*i}:{19+4*i}], v12 offset:{16*i}")
e("v_mov_b32 v32, 0"); e("v_mov_b32 v33, 0")
e("s_waitcnt lgkmcnt(0)")
XF = 64
for t in range(14):
    e(f"ds_read_b128 v[{XF+4*t}:{XF+4*t+3}], v13 offset:{64*t}")
for i in range(16):
    e(f"v_dot2c_f32_bf16 v32, v{16+i}, v8")
    e(f"v_dot2c_f32_bf16 v33, v{16+i}, v{16+i}")
nop(4)
for sh in (4, 8):
    e(f"v_add_f32_dpp v32, v32, v32 row_ror:{sh} row_mask:0xf bank_mask:0xf")
    e(f"v_add_f32_dpp v33, v33, v33 row_ror:{sh} row_mask:0xf bank_mask:0xf")
    nop(2)
for sw in ("16", "32"):
    e("v_mov_b32 v34, v32"); e("v_mov_b32 v35, v33")
    nop(2)
    e(f"v_permlane{sw}_swap_b32 v32, v34")
    e(f"v_permlane{sw}_swap_b32 v33, v35")
    e("v_add_f32 v32, v32, v34"); e("v_add_f32 v33, v33, v35")
inv = struct.unpack('<I', struct.pack('<f', 1.0/448))[0]
eps = struct.unpack('<I', struct.pack('<f', 1e-5))[0]
e(f"v_mul_f32 v32, {inv:#x}, v32")
e(f"v_mul_f32 v33, {inv:#x}, v33")
e("v_fma_f32 v33, -v32, v32, v33")
e("v_max_f32 v33, 0, v33")
e(f"v_add_f32 v33, {eps:#x}, v33")
e("v_rsq_f32 v33, v33")
e("v_sub_f32 v32, 0, v32")
e("s_waitcnt vmcnt(1) lgkmcnt(0)")
stamp(3)
for half in range(2):
    for k in range(7):
        t = half*7 + k
        e(f"ds_read_b64_tr_b16 v[{36+4*k}:{37+4*k}], v14 offset:{t*1024}")
        e(f"ds_read_b64_tr_b16 v[{38+4*k}:{39+4*k}], v14 offset:{t*1024+128}")
    for k in range(7):
        t = half*7 + k
        e(f"s_waitcnt lgkmcnt({12-2*k})")
        src = "0" if t == 0 else "v[16:19]"
        e(f"v_mfma_f32_16x16x32_bf16 v[16:19], v[{36+4*k}:{39+4*k}], v[{XF+4*t}:{XF+4*t+3}], {src}")
nop(8)
for r in range(4):
    e(f"v_mov_b32 v{20+r}, v{16+r}")
nop(2)
for r in range(4):
    e(f"v_fmac_f32_dpp v{20+r}, v{16+r}, v32 row_shl:4 row_mask:0xf bank_mask:0xf")
for r in range(4):
    e(f"v_mul_f32 v{20+r}, v{20+r}, v33")
e("s_cmp_eq_u32 s3, 0")
e("s_cbranch_scc1 L_Ppub")
e("s_waitcnt vmcnt(0)")
e("v_lshlrev_b32 v24, 16, v6"); e("v_and_b32 v25, 0xffff0000, v6")
e("v_lshlrev_b32 v26, 16, v7"); e("v_and_b32 v27, 0xffff0000, v7")
l2e = struct.unpack('<I', struct.pack('<f', math.log2(math.e)))[0]
for r in range(4): e(f"v_add_f32 v{20+r}, v{20+r}, v{24+r}")
for r in range(4): e(f"v_min_f32 v{24+r}, 0x41a00000, v{20+r}")
for r in range(4): e(f"v_mul_f32 v{24+r}, {l2e:#x}, v{24+r}")
for r in range(4): e(f"v_exp_f32 v{24+r}, v{24+r}")
nop(1)
for r in range(4): e(f"v_add_f32 v{28+r}, 2.0, v{24+r}")
for r in range(4): e(f"v_mul_f32 v{24+r}, v{24+r}, v{28+r}")
for r in range(4): e(f"v_add_f32 v{28+r}, 2.0, v{24+r}")
for r in range(4): e(f"v_rcp_f32 v{28+r}, v{28+r}")
nop(1)
for r in range(4): e(f"v_mul_f32 v{24+r}, v{24+r}, v{28+r}")
for r in range(4): e(f"v_mul_f32 v{20+r}, v{20+r}, v{24+r}")
lab("L_Ppub")
e("v_cvt_pk_bf16_f32 v24, v20, v21")
e("v_cvt_pk_bf16_f32 v25, v22, v23")
e("v_mov_b32 v26, s44")
e("v_mov_b32 v27, s44")
e("s_mov_b32 exec_lo, 0x000f000f")
e("s_mov_b32 exec_hi, 0x000f000f")
e("buffer_store_dwordx4 v[24:27], v15, s[36:39], s50 offen sc1")
stamp(4)
stamp_flush(0, 5, 0)
e("s_endpgm")

lab("L_W")
e("s_cmp_ge_u32 s29, 28")
e("s_cbranch_scc1 L_end")
if STAMPS: e("s_mov_b64 s[78:79], 0")
e("s_and_b32 s46, s29, 3")
e("s_lshr_b32 s47, s29, 2")
e("s_mov_b32 s32, s12"); e("s_mov_b32 s33, s13"); e(f"s_mov_b32 s34, {4096*448*2}"); e("s_mov_b32 s35, 0x20000")
e("s_mov_b32 s40, s20"); e("s_mov_b32 s41, s21"); e(f"s_mov_b32 s42, {1792*448*2}"); e("s_mov_b32 s43, 0x20000")
e("v_lshrrev_b32 v3, 3, v0")
e("v_mul_u32_u24 v3, 896, v3")
e("v_and_b32 v4, 7, v0")
e("v_bfe_u32 v5, v0, 4, 1")
e("v_lshlrev_b32 v5, 1, v5")
e("v_xor_b32 v4, v4, v5")
e("v_xor_b32 v5, 4, v4")
e("v_lshl_add_u32 v4, v4, 4, v3")
e("v_lshl_add_u32 v5, v5, 4, v3")
e("s_lshl_b32 s48, s28, 9")
e("s_lshl_b32 s49, s46, 7")
e("s_add_u32 s48, s48, s49")
e("s_lshl_b32 s49, s50, 5")
e("s_add_u32 s48, s48, s49")
e("s_mul_i32 s48, s48, 896")
e("s_lshl_b32 s49, s47, 7")
e("s_add_u32 s48, s48, s49")
e("s_mul_i32 s51, s28, 224")
e("s_lshl_b32 s52, s46, 6")
e("s_add_u32 s51, s51, s52")
e("s_lshl_b32 s52, s50, 4")
e("s_add_u32 s52, s52, s51")
e("s_mul_i32 s52, s52, 896")
e("s_add_u32 s52, s52, s49")
stamp(1)
e("s_lshl_b32 s53, s50, 11")
e(f"s_add_u32 m0, s53, {L_W2}")
nop(1)
e(f"buffer_load_dwordx4 v4, s[40:43], s52 offen {WPOL} lds")
e(f"s_add_u32 s52, s52, {8*896}")
e("s_add_u32 m0, m0, 1024")
nop(1)
e(f"buffer_load_dwordx4 v5, s[40:43], s52 offen {WPOL} lds")
e("s_lshl_b32 s53, s50, 12")
e(f"s_add_u32 m0, s53, {L_WO}")
for i in range(4):
    if i:
        e(f"s_add_u32 s48, s48, {8*896}")
        e("s_add_u32 m0, m0, 1024")
    nop(1)
    e(f"buffer_load_dwordx4 v{4+(i&1)}, s[32:35], s48 offen {WPOL} lds")
stamp(2)
ws_srd()
e("v_lshlrev_b32 v10, 10, v1")
e("v_lshrrev_b32 v11, 2, v2")
e("v_lshl_add_u32 v10, v11, 7, v10")
e("v_and_b32 v11, 3, v0")
e("v_lshl_add_u32 v10, v11, 3, v10")
e("v_bfe_u32 v11, v0, 3, 2")
for j in range(4):
    e(f"v_xor_b32 v12, {j}, v11")
    e(f"v_lshl_add_u32 v{6+j}, v12, 5, v10")
e("v_lshrrev_b32 v10, 1, v1")
e("v_lshlrev_b32 v10, 8, v10")
e("v_and_b32 v11, 1, v1")
e("v_lshl_add_u32 v10, v11, 5, v10")
e("s_lshl_b32 s53, s50, 6")
e("s_lshl_b32 s54, s51, 4")
e("s_add_u32 s53, s53, s54")
e(f"s_add_u32 s53, s53, {ABASE}")
e("s_lshl_b32 s55, s28, 2")
e("s_add_u32 s55, s55, s46")
e("s_lshl_b32 s54, s55, 2")
e("s_add_u32 s54, s54, s50")
e("s_lshl_b32 s54, s54, 13")
e(f"s_add_u32 s54, s54, {OBASE}")
e("v_lshlrev_b32 v11, 4, v0")
e("v_add_u32 v12, 4096, v11")
e("s_mul_i32 s56, s50, 7")
e("s_add_u32 s56, s56, s47")
e("s_lshl_b32 s57, s56, 14")
e(f"s_add_u32 s57, s57, {FBASE}")
e("s_lshl_b32 s56, s55, 7")
e("s_add_u32 s56, s56, s57")
e("v_lshlrev_b32 v13, 12, v1")
e("v_lshl_add_u32 v13, v2, 3, v13")
e("s_lshl_b32 s58, s46, 12")
e("s_add_u32 s57, s57, s58")
e("v_mov_b32 v5, 0")
get_T("w", 14, 5)
e("s_cmp_eq_u32 s46, 3")
e("s_cselect_b32 s58, 0, 512")
e("v_add_u32 v14, s58, v10")
e(f"s_mov_b32 s45, {SPIN}")
G = 16
lab("L_apoll")
e(f"buffer_load_dwordx4 v[16:19], v10, s[36:39], s53 offen sc1")
e(f"buffer_load_dwordx4 v[20:23], v10, s[36:39], s53 offen offset:16 sc1")
e(f"buffer_load_dwordx4 v[24:27], v14, s[36:39], s53 offen sc1")
e(f"buffer_load_dwordx4 v[28:31], v14, s[36:39], s53 offen offset:16 sc1")
e("s_sub_u32 s45, s45, 1")
e("s_cbranch_scc1 L_ago")
e("s_waitcnt vmcnt(0)")
e("v_bitop3_b32 v32, v19, v23, s44 bitop3:0x7e")
e("v_bitop3_b32 v33, v27, v31, s44 bitop3:0x7e")
e("v_or_b32 v32, v32, v33")
e("v_cmp_ne_u32 vcc, 0, v32")
e("s_cbranch_vccnz L_apoll")
lab("L_ago")
e("s_waitcnt vmcnt(0)")
stamp(3)
e("v_mov_b32 v14, 1")
e(f"ds_add_u32 v5, v14 offset:{L_WC}")
e("v_mov_b32 v18, v20"); e("v_mov_b32 v19, v21")
e("v_mov_b32 v26, v28"); e("v_mov_b32 v27, v29")
e("s_mov_b32 s40, s4"); e("s_mov_b32 s41, s5"); e("s_mov_b32 s42, 3584")
e("s_mul_i32 s59, s50, 896")
e("s_lshl_b32 s58, s47, 7"); e("s_add_u32 s59, s59, s58")
e("s_lshl_b32 s58, s46, 5"); e("s_add_u32 s59, s59, s58")
e("v_and_b32 v15, 7, v0")
e("v_lshlrev_b32 v15, 2, v15")
e("buffer_load_dword v3, v15, s[40:43], s59 offen")
e(f"s_mov_b32 s45, {SPIN*8}")
lab("L_wwait")
e(f"ds_read_b32 v14, v5 offset:{L_WC}")
e("s_sub_u32 s45, s45, 1")
e("s_cbranch_scc1 L_wgo")
e("s_waitcnt lgkmcnt(0)")
e("v_cmp_gt_u32 vcc, 256, v14")
e("s_cbranch_vccnz L_wwait")
lab("L_wgo")
e("s_waitcnt lgkmcnt(0)")
BF = 64
ACC = 48
for t in range(2):
    for j in range(4):
        r = BF + (t*4+j)*4
        e(f"ds_read_b64_tr_b16 v[{r}:{r+1}], v{6+j} offset:{L_W2 + t*4096}")
        e(f"ds_read_b64_tr_b16 v[{r+2}:{r+3}], v{6+j} offset:{L_W2 + t*4096 + 512}")
    e("s_waitcnt lgkmcnt(0)")
    if t == 1:
        e("s_cmp_eq_u32 s46, 3")
        e("s_cbranch_scc1 L_skipm")
    for j in range(4):
        r = BF + (t*4+j)*4
        src = "0" if t == 0 else f"v[{ACC+4*j}:{ACC+4*j+3}]"
        e(f"v_mfma_f32_16x16x32_bf16 v[{ACC+4*j}:{ACC+4*j+3}], v[{16+8*t}:{19+8*t}], v[{r}:{r+3}], {src}")
lab("L_skipm")
cnt = 0
for j in range(4):
    for t in range(4):
        r = BF + (j*4+t)*4
        e(f"ds_read_b64_tr_b16 v[{r}:{r+1}], v{6+j} offset:{L_WO + t*4096}")
        e(f"ds_read_b64_tr_b16 v[{r+2}:{r+3}], v{6+j} offset:{L_WO + t*4096 + 512}")
    e("s_waitcnt lgkmcnt(4)")
e("s_waitcnt lgkmcnt(0)")
for j in range(4):
    e(f"v_mul_f32 v{6+j}, 0.25, v{ACC+4*j}".replace("0.25", "0x3e800000"))
stamp(4)
e("s_lshl_b32 s58, s50, 13")
e(f"s_add_u32 s58, s58, {L_OG}")
e("s_add_u32 s43, s58, 4096")
e("v_xor_b32 v10, v1, v2")
e("v_lshlrev_b32 v14, 9, v2")
e("v_add_u32 v14, s58, v14")
for t in range(4):
    e(f"v_xor_b32 v4, {4*t}, v10")
    e(f"v_lshl_add_u32 v{60+t}, v4, 4, v14")
e(f"s_mov_b32 s45, {SPIN}")
lab("L_opoll")
e("s_mov_b32 m0, s58")
nop(1)
for j in range(4):
    e(f"buffer_load_dwordx4 v11, s[36:39], s54 offen offset:{j*1024} sc1 lds")
e("s_mov_b32 m0, s43")
nop(1)
for j in range(4):
    e(f"buffer_load_dwordx4 v12, s[36:39], s54 offen offset:{j*1024} sc1 lds")
e("s_waitcnt vmcnt(0)")
for t in range(4):
    e(f"ds_read_b128 v[{G+8*t}:{G+8*t+3}], v{60+t}")
    e(f"ds_read_b128 v[{G+8*t+4}:{G+8*t+7}], v{60+t} offset:256")
e("s_sub_u32 s45, s45, 1")
e("s_cbranch_scc1 L_ogo")
e("s_waitcnt lgkmcnt(0)")
for k in range(4):
    e(f"v_bitop3_b32 v{ACC+k}, v{G+8*k+3}, v{G+8*k+7}, s44 bitop3:0x7e")
e(f"v_or3_b32 v{ACC}, v{ACC}, v{ACC+1}, v{ACC+2}")
e(f"v_or_b32 v{ACC}, v{ACC}, v{ACC+3}")
e(f"v_cmp_ne_u32 vcc, 0, v{ACC}")
e("s_cbranch_vccnz L_opoll")
lab("L_ogo")
e("s_waitcnt lgkmcnt(0)")
stamp(5)
e(f"v_mov_b32 v10, v{G+2}")
for t in range(4):
    e(f"v_mov_b32 v{G+8*t+2}, v{G+8*t+4}")
    e(f"v_mov_b32 v{G+8*t+3}, v{G+8*t+5}")
valu = []
valu.append("v_max_f32_dpp v14, v10, v10 row_ror:1 row_mask:0xf bank_mask:0xf")
for sh in (2, 4, 8):
    valu.append(f"v_max_f32_dpp v14, v14, v14 row_ror:{sh} row_mask:0xf bank_mask:0xf")
valu.append("v_sub_f32 v10, v10, v14")
valu.append("v_exp_f32 v10, v10")
valu.append(f"v_mul_f32 v14, v10, v{G+6}")
for sh in (1, 2, 4, 8):
    valu.append(f"v_add_f32_dpp v14, v14, v14 row_ror:{sh} row_mask:0xf bank_mask:0xf")
valu.append("v_rcp_f32 v14, v14")
valu.append("v_mul_f32 v10, v10, v14")
valu.append("v_mov_b32 v14, v10")
valu.append("v_mov_b32_dpp v14, v10 row_ror:12 row_mask:0x2 bank_mask:0xf")
valu.append("v_mov_b32_dpp v14, v10 row_ror:8 row_mask:0x4 bank_mask:0xf")
valu.append("v_mov_b32_dpp v14, v10 row_ror:4 row_mask:0x8 bank_mask:0xf")
nop(1)
k = 0
for j in range(4):
    for t in range(4):
        r = BF + (j*4+t)*4
        src = "0" if t == 0 else f"v[{ACC+4*j}:{ACC+4*j+3}]"
        e(f"v_mfma_f32_16x16x32_bf16 v[{ACC+4*j}:{ACC+4*j+3}], v[{G+8*t}:{G+8*t+3}], v[{r}:{r+3}], {src}")
        nop(1)
        if k < len(valu): e(valu[k]); k += 1
while k < len(valu):
    nop(2); e(valu[k]); k += 1
nop(6)
for j in range(4):
    for r in range(4):
        e(f"v_fmac_f32_dpp v{6+j}, v14, v{ACC+4*j+r} row_newbcast:{r} row_mask:0xf bank_mask:0xf")
nop(2)
e("v_permlane32_swap_b32 v6, v8")
e("v_permlane32_swap_b32 v7, v9")
e("v_add_f32 v6, v6, v8")
e("v_add_f32 v7, v7, v9")
nop(2)
e("v_permlane16_swap_b32 v6, v7")
e("v_add_f32 v6, v6, v7")
e("v_mov_b32 v7, s44")
e("buffer_store_dwordx2 v[6:7], v13, s[36:39], s56 offen sc1")
stamp(6)
e("s_cmp_lg_u32 s28, s47")
e("s_cbranch_scc1 L_wend")
e("s_mov_b32 s40, s22"); e("s_mov_b32 s41, s23"); e("s_mov_b32 s42, 3584"); e("s_mov_b32 s43, 0x20000")
e("v_lshlrev_b32 v8, 16, v3")
e("v_and_b32 v9, 0xffff0000, v3")
e(f"s_mov_b32 s45, {SPIN}")
lab("L_fpoll")
for i in range(4):
    e(f"buffer_load_dwordx4 v[{G+4*i}:{G+4*i+3}], v11, s[36:39], s57 offen offset:{i*1024} sc1")
e("s_sub_u32 s45, s45, 1")
e("s_cbranch_scc1 L_fgo")
e("s_waitcnt vmcnt(0)")
for i in range(4):
    e(f"v_bitop3_b32 v{ACC+i}, v{G+4*i+1}, v{G+4*i+3}, s44 bitop3:0x7e")
e(f"v_or3_b32 v{ACC}, v{ACC}, v{ACC+1}, v{ACC+2}")
e(f"v_or_b32 v{ACC}, v{ACC}, v{ACC+3}")
e(f"v_cmp_ne_u32 vcc, 0, v{ACC}")
e("s_cbranch_vccnz L_fpoll")
lab("L_fgo")
e("s_waitcnt vmcnt(0)")
e(f"v_add_f32 v{G}, v{G}, v{G+4}");  e(f"v_add_f32 v{G+2}, v{G+2}, v{G+6}")
e(f"v_add_f32 v{G+8}, v{G+8}, v{G+12}");  e(f"v_add_f32 v{G+10}, v{G+10}, v{G+14}")
e(f"v_add_f32 v{G}, v{G}, v{G+8}");  e(f"v_add_f32 v{G+2}, v{G+2}, v{G+10}")
nop(2)
e(f"v_permlane32_swap_b32 v{G}, v{G+2}")
e(f"v_add_f32 v{G}, v{G}, v{G+2}")
e(f"v_mov_b32 v{G+1}, v{G}")
nop(2)
e(f"v_permlane16_swap_b32 v{G}, v{G+1}")
e(f"v_add_f32 v{G}, v{G}, v{G+1}")
nop(2)
e(f"v_add_f32_dpp v{G}, v{G}, v{G} row_ror:8 row_mask:0xf bank_mask:0xf")
e(f"v_mov_b32 v{G+1}, v{G}")
nop(2)
e(f"v_permlane32_swap_b32 v{G}, v{G+1}")
e(f"v_add_f32 v8, v8, v{G}")
e(f"v_add_f32 v9, v9, v{G+1}")
e("v_cvt_pk_bf16_f32 v8, v8, v9")
e("s_mov_b64 exec, 0xff")
e("buffer_store_dword v8, v15, s[40:43], s59 offen")
stamp(7)
e("s_cmp_lg_u32 s59, 0")
e("s_cbranch_scc1 L_wend")
e("s_mov_b64 exec, 1")
e("buffer_store_dword v7, v5, s[36:39], 0 offen")
lab("L_wend")
stamp_flush(24, 8, 12)
lab("L_end")
e("s_endpgm")

ref = open('parallel_sum__sliding_block_cached__dense_activation_mish__decode.s.ref').read().split('\n')
hdr = [l for l in ref if l.startswith(';') and '@launch' not in l]
print("\n".join(hdr))
print(f"; @launch grid=(256,1,1) block=(1024,1,1) lds={LDS_BYTES}")
print(f""".amdgcn_target "amdgcn-amd-amdhsa--gfx950"
.text
.globl {NAME}
.p2align 8
.type {NAME},@function
{NAME}:""")
print("\n".join(L))
print(f""".section .rodata,"a"
.p2align 6
.amdhsa_kernel {NAME}
  .amdhsa_next_free_vgpr 128
  .amdhsa_next_free_sgpr 96
  .amdhsa_accum_offset 128
  .amdhsa_group_segment_fixed_size 0
  .amdhsa_kernarg_size 96
  .amdhsa_user_sgpr_count 2
  .amdhsa_user_sgpr_kernarg_segment_ptr 1
  .amdhsa_system_sgpr_workgroup_id_x 1
.end_amdhsa_kernel""")
```

```python
import sys, math, struct
NAME = "parallel_sum__sliding_block_cached__dense_activation_mish__decode_kernel"
opts = dict(a.split('=') for a in sys.argv[1:] if '=' in a)
STAMPS = int(opts.get('stamps', 0))
ROT = int(opts.get('rot', 2))
PPOL = opts.get('ppol', 'nt').replace('_', ' ')
WPOL = opts.get('wpol', '').replace('_', ' ')
KVPOL = opts.get('kvpol', 'nt').replace('_', ' ')
SPIN = int(opts.get('spin', 40000))
NCAP = int(opts.get('ncap', 6))
WPRE = int(opts.get('wpre', 0))
WPOS = int(opts.get('wpos', 10))
DUAL = int(opts.get('dual', 1))
PREW = int(opts.get('prew', 1))
SO = int(opts.get('so', 0))
UNTH = int(opts.get('unth', 1))
TLBW = int(opts.get('tlbw', 1))
ALIGN = int(opts.get('align', 12))
PADTO = int(opts.get('padto', 0))
REPORT = int(opts.get('report', 0))
def fhex(x): return "%#x" % struct.unpack('<I', struct.pack('<f', x))[0]
L = []
def e(s): L.append("    " + s)
def lab(s): L.append(s + ":")
def nop(n):
    if n > 0: e(f"s_nop {n-1}")
DPP = "row_mask:0xf bank_mask:0xf"
QBASE, HBASE, FBASE, OBASE, ALT, WSN = 0x1000, 0x21000, 0x40000, 0x180000, 0, 0x200000
VSIG = int(opts.get('vsig', 15))
L_T, L_QF, L_EF, L_XF, L_KF, L_VI, L_KCR, L_PL, L_ST, L_XS, L_MB = 0, 4, 8, 12, 16, 32, 48, 64, 80, 128, 192
L_OC, L_VP, L_ZC = 112, 116, 124
L_Z = 0x1400
LATEB = int(opts.get('lateb', 1))
FDEP = int(opts.get('fdep', 0))
L_VD = 120
XBASE = 0x30000
BTO = int(opts.get('bto', 48))
L_SC, L_ONES, L_QS, L_X, L_PW, L_WW, L_OG = 0x100, 0x500, 0x900, 0x1400, 0x2400, 0x9400, 0x15400
LDS_BYTES = 0x19400
def stamp(slot, lvl=1):
    if STAMPS == 1 or (STAMPS == 2 and lvl == 2):
        e(f"s_memrealtime s[{64+2*slot}:{65+2*slot}]")
        e("s_waitcnt lgkmcnt(0)")
def stamp_flush(base, n, cond_wave, sfx=""):
    if STAMPS != 1: return
    lbl = f"L_sf{base}{sfx}"
    e(f"s_cmp_lg_u32 s3, {cond_wave}")
    e(f"s_cbranch_scc1 {lbl}")
    e("s_lshl_b32 s60, s2, 8")
    e(f"s_add_u32 s60, s60, {0x8000000 + base*8}")
    e("s_add_u32 s62, s26, s60")
    e("s_addc_u32 s63, s27, 0")
    e("s_mov_b64 exec, 1")
    e("v_mov_b32 v2, 0")
    for i in range(n):
        e(f"v_mov_b32 v4, s{64+2*i}")
        e(f"v_mov_b32 v5, s{65+2*i}")
        e(f"global_store_dwordx2 v2, v[4:5], s[62:63] offset:{8*i}")
        nop(1)
    lab(lbl)
def wstamp_flush(pairs, sfx):
    e("s_lshl_b32 s60, s2, 8")
    e("s_and_b32 s61, s3, 3"); e("s_lshl_b32 s61, s61, 3"); e("s_add_u32 s60, s60, s61")
    e(f"s_add_u32 s60, s60, {0x8000000}")
    e("s_add_u32 s62, s26, s60")
    e("s_addc_u32 s63, s27, 0")
    e("s_mov_b64 exec, 1")
    e("v_mov_b32 v2, 0")
    for base, i in pairs:
        e(f"v_mov_b32 v4, s{64+2*i}")
        e(f"v_mov_b32 v5, s{65+2*i}")
        e(f"global_store_dwordx2 v2, v[4:5], s[62:63] offset:{8*base}")
        nop(1)
def ws_srd():
    e("s_mov_b64 s[36:37], s[26:27]"); e(f"s_mov_b32 s38, {WSN}"); e("s_mov_b32 s39, 0x20000")
def lds_wait(tag, vt, vz, off, sdst, need=1, sleep=0, bound=None):
    e(f"s_mov_b32 s45, {bound if bound else SPIN*8}")
    lab(f"L_lw{tag}")
    if sleep: e(f"s_sleep {sleep}")
    e(f"ds_read_b32 v{vt}, v{vz} offset:{off}")
    e("s_sub_u32 s45, s45, 1")
    e("s_cbranch_scc1 L_lwd" + tag)
    e("s_waitcnt lgkmcnt(0)")
    e(f"v_readfirstlane_b32 s{sdst}, v{vt}")
    e(f"s_cmp_lt_u32 s{sdst}, {need}")
    e(f"s_cbranch_scc1 L_lw{tag}")
    lab(f"L_lwd{tag}")
cw_n = [0]
def credit_wait(need, vaddr, vt, sc):
    cw_n[0] += 1; n = cw_n[0]
    lab(f"L_cw{n}")
    e(f"s_cmp_ge_u32 s{sc}, {need}")
    e(f"s_cbranch_scc1 L_cwd{n}")
    if need == 1: e("s_sleep 1")
    e(f"ds_read_b32 v{vt}, v{vaddr}")
    e("s_waitcnt lgkmcnt(0)")
    e(f"v_readfirstlane_b32 s{sc}, v{vt}")
    e(f"s_branch L_cw{n}")
    lab(f"L_cwd{n}")
def kv_base():
    e("s_lshl_b32 s46, s30, 3")
    e("s_add_u32 s46, s46, s28")
    e("s_lshl_b32 s47, s46, 21")
    e("s_lshl_b32 s48, s31, 16")
    e("s_add_u32 s47, s47, s48")
    e("s_add_u32 s47, s47, 0x180000")
    if ROT == 0: e("s_mov_b32 s49, 0")
    elif ROT == 1: e("s_mul_i32 s49, s2, 37")
    elif ROT == 2: e("s_mov_b32 s49, s29")
    elif ROT == 3: e("s_mul_i32 s49, s2, 5"); e("s_add_u32 s49, s49, s29")
    e("s_lshl_b32 s49, s49, 12")
def unit_params():
    e("s_mul_i32 s52, s28, 7")
    e("s_add_u32 s52, s52, s29")
    e("s_sub_u32 s52, s52, 25")
    e("s_lshl_b32 s53, s28, 4")
    e("s_add_u32 s53, s53, s29")
    e("s_cmp_ge_u32 s29, 25")
    e("s_cselect_b32 s51, 2, 0")
    e("s_cmp_lt_u32 s29, 16")
    e("s_cselect_b32 s51, 1, s51")
    e("s_cselect_b32 s52, s53, s52")
    e("s_and_b32 s53, s52, 1")
    e("s_lshr_b32 s52, s52, 1")

if STAMPS or PADTO: e("s_memrealtime s[64:65]")
e("s_cmp_ge_u32 s2, 256")
e("s_cbranch_scc1 L_end")
e("s_load_dwordx16 s[4:19], s[0:1], 0")
e("s_load_dwordx8 s[20:27], s[0:1], 64")
e("v_lshrrev_b32 v1, 6, v0")
e("v_and_b32 v0, 63, v0")
e("s_and_b32 s28, s2, 7")
e("v_readfirstlane_b32 s3, v1")
e("s_lshr_b32 s29, s2, 3")
e("s_lshr_b32 s30, s29, 3")
e("s_and_b32 s31, s29, 7")
e("v_lshrrev_b32 v1, 4, v0")
e("v_and_b32 v2, 15, v0")
e("s_and_b32 s50, s3, 3")
e("v_mov_b32 v5, 0")
e("s_cmp_lt_u32 s3, 8")
e("s_cbranch_scc1 L_lt8")
e("s_getpc_b64 s[40:41]")
lab("L_pc")
e("v_lshlrev_b32 v3, 2, v0")
e("ds_write_b32 v3, v5")
e("s_mul_i32 s46, s3, 1280")
e(f"s_sub_u32 s46, s46, {8*1280-1024}")
e("v_lshl_add_u32 v3, v0, 7, s46")
e("v_min_u32 v3, L_end-L_pc, v3")
e("s_mov_b64 exec, 0x3ff")
e("global_load_dword v60, v3, s[40:41]")
e("s_mov_b64 exec, -1")
e("s_waitcnt lgkmcnt(0)")
e("s_barrier")
e("s_branch L_VW")
lab("L_lt8")
e("s_cmp_ge_u32 s3, 4")
e("s_cbranch_scc1 L_K")
e("v_lshlrev_b32 v13, 4, v0")
e("s_mov_b32 s42, 3584"); e("s_mov_b32 s43, 0x20000")
e(f"s_mov_b32 m0, {L_X}")
e("s_waitcnt lgkmcnt(0)")
e("s_mov_b64 s[40:41], s[4:5]")
e("s_cmp_eq_u32 s3, 3")
e("s_cbranch_scc0 L_Pn3")
for i in range(4):
    e(f"buffer_load_dwordx4 v13, s[40:43], 0 offen offset:{i*1024} lds")
lab("L_Pn3")
e("s_load_dword s44, s[26:27], 0")
e("s_barrier")
e("s_branch L_P")
lab("L_K")
unit_params()
e("s_cmp_eq_u32 s51, 1")
e("s_cselect_b32 s54, 16, 7")
e("s_lshl_b32 s54, s54, 9")
e("v_lshrrev_b32 v3, 3, v0")
e("v_mul_u32_u24 v3, s54, v3")
e("v_and_b32 v4, 7, v0")
e("v_bfe_u32 v6, v0, 4, 1")
e("v_lshlrev_b32 v6, 1, v6")
e("v_xor_b32 v4, v4, v6")
e("s_and_b32 s55, s50, 1")
e("s_lshl_b32 s55, s55, 2")
e("v_xor_b32 v4, s55, v4")
e("v_lshl_add_u32 v4, v4, 4, v3")
e("s_mul_i32 s55, s53, 224")
e("s_lshl_b32 s56, s50, 3")
e("s_add_u32 s55, s55, s56")
e("s_mul_i32 s55, s55, s54")
e("s_lshl_b32 s56, s52, 7")
e("s_add_u32 s55, s55, s56")
e("s_lshl_b32 s56, s54, 5")
e("s_mul_i32 s42, s54, 448")
e("s_mov_b32 s43, 0x20000")
e("s_lshl_b32 s57, s50, 10")
e(f"s_add_u32 m0, s57, {L_PW}")
kv_base()
e("s_lshl_b32 s57, s50, 11")
e("s_add_u32 s49, s49, s57")
e("v_lshrrev_b32 v3, 2, v2")
e("v_lshlrev_b32 v3, 9, v3")
e("v_lshl_add_u32 v3, v1, 6, v3")
e("v_and_b32 v6, 3, v0")
e("v_lshl_add_u32 v3, v6, 4, v3")
e("s_mov_b32 s34, 0x10000")
e("s_mov_b32 s35, 0x20000")
e("s_lshl_b32 s58, s50, 2")
e("v_mov_b32 v9, s58")
e("v_mov_b32 v8, 1")
e("s_cmp_eq_u32 s51, 1")
e("s_waitcnt lgkmcnt(0)")
e("s_cselect_b64 s[40:41], s[10:11], s[16:17]")
e("s_add_u32 s32, s6, s47")
e("s_addc_u32 s33, s7, 0")
DV = 64
def kload(i):
    j, lo = i >> 1, i & 1
    if lo == 0:
        if j: e(f"s_add_u32 s49, s49, 8192")
        e("s_and_b32 s54, s49, 0xffff")
    return f"buffer_load_dwordx4 v[{DV+4*i}:{DV+4*i+3}], v3, s[32:35], s54 offen offset:{lo*256} {KVPOL}"
e("s_cmp_eq_u32 s51, 0")
e("s_cbranch_scc1 L_Knou")
for t in range(7):
    if t:
        e("s_add_u32 m0, m0, 4096")
        e("s_add_u32 s55, s55, s56")
    e(f"buffer_load_dwordx4 v4, s[40:43], s55 offen {PPOL} lds")
    if t == 6: e("s_barrier")
for i in range(NCAP):
    ld = kload(i)
    if 7 + i >= NCAP: e(f"s_waitcnt vmcnt({NCAP-1})")
    if i == NCAP - 1: e(f"ds_write_b32 v9, v8 offset:{L_PL}")
    e(ld)
e("s_branch L_Kc")
lab("L_Knou")
for i in range(NCAP):
    e(kload(i))
e("s_barrier")
lab("L_Kc")
stamp(1)
for i in range(NCAP, 16):
    ld = kload(i)
    e(f"s_waitcnt vmcnt({NCAP-1})")
    e(ld)
stamp(2)
for k in range(NCAP):
    e(f"v_mov_b32 v8, {k+1}")
    e(f"s_waitcnt vmcnt({NCAP-1-k})")
    e(f"ds_write_b32 v9, v8 offset:{L_KCR}")
if SO:
    stamp(3); stamp(4); stamp_flush(8, 5, 4, "so"); e("s_endpgm")
e("v_bfe_u32 v18, v0, 2, 1")
e("v_lshlrev_b32 v7, 9, v18")
e("v_lshl_add_u32 v7, v1, 6, v7")
e("s_lshr_b32 s56, s50, 1")
e("s_lshl_b32 s58, s56, 5")
e("s_and_b32 s57, s50, 1")
e("s_lshl_b32 s57, s57, 8")
e("s_add_u32 s57, s58, s57")
e("v_add_u32 v7, s57, v7")
e("v_mov_b32 v16, v9")
e("v_mov_b32 v17, 1")
e("v_lshlrev_b32 v18, 5, v18")
e("s_lshl_b32 s57, s50, 3")
e("v_add_u32 v19, s57, v18")
e("v_add_u32 v6, v9, v18")
e(f"s_mov_b32 s59, {fhex(math.log2(math.e)/16)}")
lds_wait("k", 8, 5, L_QF, 44, sleep=1)
e(f"ds_read_b128 v[8:11], v3 offset:{L_QS}")
e(f"ds_read_b128 v[12:15], v3 offset:{L_QS+256}")
e("s_waitcnt lgkmcnt(0)")
stamp(3)
AC = 24
def extr(j):
    return [f"v_mov_b32_dpp v{56+j}, v{AC+4*j} quad_perm:[0,0,0,0] {DPP}"] + \
           [f"v_add_f32_dpp v{56+j}, v{AC+4*j+r}, v{56+j} quad_perm:[{r},{r},{r},{r}] {DPP}" for r in (1, 2, 3)]
chains = {j: extr(j) + [f"v_add_f32_dpp v{56+j}, v{56+j}, v{56+j} row_ror:8 {DPP}"] for j in range(8)}
ready = {j: 10**9 for j in range(8)}
pos = [0]
def em(x): e(x); pos[0] += 1
def fill(n, force=False):
    for _ in range(n):
        cand = [j for j in range(8) if chains[j] and ready[j] <= pos[0]]
        if not cand:
            if force: em("s_nop 0")
            continue
        j = cand[0]; em(chains[j].pop(0)); ready[j] = pos[0] + 2
for j in range(8):
    em(f"v_mfma_f32_16x16x32_bf16 v[{AC+4*j}:{AC+4*j+3}], v[{DV+8*j}:{DV+8*j+3}], v[8:11], 0")
    fill(2, True)
    em(f"v_mfma_f32_16x16x32_bf16 v[{AC+4*j}:{AC+4*j+3}], v[{DV+8*j+4}:{DV+8*j+7}], v[12:15], v[{AC+4*j}:{AC+4*j+3}]")
    ready[j] = pos[0] + 8
    fill(2, True)
while any(chains.values()): fill(1, True)
e("v_max3_f32 v12, v56, v57, v58")
e("v_max3_f32 v12, v12, v59, v60")
e("v_max3_f32 v12, v12, v61, v62")
e("v_max_f32 v12, v12, v63")
e("v_mov_b32 v14, v12"); nop(2)
e("v_permlane32_swap_b32 v12, v14")
e("v_max_f32 v12, v12, v14")
e("v_mov_b32 v14, v12"); nop(2)
e("v_permlane16_swap_b32 v12, v14")
e("v_max_f32 v12, v12, v14")
e("v_mov_b32 v13, 1")
e(f"ds_write_b64 v19, v[12:13] offset:{L_MB}")
e(f"s_mov_b32 s45, {SPIN*8}")
lab("L_kx")
e(f"ds_read_b128 v[20:23], v18 offset:{L_MB}")
e(f"ds_read_b128 v[24:27], v18 offset:{L_MB+16}")
e("s_sub_u32 s45, s45, 1")
e("s_cbranch_scc1 L_kxd")
e("s_waitcnt lgkmcnt(0)")
e("v_and_b32 v14, v21, v23")
e("v_and_b32 v15, v25, v27")
e("v_and_b32 v14, v14, v15")
e("v_cmp_eq_u32 vcc, 0, v14")
e("s_cbranch_vccnz L_kx")
lab("L_kxd")
e("v_max3_f32 v12, v20, v22, v24")
e("v_max_f32 v12, v12, v26")
e("v_mul_f32 v12, s59, v12")
for i in range(8): e(f"v_fma_f32 v{56+i}, v{56+i}, s59, -v12")
for i in range(8): e(f"v_exp_f32 v{56+i}, v{56+i}")
nop(1)
e("v_add_f32 v13, v56, v57")
for i in range(2, 8): e(f"v_add_f32 v13, v13, v{56+i}")
for i in range(8): e(f"v_cvt_pk_bf16_f32 v{56+i}, v{56+i}, v{56+i}")
e("v_mov_b32 v15, v13"); nop(2)
e("v_permlane32_swap_b32 v13, v15")
e("v_add_f32 v13, v13, v15")
e("v_mov_b32 v15, v13"); nop(2)
e("v_permlane16_swap_b32 v13, v15")
e("v_add_f32 v13, v13, v15")
e("s_mov_b32 exec_lo, 0x00110011")
e("s_mov_b32 exec_hi, 0x00110011")
e(f"ds_write_b128 v7, v[56:59] offset:{L_SC}")
e(f"ds_write_b128 v7, v[60:63] offset:{L_SC+16}")
e(f"ds_write_b32 v6, v12 offset:{L_XS}")
e(f"ds_write_b32 v6, v13 offset:{L_XS+16}")
e("s_mov_b64 exec, 1")
e("s_waitcnt lgkmcnt(0)")
e(f"ds_write_b32 v16, v17 offset:{L_KF}")
stamp(4)
stamp_flush(8, 5, 4)
e("s_endpgm")

lab("L_P")
if SO:
    if SO == 2:
        e("v_mov_b32 v24, 1"); e(f"ds_write_b32 v5, v24 offset:{L_QF}")
    stamp_flush(0, 1, 0, "so"); e("s_endpgm")
unit_params()
ws_srd()
e("s_waitcnt lgkmcnt(0)")
e("s_cmp_eq_u32 s3, 1")
e("s_cbranch_scc0 L_Pm1")
e("s_mul_i32 s44, s44, 0x9E3779B5")
e("s_add_u32 s44, s44, 0x7F4A7C15")
e("s_cmp_eq_u32 s44, 0")
e("s_cselect_b32 s44, 0x7F4A7C15, s44")
e("v_mov_b32 v24, s44")
e(f"ds_write_b32 v5, v24 offset:{L_T}")
e("s_getreg_b32 s46, hwreg(HW_REG_XCC_ID)")
e("s_and_b32 s46, s46, 15")
e("s_lshl_b32 s47, s28, 12")
e("s_lshl_b32 s48, s29, 7")
e("s_add_u32 s48, s48, s47")
e(f"s_add_u32 s48, s48, {XBASE}")
e("v_mov_b32 v8, s46"); e("v_mov_b32 v9, s44"); e("v_mov_b32 v10, s46"); e("v_mov_b32 v11, s44")
e("s_mov_b64 exec, 0xff")
e("buffer_store_dwordx4 v[8:11], v13, s[36:39], s48 offen sc1")
e("s_mov_b64 exec, -1")
lab("L_Pm1")
e("s_cmp_eq_u32 s51, 0")
e("s_cbranch_scc1 L_Pdone")
e("s_cmp_eq_u32 s3, 3")
e("s_cbranch_scc0 L_Pm3")
e("v_mov_b32 v16, 0x3f803f80"); e("v_mov_b32 v17, v16"); e("v_mov_b32 v18, v16"); e("v_mov_b32 v19, v16")
e(f"ds_write_b128 v13, v[16:19] offset:{L_ONES}")
e("v_and_b32 v15, 3, v0")
e("v_mul_u32_u24 v12, 896, v15")
e("v_lshrrev_b32 v14, 2, v0")
e("v_lshl_add_u32 v12, v14, 6, v12")
e("v_cmp_gt_u32 vcc, 14, v14")
e("v_mov_b32 v14, 3584")
e("v_lshlrev_b32 v15, 3, v15")
e("v_cndmask_b32 v12, v14, v12, vcc")
e("v_mov_b32 v36, 0"); e("v_mov_b32 v37, 0")
e("s_waitcnt vmcnt(0)")
for i in range(4): e(f"ds_read_b128 v[{20+4*i}:{23+4*i}], v12 offset:{L_X+16*i}")
e("s_waitcnt lgkmcnt(0)")
for i in range(16):
    e(f"v_dot2c_f32_bf16 v36, v{20+i}, v16")
    e(f"v_dot2c_f32_bf16 v37, v{20+i}, v{20+i}")
nop(4)
for sh in (4, 8):
    e(f"v_add_f32_dpp v36, v36, v36 row_ror:{sh} {DPP}")
    e(f"v_add_f32_dpp v37, v37, v37 row_ror:{sh} {DPP}")
    nop(2)
for sw in ("16", "32"):
    e("v_mov_b32 v38, v36"); e("v_mov_b32 v39, v37"); nop(2)
    e(f"v_permlane{sw}_swap_b32 v36, v38")
    e(f"v_permlane{sw}_swap_b32 v37, v39")
    e("v_add_f32 v36, v36, v38"); e("v_add_f32 v37, v37, v39")
e(f"v_mul_f32 v36, {fhex(1.0/448)}, v36")
e(f"v_mul_f32 v37, {fhex(1.0/448)}, v37")
e("v_fma_f32 v37, -v36, v36, v37")
e("v_max_f32 v37, 0, v37")
e(f"v_add_f32 v37, {fhex(1e-5)}, v37")
e("v_rsq_f32 v37, v37")
e("v_sub_f32 v36, 0, v36")
e("v_mov_b32 v40, 1")
e(f"ds_write_b64 v15, v[36:37] offset:{L_ST}")
e("s_waitcnt lgkmcnt(0)")
e(f"ds_write_b32 v5, v40 offset:{L_XF}")
lab("L_Pm3")
stamp(1)
e("v_lshlrev_b32 v10, 10, v1")
e("v_lshrrev_b32 v11, 2, v2")
e("v_lshl_add_u32 v10, v11, 7, v10")
e("v_and_b32 v11, 3, v0")
e("v_lshl_add_u32 v10, v11, 3, v10")
e("v_lshlrev_b32 v12, 3, v11")
e("v_bfe_u32 v11, v0, 3, 2")
e("v_xor_b32 v11, s3, v11")
e("v_lshl_add_u32 v6, v11, 5, v10")
e("v_mul_u32_u24 v14, 896, v2")
e("s_mul_i32 s54, s53, 448")
e(f"s_add_u32 s54, s54, {L_X}")
e("v_add_u32 v14, s54, v14")
e("v_cmp_gt_u32 vcc, 4, v2")
e(f"v_mov_b32 v15, {L_ONES}"); nop(1)
e("v_cndmask_b32 v14, v15, v14, vcc")
e("v_lshl_add_u32 v14, v1, 4, v14")
e("v_and_b32 v10, 3, v0")
e("v_lshlrev_b32 v10, 6, v10")
e("v_and_b32 v11, 12, v0")
e("v_add_u32 v10, v10, v11")
e("s_and_b32 s54, s52, 7")
e("s_lshl_b32 s54, s54, 10")
e("s_lshl_b32 s55, s53, 13")
e("s_add_u32 s54, s54, s55")
e("s_lshl_b32 s55, s28, 14")
e("s_add_u32 s54, s54, s55")
e(f"s_add_u32 s54, s54, {QBASE}")
e("s_lshl_b32 s55, s52, 11")
e("s_lshl_b32 s56, s53, 10")
e("s_add_u32 s55, s55, s56")
e(f"s_add_u32 s55, s55, {HBASE}")
e("s_cmp_eq_u32 s51, 1")
e("s_cselect_b32 s54, s54, s55")
e("s_lshl_b32 s55, s3, 8")
e("s_add_u32 s54, s54, s55")
e(f"s_add_u32 s55, s54, {ALT}")
if PREW:
    for r in range(4): e(f"v_mov_b32 v{28+r}, 0")
    e("s_cmp_eq_u32 s51, 1")
    e("s_cbranch_scc0 L_npw")
    e("s_mov_b64 exec, 0xffff")
    e("buffer_store_dwordx4 v[28:31], v13, s[36:39], s55 offen")
    e("s_mov_b64 exec, -1")
    lab("L_npw")
lds_wait("p", 27, 5, L_T, 44)
lds_wait("x", 26, 5, L_XF, 46)
XF = 96
for t in range(7): e(f"ds_read_b128 v[{XF+4*t}:{XF+4*t+3}], v14 offset:{64*t}")
e(f"ds_read_b64 v[36:37], v12 offset:{L_ST}")
e("v_mov_b32 v26, v27")
e(f"s_mov_b32 s45, {SPIN*8}")
lab("L_pl")
e(f"ds_read_b128 v[16:19], v5 offset:{L_PL}")
e("s_sub_u32 s45, s45, 1")
e("s_cbranch_scc1 L_pld")
e("s_waitcnt lgkmcnt(0)")
e("v_and_b32 v16, v16, v17")
e("v_and_b32 v18, v18, v19")
e("v_and_b32 v16, v16, v18")
e("v_cmp_eq_u32 vcc, 0, v16")
e("s_cbranch_vccnz L_pl")
lab("L_pld")
stamp(2)
for t in range(7):
    r = 64 + 4*t
    e(f"ds_read_b64_tr_b16 v[{r}:{r+1}], v6 offset:{L_PW + t*4096}")
    e(f"ds_read_b64_tr_b16 v[{r+2}:{r+3}], v6 offset:{L_PW + t*4096 + 512}")
for t in range(7):
    r = 64 + 4*t
    e(f"s_waitcnt lgkmcnt({12-2*t})")
    src = "0" if t == 0 else "v[16:19]"
    e(f"v_mfma_f32_16x16x32_bf16 v[16:19], v[{r}:{r+3}], v[{XF+4*t}:{XF+4*t+3}], {src}")
nop(8)
for r in range(4): e(f"v_mov_b32 v{20+r}, v{16+r}")
for r in range(4): e(f"v_fmac_f32_dpp v{20+r}, v{16+r}, v36 row_shl:4 {DPP}")
for r in range(4): e(f"v_mul_f32 v{20+r}, v{20+r}, v37")
e("v_cvt_pk_bf16_f32 v20, v20, v21")
e("v_cvt_pk_bf16_f32 v21, v22, v23")
e("ds_bpermute_b32 v24, v10, v20")
e("ds_bpermute_b32 v25, v10, v21")
e("s_waitcnt lgkmcnt(0)")
e("s_mov_b64 exec, 0xffff")
e("s_cmp_eq_u32 s51, 1")
e("s_cbranch_scc0 L_Pb")
e("buffer_store_dwordx4 v[24:27], v13, s[36:39], s54 offen")
for r in range(4): e(f"v_mov_b32 v{32+r}, v{24+r}")
e("s_mov_b32 s59, s54")
e("s_branch L_Pnb")
lab("L_Pb")
e("buffer_store_dwordx4 v[24:27], v13, s[36:39], s54 offen sc1")
lab("L_Pnb")
e("s_mov_b64 exec, -1")
stamp(3)
stamp_flush(0, 4, 0)
lab("L_Pdone")
e("v_mov_b32 v36, v13")
def g_bstore(sfx):
    e("s_cmp_eq_u32 s46, 2")
    e(f"s_cbranch_scc0 L_qnb{sfx}")
    e("s_cmp_eq_u32 s51, 1")
    e(f"s_cbranch_scc0 L_qnb{sfx}")
    e("s_mov_b64 exec, 0xffff")
    e("buffer_store_dwordx4 v[32:35], v36, s[36:39], s59 offen sc1")
    e("s_mov_b64 exec, -1")
    e("s_mov_b32 s51, 0")
    lab(f"L_qnb{sfx}")
e("s_cmp_eq_u32 s3, 1")
e("s_cbranch_scc1 L_G")
e("s_cmp_eq_u32 s3, 0")
e("s_cbranch_scc0 L_Pw")
e("s_mov_b64 exec, -1")
e("v_mov_b32 v5, 0")
e("s_getreg_b32 s48, hwreg(HW_REG_XCC_ID)")
e("s_and_b32 s48, s48, 15")
e("s_lshl_b32 s47, s28, 12")
e(f"s_add_u32 s47, s47, {XBASE}")
e("v_lshlrev_b32 v6, 7, v0")
lds_wait("xt", 9, 5, L_T, 44, sleep=1)
lds_wait("xq", 10, 5, L_QF, 49, sleep=2, bound=BTO)
e("s_mov_b32 exec_lo, -1"); e("s_mov_b32 exec_hi, 0")
e(f"s_mov_b32 s45, {SPIN}")
e("s_mov_b32 s49, 2")
lab("L_xpoll")
e("buffer_load_dwordx2 v[10:11], v6, s[36:39], s47 offen sc1")
e("s_sub_u32 s45, s45, 1")
e("s_waitcnt vmcnt(0) lgkmcnt(0)")
e("s_cbranch_scc1 L_xdone")
e("v_cmp_ne_u32 vcc, s44, v11")
e("s_cbranch_vccnz L_xpoll")
e("v_cmp_ne_u32 vcc, s48, v10")
e("s_cbranch_vccnz L_xdone")
e("s_mov_b32 s49, 1")
lab("L_xdone")
e("v_mov_b32 v8, s49")
e(f"ds_write_b32 v5, v8 offset:{L_VD}")
lab("L_Pw")
e("s_cmp_eq_u32 s51, 1")
e("s_cbranch_scc0 L_end")
lds_wait("pb", 28, 5, L_VD, 46, sleep=2)
g_bstore("c")
e("s_endpgm")
lab("L_G")
e("v_lshrrev_b32 v6, 2, v0")
e("v_lshlrev_b32 v6, 8, v6")
e("v_and_b32 v7, 3, v0")
e("v_lshl_add_u32 v6, v7, 4, v6")
e("v_lshlrev_b32 v7, 3, v0")
e("s_lshl_b32 s55, s28, 14")
e("s_lshl_b32 s56, s30, 6")
e("s_add_u32 s55, s55, s56")
e(f"s_add_u32 s55, s55, {QBASE}")
e("v_mov_b32 v24, s44")
stamp(1)
e(f"s_mov_b32 s45, {SPIN}")
lab("L_qpoll")
e(f"ds_read_b32 v25, v5 offset:{L_VD}")
e("s_waitcnt lgkmcnt(0)")
e("v_readfirstlane_b32 s46, v25")
g_bstore("a")
for i in range(4):
    if i: e(f"s_add_u32 s56, s55, {i*4096}")
    e(f"buffer_load_dwordx4 v[{8+4*i}:{11+4*i}], v6, s[36:39], s{56 if i else 55} offen sc1")
e("s_sub_u32 s45, s45, 1")
e("s_cbranch_scc1 L_qgo")
e("s_waitcnt vmcnt(0)")
e("v_bitop3_b32 v25, v11, v15, s44 bitop3:0x7e")
e("v_bitop3_b32 v26, v19, v23, s44 bitop3:0x7e")
e("v_or_b32 v25, v25, v26")
e("v_cmp_ne_u32 vcc, 0, v25")
e("s_cbranch_vccnz L_qpoll")
lab("L_qgo")
e("s_waitcnt vmcnt(0)")
for i in range(4): e(f"ds_write_b64 v7, v[{8+4*i}:{9+4*i}] offset:{L_QS+i*512}")
e("s_waitcnt lgkmcnt(0)")
e(f"ds_write_b32 v5, v24 offset:{L_QF}")
if STAMPS == 1: e("s_mov_b32 s47, s45")
stamp(2)
lds_wait("gv", 25, 5, L_VD, 46, sleep=2)
g_bstore("b")
if STAMPS == 1: e("s_mov_b32 s45, s47")
if STAMPS == 1:
    e(f"s_sub_u32 s70, {SPIN}, s45"); e("s_mul_i32 s70, s70, 100"); e("s_add_u32 s70, s70, s64"); e("s_mov_b32 s71, s65")
stamp_flush(4, 4, 1)
e("s_endpgm")

lab("L_VW")
ws_srd()
e("s_cmp_ge_u32 s3, 12")
e("s_cbranch_scc1 L_W")
kv_base()
e("s_lshl_b32 s52, s50, 7")
e("v_lshrrev_b32 v10, 3, v0")
e("v_lshlrev_b32 v3, 9, v10")
e("v_and_b32 v11, 7, v0")
e("v_lshl_add_u32 v3, v11, 4, v3")
e("v_add_u32 v3, s52, v3")
e("s_add_u32 s32, s8, s47")
e("s_addc_u32 s33, s9, 0")
e("s_mov_b32 s34, 0x10000")
e("s_mov_b32 s35, 0x20000")
if TLBW:
    e("s_mov_b64 exec, 1")
    e("buffer_load_dword v50, v5, s[32:35], 0 offen")
    e("s_mov_b64 exec, -1")
e("v_lshlrev_b32 v10, 6, v10")
e("v_and_b32 v12, 1, v0")
e("v_cmp_eq_u32 vcc, 1, v12")
e("v_mov_b32 v13, 0xffff")
e("v_mov_b32 v12, 0xffff0000")
e("v_cndmask_b32 v13, v13, v12, vcc")
e("v_bfe_u32 v12, v0, 1, 2")
for j in range(4):
    e(f"v_cmp_eq_u32 vcc, {j}, v12")
    nop(2)
    e(f"v_cndmask_b32 v{6+j}, 0, v13, vcc")
e("s_and_b32 s59, s29, 15")
e("v_and_b32 v12, 1, v1")
e("v_cvt_f32_u32 v2, v12")
e("v_lshl_add_u32 v12, v12, 3, v11")
e("v_xor_b32 v12, s59, v12")
e("v_lshrrev_b32 v4, 1, v1")
e("v_lshlrev_b32 v4, 15, v4")
e("v_lshl_add_u32 v4, v12, 4, v4")
e("v_lshlrev_b32 v1, 4, v1")
e("s_lshl_b32 s58, s28, 16")
e("s_lshl_b32 s59, s50, 13")
e("s_add_u32 s58, s58, s59")
e("s_lshl_b32 s59, s29, 8")
e("s_add_u32 s58, s58, s59")
e(f"s_add_u32 s58, s58, {OBASE}")
e(f"s_add_u32 s59, s58, {ALT}")
e("s_lshl_b32 s57, s50, 2")
e(f"s_add_u32 s57, s57, {L_KCR}")
e("v_mov_b32 v11, s57")
e("v_mov_b32 v12, 1")
e("s_mov_b32 s57, 0")
e("s_mov_b32 s86, 0")
e("s_mov_b32 s60, 0x00ff00ff")
e("s_mov_b32 s61, 0x00ff00ff")
if PREW:
    for r in range(4): e(f"v_mov_b32 v{16+r}, 0")
    e("s_mov_b64 exec, s[60:61]")
    e("buffer_store_dwordx4 v[16:19], v4, s[36:39], s59 offen")
    e("s_mov_b64 exec, -1")
stamp(1)
for i in range(16):
    if i: e("s_add_u32 s49, s49, 4096")
    e("s_and_b32 s54, s49, 0xffff")
    if i < NCAP: credit_wait(i+1, 11, 14, 57)
    elif UNTH:
        e("s_cmp_lg_u32 s86, 0")
        e(f"s_cbranch_scc1 L_un{i}")
        e(f"ds_read_b32 v14, v5 offset:{L_QF}")
        e(f"s_waitcnt vmcnt({NCAP-1}) lgkmcnt(0)")
        e("v_readfirstlane_b32 s86, v14")
        lab(f"L_un{i}")
    else: e(f"s_waitcnt vmcnt({NCAP-1})")
    e(f"buffer_load_dwordx4 v[{DV+4*i}:{DV+4*i+3}], v3, s[32:35], s54 offen {KVPOL}")
    if i == VSIG: e(f"ds_write_b32 v11, v12 offset:{(L_VI-L_KCR) & 0xffff}") if L_VI >= L_KCR else (e(f"v_subrev_u32 v11, {L_KCR-L_VI}, v11"), e("ds_write_b32 v11, v12"))
stamp(2)
if SO:
    e("s_waitcnt vmcnt(0)"); stamp(3); stamp(4); stamp_flush(16, 5, 8, "so"); e("s_endpgm")
e(f"s_mov_b32 s45, {SPIN*8}")
lab("L_vwait")
e(f"ds_read_b128 v[12:15], v5 offset:{L_KF}")
e("s_sub_u32 s45, s45, 1")
e("s_cbranch_scc1 L_vgo")
e("s_waitcnt lgkmcnt(0)")
e("v_and_b32 v12, v12, v13")
e("v_and_b32 v14, v14, v15")
e("v_and_b32 v12, v12, v14")
e("v_cmp_eq_u32 vcc, 0, v12")
e("s_cbranch_vccnz L_vwait")
lab("L_vgo")
lds_wait("vv", 12, 5, L_VD, 46)
SC = 16
for h in range(2):
    for i in range(4): e(f"ds_read_b128 v[{SC+16*h+4*i}:{SC+16*h+4*i+3}], v10 offset:{L_SC+512*h+16*i}")
e(f"ds_read_b128 v[48:51], v1 offset:{L_XS}")
e(f"ds_read_b32 v15, v5 offset:{L_T}")
e("s_waitcnt lgkmcnt(0)")
e("v_add_f32 v49, v49, v50")
e("v_add_f32 v49, v49, v51")
e("v_fma_f32 v14, v49, v2, v48")
stamp(3)
for t in range(16):
    tau = (t & 1)*8 + (t >> 1)
    for h in range(2):
        for k in range(4): e(f"v_and_b32 v{48+4*h+k}, v{SC+16*h+tau}, v{6+k}")
    nop(1)
    e(f"s_waitcnt vmcnt({15-t})")
    for h in range(2):
        src = "0" if t == 0 else f"v[{56+4*h}:{59+4*h}]"
        e(f"v_mfma_f32_16x16x32_bf16 v[{56+4*h}:{59+4*h}], v[{48+4*h}:{51+4*h}], v[{DV+4*t}:{DV+4*t+3}], {src}")
nop(8)
for r in range(4): e(f"v_permlane32_swap_b32 v{56+r}, v{60+r}")
for r in range(4): e(f"v_add_f32_dpp v{56+r}, v{60+r}, v{56+r} row_ror:8 {DPP}")
e("s_mov_b64 exec, s[60:61]")
e("v_cvt_pk_bf16_f32 v12, v56, v57")
e("v_cvt_pk_bf16_f32 v13, v58, v59")
e("buffer_store_dwordx4 v[12:15], v4, s[36:39], s58 offen")
stamp(4, 2)
e("s_cmp_eq_u32 s46, 1")
e("s_cbranch_scc1 L_Vnb")
e("buffer_store_dwordx4 v[12:15], v4, s[36:39], s58 offen sc1")
lab("L_Vnb")
e("v_mov_b32 v16, 1")
e("s_mov_b64 exec, 1")
e(f"ds_add_u32 v5, v16 offset:{L_VP}")
if STAMPS == 2:
    e("s_waitcnt vmcnt(0)"); stamp(5, 2)
    e("s_cmp_lg_u32 s3, 8"); e("s_cbranch_scc1 L_v8"); wstamp_flush([(0, 0)], "v0"); lab("L_v8"); wstamp_flush([(4, 4), (8, 5)], "v")
stamp_flush(16, 5, 8)
e("s_endpgm")

lab("L_W")
e("s_cmp_ge_u32 s29, 28")
e("s_cbranch_scc1 L_R")
e("s_lshr_b32 s47, s29, 2")
e("s_and_b32 s49, s29, 1")
e("s_bfe_u32 s46, s29, 0x10001")
e("s_lshl_b32 s85, s28, 1")
e("s_add_u32 s85, s85, s46")
e("s_lshl_b32 s51, s85, 2")
e("s_add_u32 s51, s51, s50")
e("s_lshr_b32 s55, s51, 1")
e("s_and_b32 s48, s51, 1")
e("s_mul_i32 s84, s50, 0x3000")
e(f"s_add_u32 s84, s84, {L_WW}")
e("s_mov_b64 s[32:33], s[12:13]"); e(f"s_mov_b32 s34, {4096*448*2}"); e("s_mov_b32 s35, 0x20000")
e("s_mov_b64 s[80:81], s[20:21]"); e(f"s_mov_b32 s82, {1792*448*2}"); e("s_mov_b32 s83, 0x20000")
e(f"s_mul_i32 s62, s51, {64*896}")
e(f"s_mul_i32 s63, s51, {32*896}")
e("s_lshl_b32 s57, s47, 7")
e("s_add_u32 s62, s62, s57")
e("s_add_u32 s63, s63, s57")
if TLBW:
    e("s_mov_b64 exec, 1")
    e("buffer_load_dword v50, v5, s[32:35], s62 offen")
    e("buffer_load_dword v51, v5, s[80:83], s63 offen")
    e("s_mov_b64 exec, -1")
e("v_lshrrev_b32 v6, 3, v0")
e("v_mul_u32_u24 v6, 896, v6")
e("v_and_b32 v40, 7, v0")
e("v_bfe_u32 v41, v0, 4, 1")
e("v_lshlrev_b32 v41, 1, v41")
e("v_xor_b32 v40, v40, v41")
e("v_xor_b32 v41, 4, v40")
e("v_lshl_add_u32 v40, v40, 4, v6")
e("v_lshl_add_u32 v41, v41, 4, v6")
e("v_lshlrev_b32 v10, 10, v1")
e("v_lshrrev_b32 v11, 2, v2")
e("v_lshl_add_u32 v10, v11, 7, v10")
e("v_and_b32 v11, 3, v0")
e("v_lshl_add_u32 v10, v11, 3, v10")
e("v_add_u32 v10, s84, v10")
e("v_bfe_u32 v11, v0, 3, 2")
for j in range(4):
    e(f"v_xor_b32 v12, {j}, v11")
    e(f"v_lshl_add_u32 v{6+j}, v12, 5, v10")
e("v_and_b32 v10, 1, v0")
e("v_lshlrev_b32 v10, 10, v10")
e("v_bfe_u32 v11, v0, 3, 1")
e("v_lshl_add_u32 v10, v11, 6, v10")
e("v_lshrrev_b32 v11, 1, v1")
e("v_lshl_add_u32 v10, v11, 8, v10")
e("v_and_b32 v11, 1, v1")
e("v_lshl_add_u32 v10, v11, 5, v10")
e("v_lshlrev_b32 v14, 4, v1")
e("v_bfe_u32 v11, v0, 2, 1")
e("v_lshl_add_u32 v10, v11, 4, v10")
e("v_lshl_add_u32 v14, v11, 3, v14")
e("s_lshl_b32 s53, s55, 11")
e("s_lshl_b32 s54, s48, 9")
e("s_add_u32 s53, s53, s54")
e("s_lshl_b32 s54, s49, 7")
e("s_add_u32 s53, s53, s54")
e(f"s_add_u32 s53, s53, {HBASE}")
e("s_mov_b64 s[40:41], s[18:19]"); e("s_mov_b32 s42, 3584"); e("s_mov_b32 s43, 0x20000")
e("s_lshl_b32 s54, s51, 6")
e("buffer_load_dwordx2 v[20:21], v14, s[40:43], s54 offen")
e("s_lshl_b32 s54, s51, 13")
e("s_lshl_b32 s58, s49, 12")
e("s_add_u32 s54, s54, s58")
e(f"s_add_u32 s61, s54, {OBASE}")
e("v_lshlrev_b32 v11, 4, v0")
e("v_lshrrev_b32 v13, 1, v1")
e(f"v_mul_u32_u24 v13, {7*8192}, v13")
e("v_and_b32 v12, 1, v1")
e("v_lshl_add_u32 v13, v12, 12, v13")
e("v_lshl_add_u32 v13, v2, 4, v13")
e("s_mul_i32 s56, s49, 14")
e("s_add_u32 s56, s56, s47")
e("s_lshl_b32 s56, s56, 13")
e("s_lshl_b32 s58, s85, 8")
e("s_add_u32 s56, s56, s58")
e(f"s_add_u32 s56, s56, {FBASE}")
e("s_lshl_b32 s58, s50, 9")
e("v_lshl_add_u32 v12, v0, 3, s58")
for k in range(1, 4): e(f"v_xor_b32 v{112+k}, {512*k}, v12")
e("s_lshl_b32 s58, s50, 12")
e(f"s_add_u32 s58, s58, {L_OG}")
e("v_xor_b32 v4, v1, v2")
e("v_lshlrev_b32 v14, 8, v2")
e("v_add_u32 v14, s58, v14")
for t in range(2):
    for ee in range(2):
        e(f"v_xor_b32 v42, {ee*8+4*t}, v4")
        e(f"v_lshl_add_u32 v{44+2*t+ee}, v42, 4, v14")
e("s_lshl_b32 s57, s50, 2")
e("v_mov_b32 v43, s57")
e("s_add_u32 m0, s84, 8192")
if SO: lds_wait("w", 14, 43, L_VI, 44, sleep=2)
else: lds_wait("w", 14, 5, L_QF, 44, sleep=2)
G = 16; BF = 64; ACC = 48
for j in range(4): e(f"v_mov_b32 v{ACC+4*j}, 0")
for i in range(4):
    if i: e(f"s_add_u32 s63, s63, {8*896-1024}")
    e(f"buffer_load_dwordx4 v{40+(i&1)}, s[80:83], s63 offen offset:{i*1024} {WPOL} lds")
e("buffer_load_dwordx4 v[16:19], v10, s[36:39], s53 offen sc1")
e("s_mov_b32 m0, s84")
lds_wait("c", 14, 43, L_VI, 52, sleep=1)
for i in range(8):
    if i == 4: e("s_add_u32 m0, s84, 4096")
    if i: e(f"s_add_u32 s62, s62, {8*896-1024 if i != 4 else 8*896+3072}")
    e(f"buffer_load_dwordx4 v{40+(i&1)}, s[32:35], s62 offen offset:{(i&3)*1024} {WPOL} lds")
if SO:
    e("s_waitcnt vmcnt(0)"); stamp(1); stamp(2); stamp(3); stamp_flush(24, 4, 12, "so"); e("s_endpgm")
e("s_cmp_eq_u32 s28, 7")
e("s_cbranch_scc1 L_skipm")
e("s_waitcnt vmcnt(8)")
e(f"s_mov_b32 s45, {SPIN}")
e("s_branch L_achk")
lab("L_apoll")
e("buffer_load_dwordx4 v[16:19], v10, s[36:39], s53 offen sc1")
e("s_sub_u32 s45, s45, 1")
e("s_waitcnt vmcnt(0)")
e("s_cbranch_scc1 L_ago")
lab("L_achk")
e("v_cmp_ne_u32 vcc, s44, v19")
e("s_cbranch_vccnz L_apoll")
lab("L_ago")
stamp(1)
for j in range(4):
    r = 96 + j*4
    e(f"ds_read_b64_tr_b16 v[{r}:{r+1}], v{6+j} offset:8192")
    e(f"ds_read_b64_tr_b16 v[{r+2}:{r+3}], v{6+j} offset:{8192+512}")
e("v_lshlrev_b32 v24, 16, v16"); e("v_and_b32 v25, 0xffff0000, v16")
e("v_lshlrev_b32 v26, 16, v17"); e("v_and_b32 v27, 0xffff0000, v17")
e("v_lshlrev_b32 v28, 16, v20"); e("v_and_b32 v29, 0xffff0000, v20")
e("v_lshlrev_b32 v30, 16, v21"); e("v_and_b32 v31, 0xffff0000, v21")
for r in range(4): e(f"v_add_f32_dpp v{24+r}, v{24+r}, v{24+r} quad_perm:[1,0,3,2] {DPP}")
for r in range(4): e(f"v_add_f32 v{24+r}, v{24+r}, v{28+r}")
for r in range(4): e(f"v_min_f32 v{28+r}, 0x41a00000, v{24+r}")
for r in range(4): e(f"v_mul_f32 v{28+r}, {fhex(math.log2(math.e))}, v{28+r}")
for r in range(4): e(f"v_exp_f32 v{28+r}, v{28+r}")
nop(1)
for r in range(4): e(f"v_add_f32 v{32+r}, 2.0, v{28+r}")
for r in range(4): e(f"v_mul_f32 v{28+r}, v{28+r}, v{32+r}")
for r in range(4): e(f"v_add_f32 v{32+r}, 2.0, v{28+r}")
for r in range(4): e(f"v_rcp_f32 v{32+r}, v{32+r}")
nop(1)
for r in range(4): e(f"v_mul_f32 v{28+r}, v{28+r}, v{32+r}")
for r in range(4): e(f"v_mul_f32 v{24+r}, v{24+r}, v{28+r}")
e("v_cvt_pk_bf16_f32 v32, v24, v25")
e("v_cvt_pk_bf16_f32 v33, v26, v27")
nop(2)
for bsel in range(2):
    for ee in range(2):
        for d in range(2):
            e(f"v_mov_b32_dpp v{16+2*ee+d}, v{32+d} row_newbcast:{8*bsel+4*ee} row_mask:0xf bank_mask:{0x3 << (2*bsel):#x}")
nop(1)
e("s_waitcnt lgkmcnt(0)")
for j in range(4):
    e(f"v_mfma_f32_16x16x32_bf16 v[{ACC+4*j}:{ACC+4*j+3}], v[16:19], v[{96+4*j}:{99+4*j}], 0")
lab("L_skipm")
stamp(2)
nop(8)
for j in range(4): e(f"v_mul_f32 v{36+j}, 0.5, v{ACC+4*j}")
e("s_mov_b32 m0, s58")
e("s_mov_b32 s54, s61")
def oissue():
    for j in range(4): e(f"buffer_load_dwordx4 v11, s[36:39], s54 offen offset:{j*1024} sc1 lds")
for t in range(2):
    e(f"s_waitcnt vmcnt({4 if t == 0 else 0})")
    if t == 1:
        stamp(3, 2)
        oissue()
    for j in range(4):
        r = BF + (j*2+t)*4
        e(f"ds_read_b64_tr_b16 v[{r}:{r+1}], v{6+j} offset:{t*4096}")
        e(f"ds_read_b64_tr_b16 v[{r+2}:{r+3}], v{6+j} offset:{t*4096+512}")
    e("s_waitcnt lgkmcnt(0)")
for j in range(4): e(f"v_mov_b32 v{6+j}, v{36+j}")
e("v_mov_b32 v42, 1")
e("v_mov_b32 v34, s44")
e("v_mov_b32 v35, s44")
stamp(4)
e(f"s_mov_b32 s45, {SPIN}")
e("s_branch L_ochk")
lab("L_opoll")
oissue()
lab("L_ochk")
e("s_waitcnt vmcnt(0)")
for k in range(4): e(f"ds_read_b128 v[{G+4*k}:{G+4*k+3}], v{44+k}")
e("s_sub_u32 s45, s45, 1")
e("s_cbranch_scc1 L_ogo")
e("s_waitcnt lgkmcnt(0)")
e(f"v_bitop3_b32 v{ACC}, v{G+3}, v{G+7}, s44 bitop3:0x7e")
e(f"v_bitop3_b32 v{ACC+1}, v{G+11}, v{G+15}, s44 bitop3:0x7e")
e(f"v_or_b32 v{ACC}, v{ACC}, v{ACC+1}")
e(f"v_cmp_ne_u32 vcc, 0, v{ACC}")
e("s_cbranch_vccnz L_opoll")
lab("L_ogo")
e("s_waitcnt lgkmcnt(0)")
stamp(5, 2)
e("s_mov_b64 exec, 1")
e(f"ds_add_rtn_u32 v43, v5, v42 offset:{L_OC}")
e("s_mov_b64 exec, -1")
e(f"v_mov_b32 v{G+2}, v{G+4}")
e(f"v_mov_b32 v{G+3}, v{G+5}")
e(f"v_max_f32_dpp v14, v{G+10}, v{G+10} quad_perm:[1,0,3,2] {DPP}")
e(f"v_mov_b32 v10, v{G+10}")
e(f"v_mov_b32 v{G+10}, v{G+12}")
e(f"v_mov_b32 v{G+11}, v{G+13}")
valu = [[f"v_max_f32_dpp v14, v14, v14 quad_perm:[2,3,0,1] {DPP}"],
        [f"v_max_f32_dpp v14, v14, v14 row_half_mirror {DPP}", "v_sub_f32 v10, v10, v14", "v_exp_f32 v10, v10"],
        [f"v_mul_f32 v14, v10, v{G+6}"],
        [f"v_add_f32_dpp v14, v14, v14 quad_perm:[1,0,3,2] {DPP}"],
        [f"v_add_f32_dpp v14, v14, v14 quad_perm:[2,3,0,1] {DPP}"],
        [f"v_add_f32_dpp v14, v14, v14 row_half_mirror {DPP}", "v_rcp_f32 v14, v14"],
        ["v_mul_f32 v10, v10, v14", "v_mov_b32 v14, v10"],
        ["v_mov_b32_dpp v14, v10 row_ror:12 row_mask:0x2 bank_mask:0xf",
         "v_mov_b32_dpp v14, v10 row_ror:8 row_mask:0x4 bank_mask:0xf",
         "v_mov_b32_dpp v14, v10 row_ror:4 row_mask:0x8 bank_mask:0xf"]]
k = 0
for t in range(2):
    for j in range(4):
        r = BF + (j*2+t)*4
        src = "0" if t == 0 else f"v[{ACC+4*j}:{ACC+4*j+3}]"
        e(f"v_mfma_f32_16x16x32_bf16 v[{ACC+4*j}:{ACC+4*j+3}], v[{G+8*t}:{G+8*t+3}], v[{r}:{r+3}], {src}")
        nop(1)
        for x in valu[k]: e(x)
        k += 1
e("s_waitcnt lgkmcnt(0)")
e("v_readfirstlane_b32 s46, v43")
def zreads():
    e(f"ds_read_b32 v43, v5 offset:{L_ZC}")
    for k in range(3): e(f"ds_read_b64 v[{24+2*k}:{25+2*k}], v{113+k} offset:{L_Z}")
zreads()
for r in range(4):
    for j in range(4): e(f"v_fmac_f32_dpp v{6+j}, v14, v{ACC+4*j+r} row_newbcast:{r} {DPP}")
e("s_cmp_eq_u32 s46, 3")
e("v_permlane16_swap_b32 v6, v7")
e("v_permlane16_swap_b32 v8, v9")
e("v_add_f32 v32, v6, v7")
e("v_add_f32 v33, v8, v9")
e("s_cbranch_scc1 L_coll")
e(f"ds_write_b64 v12, v[32:33] offset:{L_Z}")
e("s_mov_b64 exec, 1")
e(f"ds_add_u32 v5, v42 offset:{L_ZC}")
e("s_branch L_wfin")
lab("L_zre")
zreads()
lab("L_coll")
e("s_waitcnt lgkmcnt(0)")
e("v_cmp_gt_u32 vcc, 3, v43")
e("s_cbranch_vccnz L_zre")
e("v_add_f32 v26, v26, v28"); e("v_add_f32 v27, v27, v29")
e("v_add_f32 v32, v32, v24"); e("v_add_f32 v33, v33, v25")
e("v_add_f32 v32, v32, v26"); e("v_add_f32 v33, v33, v27")
e("buffer_store_dwordx4 v[32:35], v13, s[36:39], s56 offen sc1")
lab("L_wfin")
stamp(6, 2)
if STAMPS == 2:
    e("s_waitcnt vmcnt(0)"); stamp(7, 2)
    e(f"s_sub_u32 s66, {SPIN}, s45"); e("s_mul_i32 s66, s66, 100"); e("s_add_u32 s66, s66, s64"); e("s_mov_b32 s67, s65")
    wstamp_flush([(12, 3), (16, 5), (20, 6), (24, 7), (28, 1)], "w")
stamp_flush(24, 7, 12)
e("s_endpgm")
lab("L_R")
if SO: e("s_endpgm")
e("s_lshl_b32 s46, s28, 2")
e("s_add_u32 s46, s46, s29")
e("s_sub_u32 s46, s46, 28")
e("s_cmp_ge_u32 s46, 28")
e("s_cbranch_scc1 L_end")
e("s_lshr_b32 s47, s46, 2")
e("s_and_b32 s48, s46, 1")
e("s_bfe_u32 s49, s46, 0x10001")
e("s_mul_i32 s59, s50, 896")
e("s_lshl_b32 s58, s47, 7"); e("s_add_u32 s59, s59, s58")
e("s_lshl_b32 s58, s49, 5"); e("s_add_u32 s59, s59, s58")
e("s_lshl_b32 s58, s48, 4"); e("s_add_u32 s59, s59, s58")
e("v_and_b32 v14, 7, v0")
e("v_lshlrev_b32 v15, 1, v14")
e("v_lshrrev_b32 v11, 5, v0")
e("v_lshl_add_u32 v15, v11, 6, v15")
e("s_mov_b64 s[40:41], s[4:5]"); e("s_mov_b32 s42, 3584"); e("s_mov_b32 s43, 0x20000")
e("buffer_load_ushort v3, v15, s[40:43], s59 offen")
e("s_mov_b64 s[32:33], s[22:23]"); e("s_mov_b32 s34, 3584"); e("s_mov_b32 s35, 0x20000")
e("s_mul_i32 s52, s50, 7")
e("s_add_u32 s52, s52, s47")
e("s_lshl_b32 s52, s52, 1")
e("s_add_u32 s52, s52, s49")
e("s_lshl_b32 s52, s52, 12")
e("s_lshl_b32 s58, s48, 7")
e("s_add_u32 s52, s52, s58")
e(f"s_add_u32 s52, s52, {FBASE}")
e("v_lshrrev_b32 v12, 3, v0")
e("v_lshlrev_b32 v12, 8, v12")
e("v_lshl_add_u32 v12, v14, 4, v12")
MK = 80
R = 16
for i in range(2): e(f"s_mov_b64 s[{MK+2*i}:{MK+2*i+1}], -1")
for i in range(2): e(f"v_mov_b32 v{R+4*i+3}, 0")
lds_wait("rt", 7, 5, L_T, 44, sleep=2)
e("s_waitcnt vmcnt(0)")
e("v_lshlrev_b32 v8, 16, v3")
lds_wait("rv", 14, 5, L_VP, 56, need=4, sleep=2)
e(f"s_mov_b32 s45, {SPIN*4}")
lab("L_fpoll")
for i in range(2):
    e(f"s_mov_b64 exec, s[{MK+2*i}:{MK+2*i+1}]")
    e(f"s_cbranch_execz L_fs{i}")
    e(f"buffer_load_dwordx4 v[{R+4*i}:{R+4*i+3}], v12, s[36:39], s52 offen offset:{i*2048} sc1")
    lab(f"L_fs{i}")
e("s_mov_b64 exec, -1")
e("s_sub_u32 s45, s45, 1")
e(f"s_waitcnt vmcnt({FDEP})")
e("s_cbranch_scc1 L_fgo")
for i in range(2): e(f"v_cmp_ne_u32 s[{MK+2*i}:{MK+2*i+1}], s44, v{R+4*i+3}")
e(f"s_or_b64 s[56:57], s[{MK}:{MK+1}], s[{MK+2}:{MK+3}]")
e("s_cbranch_scc1 L_fpoll")
lab("L_fgo")
e("s_waitcnt vmcnt(0)")
e(f"v_add_f32 v{R}, v{R}, v{R+4}");  e(f"v_add_f32 v{R+1}, v{R+1}, v{R+5}")
nop(2)
e(f"v_permlane32_swap_b32 v{R}, v{R+1}")
e(f"v_add_f32 v{R}, v{R}, v{R+1}")
e(f"v_mov_b32 v{R+1}, v{R}"); nop(2)
e(f"v_permlane16_swap_b32 v{R}, v{R+1}")
e(f"v_add_f32 v{R}, v{R}, v{R+1}"); nop(2)
e(f"v_add_f32_dpp v{R}, v{R}, v{R} row_ror:8 {DPP}")
e(f"v_add_f32 v8, v8, v{R}")
e("v_cvt_pk_bf16_f32 v8, v8, v8")
e("s_mov_b32 exec_lo, 0xff")
e("s_mov_b32 exec_hi, 0xff")
e("buffer_store_short v8, v15, s[32:35], s59 offen")
stamp(7, 2)
if STAMPS == 2:
    e("v_mov_b32 v20, v5")
    e(f"s_sub_u32 s66, {SPIN*4}, s45"); e("s_mul_i32 s66, s66, 100"); e("s_add_u32 s66, s66, s64"); e("s_mov_b32 s67, s65")
    wstamp_flush([(20, 7), (28, 1)], "r")
    e("v_mov_b32 v5, 0")
if PADTO:
    e("s_memrealtime s[66:67]"); e("s_waitcnt lgkmcnt(0)")
    e("s_sub_u32 s68, s66, s64"); e(f"s_mul_i32 s68, s68, {REPORT}"); e(f"s_add_u32 s68, s68, {PADTO}")
    lab("L_pad")
    e("s_memrealtime s[66:67]"); e("s_waitcnt lgkmcnt(0)")
    e("s_sub_u32 s69, s66, s64"); e("s_cmp_lt_u32 s69, s68"); e("s_cbranch_scc1 L_pad")
e("s_cmp_lg_u32 s59, 0")
e("s_cbranch_scc1 L_wend")
e("s_mov_b64 exec, 1")
e("buffer_store_dword v7, v5, s[36:39], 0 offen")
lab("L_wend")
if STAMPS == 1:
    e("s_mov_b64 s[64:65], s[78:79]")
stamp_flush(31, 1, 12, "r")
lab("L_end")
e("s_endpgm")

ref = open('parallel_sum__sliding_block_cached__dense_activation_mish__decode.s.ref').read().split('\n')
hdr = [l for l in ref if l.startswith(';') and '@launch' not in l]
print("\n".join(hdr))
print(f"; @launch grid=(256,1,1) block=(1024,1,1) lds={LDS_BYTES}")
print(f""".amdgcn_target "amdgcn-amd-amdhsa--gfx950"
.text
.globl {NAME}
.p2align {ALIGN}
.p2align 8
.type {NAME},@function
{NAME}:""")
print("\n".join(L))
print(f""".section .rodata,"a"
.p2align 6
.amdhsa_kernel {NAME}
  .amdhsa_next_free_vgpr 128
  .amdhsa_next_free_sgpr 100
  .amdhsa_accum_offset 128
  .amdhsa_group_segment_fixed_size 0
  .amdhsa_kernarg_size 96
  .amdhsa_user_sgpr_count 2
  .amdhsa_user_sgpr_kernarg_segment_ptr 1
  .amdhsa_system_sgpr_workgroup_id_x 1
.end_amdhsa_kernel""")
```

```python
import sys, math, struct
NAME = "parallel_sum__sliding_block_cached__dense_activation_mish__decode_kernel"
opts = dict(a.split('=') for a in sys.argv[1:] if '=' in a)
STAMPS = int(opts.get('stamps', 0))
ROT = int(opts.get('rot', 2))
PPOL = opts.get('ppol', 'nt').replace('_', ' ')
WPOL = opts.get('wpol', '').replace('_', ' ')
KVPOL = opts.get('kvpol', 'nt').replace('_', ' ')
SPIN = int(opts.get('spin', 40000))
NCAP = int(opts.get('ncap', 6))
WPRE = int(opts.get('wpre', 0))
WPOS = int(opts.get('wpos', 10))
DUAL = int(opts.get('dual', 1))
PREW = int(opts.get('prew', 1))
SO = int(opts.get('so', 0))
UNTH = int(opts.get('unth', 1))
TLBW = int(opts.get('tlbw', 1))
ALIGN = int(opts.get('align', 12))
PADTO = int(opts.get('padto', 0))
REPORT = int(opts.get('report', 0))
PADWG = int(opts.get('padwg', -1))
def fhex(x): return "%#x" % struct.unpack('<I', struct.pack('<f', x))[0]
L = []
def e(s): L.append("    " + s)
def lab(s): L.append(s + ":")
def nop(n):
    if n > 0: e(f"s_nop {n-1}")
DPP = "row_mask:0xf bank_mask:0xf"
QBASE, HBASE, FBASE, OBASE, ALT, WSN = 0x1000, 0x21000, 0x40000, 0x180000, 0, 0x200000
VSIG = int(opts.get('vsig', 15))
L_T, L_QF, L_EF, L_XF, L_KF, L_VI, L_KCR, L_PL, L_ST, L_XS, L_MB = 0, 4, 8, 12, 16, 32, 48, 64, 80, 128, 192
L_OC, L_VP, L_ZC = 112, 116, 124
L_Z = 0x1400
LATEB = int(opts.get('lateb', 1))
FDEP = int(opts.get('fdep', 0))
L_VD = 120
XBASE = 0x30000
BTO = int(opts.get('bto', 48))
L_SC, L_ONES, L_QS, L_X, L_PW, L_WW, L_OG = 0x100, 0x500, 0x900, 0x1400, 0x2400, 0x9400, 0x15400
LDS_BYTES = 0x19400
def stamp(slot, lvl=1):
    if STAMPS == 1 or (STAMPS == 2 and lvl == 2):
        e(f"s_memrealtime s[{64+2*slot}:{65+2*slot}]")
        e("s_waitcnt lgkmcnt(0)")
def stamp_flush(base, n, cond_wave, sfx=""):
    if STAMPS != 1: return
    lbl = f"L_sf{base}{sfx}"
    e(f"s_cmp_lg_u32 s3, {cond_wave}")
    e(f"s_cbranch_scc1 {lbl}")
    e("s_lshl_b32 s60, s2, 8")
    e(f"s_add_u32 s60, s60, {0x8000000 + base*8}")
    e("s_add_u32 s62, s26, s60")
    e("s_addc_u32 s63, s27, 0")
    e("s_mov_b64 exec, 1")
    e("v_mov_b32 v2, 0")
    for i in range(n):
        e(f"v_mov_b32 v4, s{64+2*i}")
        e(f"v_mov_b32 v5, s{65+2*i}")
        e(f"global_store_dwordx2 v2, v[4:5], s[62:63] offset:{8*i}")
        nop(1)
    lab(lbl)
def wstamp_flush(pairs, sfx):
    e("s_lshl_b32 s60, s2, 8")
    e("s_and_b32 s61, s3, 3"); e("s_lshl_b32 s61, s61, 3"); e("s_add_u32 s60, s60, s61")
    e(f"s_add_u32 s60, s60, {0x8000000}")
    e("s_add_u32 s62, s26, s60")
    e("s_addc_u32 s63, s27, 0")
    e("s_mov_b64 exec, 1")
    e("v_mov_b32 v2, 0")
    for base, i in pairs:
        e(f"v_mov_b32 v4, s{64+2*i}")
        e(f"v_mov_b32 v5, s{65+2*i}")
        e(f"global_store_dwordx2 v2, v[4:5], s[62:63] offset:{8*base}")
        nop(1)
def ws_srd():
    e("s_mov_b64 s[36:37], s[26:27]"); e(f"s_mov_b32 s38, {WSN}"); e("s_mov_b32 s39, 0x20000")
def lds_wait(tag, vt, vz, off, sdst, need=1, sleep=0, bound=None):
    e(f"s_mov_b32 s45, {bound if bound else SPIN*8}")
    lab(f"L_lw{tag}")
    if sleep: e(f"s_sleep {sleep}")
    e(f"ds_read_b32 v{vt}, v{vz} offset:{off}")
    e("s_sub_u32 s45, s45, 1")
    e("s_cbranch_scc1 L_lwd" + tag)
    e("s_waitcnt lgkmcnt(0)")
    e(f"v_readfirstlane_b32 s{sdst}, v{vt}")
    e(f"s_cmp_lt_u32 s{sdst}, {need}")
    e(f"s_cbranch_scc1 L_lw{tag}")
    lab(f"L_lwd{tag}")
cw_n = [0]
def credit_wait(need, vaddr, vt, sc):
    cw_n[0] += 1; n = cw_n[0]
    lab(f"L_cw{n}")
    e(f"s_cmp_ge_u32 s{sc}, {need}")
    e(f"s_cbranch_scc1 L_cwd{n}")
    if need == 1: e("s_sleep 1")
    e(f"ds_read_b32 v{vt}, v{vaddr}")
    e("s_waitcnt lgkmcnt(0)")
    e(f"v_readfirstlane_b32 s{sc}, v{vt}")
    e(f"s_branch L_cw{n}")
    lab(f"L_cwd{n}")
def kv_base():
    e("s_lshl_b32 s46, s30, 3")
    e("s_add_u32 s46, s46, s28")
    e("s_lshl_b32 s47, s46, 21")
    e("s_lshl_b32 s48, s31, 16")
    e("s_add_u32 s47, s47, s48")
    e("s_add_u32 s47, s47, 0x180000")
    if ROT == 0: e("s_mov_b32 s49, 0")
    elif ROT == 1: e("s_mul_i32 s49, s2, 37")
    elif ROT == 2: e("s_mov_b32 s49, s29")
    elif ROT == 3: e("s_mul_i32 s49, s2, 5"); e("s_add_u32 s49, s49, s29")
    e("s_lshl_b32 s49, s49, 12")
def unit_params():
    e("s_mul_i32 s52, s28, 7")
    e("s_add_u32 s52, s52, s29")
    e("s_sub_u32 s52, s52, 25")
    e("s_lshl_b32 s53, s28, 4")
    e("s_add_u32 s53, s53, s29")
    e("s_cmp_ge_u32 s29, 25")
    e("s_cselect_b32 s51, 2, 0")
    e("s_cmp_lt_u32 s29, 16")
    e("s_cselect_b32 s51, 1, s51")
    e("s_cselect_b32 s52, s53, s52")
    e("s_and_b32 s53, s52, 1")
    e("s_lshr_b32 s52, s52, 1")

if STAMPS or PADTO or PADWG >= 0: e("s_memrealtime s[64:65]")
e("s_cmp_ge_u32 s2, 256")
e("s_cbranch_scc1 L_end")
e("s_load_dwordx16 s[4:19], s[0:1], 0")
e("s_load_dwordx8 s[20:27], s[0:1], 64")
e("v_lshrrev_b32 v1, 6, v0")
e("v_and_b32 v0, 63, v0")
e("s_and_b32 s28, s2, 7")
e("v_readfirstlane_b32 s3, v1")
e("s_lshr_b32 s29, s2, 3")
e("s_lshr_b32 s30, s29, 3")
e("s_and_b32 s31, s29, 7")
e("v_lshrrev_b32 v1, 4, v0")
e("v_and_b32 v2, 15, v0")
e("s_and_b32 s50, s3, 3")
e("v_mov_b32 v5, 0")
e("s_cmp_lt_u32 s3, 8")
e("s_cbranch_scc1 L_lt8")
e("s_getpc_b64 s[40:41]")
lab("L_pc")
e("v_lshlrev_b32 v3, 2, v0")
e("ds_write_b32 v3, v5")
e("s_mul_i32 s46, s3, 1280")
e(f"s_sub_u32 s46, s46, {8*1280-1024}")
e("v_lshl_add_u32 v3, v0, 7, s46")
e("v_min_u32 v3, L_end-L_pc, v3")
e("s_mov_b64 exec, 0x3ff")
e("global_load_dword v60, v3, s[40:41]")
e("s_mov_b64 exec, -1")
e("s_waitcnt lgkmcnt(0)")
e("s_barrier")
e("s_branch L_VW")
lab("L_lt8")
e("s_cmp_ge_u32 s3, 4")
e("s_cbranch_scc1 L_K")
e("v_lshlrev_b32 v13, 4, v0")
e("s_mov_b32 s42, 3584"); e("s_mov_b32 s43, 0x20000")
e(f"s_mov_b32 m0, {L_X}")
e("s_waitcnt lgkmcnt(0)")
e("s_mov_b64 s[40:41], s[4:5]")
e("s_cmp_eq_u32 s3, 3")
e("s_cbranch_scc0 L_Pn3")
for i in range(4):
    e(f"buffer_load_dwordx4 v13, s[40:43], 0 offen offset:{i*1024} lds")
lab("L_Pn3")
e("s_load_dword s44, s[26:27], 0")
e("s_barrier")
e("s_branch L_P")
lab("L_K")
unit_params()
e("s_cmp_eq_u32 s51, 1")
e("s_cselect_b32 s54, 16, 7")
e("s_lshl_b32 s54, s54, 9")
e("v_lshrrev_b32 v3, 3, v0")
e("v_mul_u32_u24 v3, s54, v3")
e("v_and_b32 v4, 7, v0")
e("v_bfe_u32 v6, v0, 4, 1")
e("v_lshlrev_b32 v6, 1, v6")
e("v_xor_b32 v4, v4, v6")
e("s_and_b32 s55, s50, 1")
e("s_lshl_b32 s55, s55, 2")
e("v_xor_b32 v4, s55, v4")
e("v_lshl_add_u32 v4, v4, 4, v3")
e("s_mul_i32 s55, s53, 224")
e("s_lshl_b32 s56, s50, 3")
e("s_add_u32 s55, s55, s56")
e("s_mul_i32 s55, s55, s54")
e("s_lshl_b32 s56, s52, 7")
e("s_add_u32 s55, s55, s56")
e("s_lshl_b32 s56, s54, 5")
e("s_mul_i32 s42, s54, 448")
e("s_mov_b32 s43, 0x20000")
e("s_lshl_b32 s57, s50, 10")
e(f"s_add_u32 m0, s57, {L_PW}")
kv_base()
e("s_lshl_b32 s57, s50, 11")
e("s_add_u32 s49, s49, s57")
e("v_lshrrev_b32 v3, 2, v2")
e("v_lshlrev_b32 v3, 9, v3")
e("v_lshl_add_u32 v3, v1, 6, v3")
e("v_and_b32 v6, 3, v0")
e("v_lshl_add_u32 v3, v6, 4, v3")
e("s_mov_b32 s34, 0x10000")
e("s_mov_b32 s35, 0x20000")
e("s_lshl_b32 s58, s50, 2")
e("v_mov_b32 v9, s58")
e("v_mov_b32 v8, 1")
e("s_cmp_eq_u32 s51, 1")
e("s_waitcnt lgkmcnt(0)")
e("s_cselect_b64 s[40:41], s[10:11], s[16:17]")
e("s_add_u32 s32, s6, s47")
e("s_addc_u32 s33, s7, 0")
DV = 64
def kload(i):
    j, lo = i >> 1, i & 1
    if lo == 0:
        if j: e(f"s_add_u32 s49, s49, 8192")
        e("s_and_b32 s54, s49, 0xffff")
    return f"buffer_load_dwordx4 v[{DV+4*i}:{DV+4*i+3}], v3, s[32:35], s54 offen offset:{lo*256} {KVPOL}"
e("s_cmp_eq_u32 s51, 0")
e("s_cbranch_scc1 L_Knou")
for t in range(7):
    if t:
        e("s_add_u32 m0, m0, 4096")
        e("s_add_u32 s55, s55, s56")
    e(f"buffer_load_dwordx4 v4, s[40:43], s55 offen {PPOL} lds")
    if t == 6: e("s_barrier")
for i in range(NCAP):
    ld = kload(i)
    if 7 + i >= NCAP: e(f"s_waitcnt vmcnt({NCAP-1})")
    if i == NCAP - 1: e(f"ds_write_b32 v9, v8 offset:{L_PL}")
    e(ld)
e("s_branch L_Kc")
lab("L_Knou")
for i in range(NCAP):
    e(kload(i))
e("s_barrier")
lab("L_Kc")
stamp(1)
for i in range(NCAP, 16):
    ld = kload(i)
    e(f"s_waitcnt vmcnt({NCAP-1})")
    e(ld)
stamp(2)
for k in range(NCAP):
    e(f"v_mov_b32 v8, {k+1}")
    e(f"s_waitcnt vmcnt({NCAP-1-k})")
    e(f"ds_write_b32 v9, v8 offset:{L_KCR}")
if SO:
    stamp(3); stamp(4); stamp_flush(8, 5, 4, "so"); e("s_endpgm")
e("v_bfe_u32 v18, v0, 2, 1")
e("v_lshlrev_b32 v7, 9, v18")
e("v_lshl_add_u32 v7, v1, 6, v7")
e("s_lshr_b32 s56, s50, 1")
e("s_lshl_b32 s58, s56, 5")
e("s_and_b32 s57, s50, 1")
e("s_lshl_b32 s57, s57, 8")
e("s_add_u32 s57, s58, s57")
e("v_add_u32 v7, s57, v7")
e("v_mov_b32 v16, v9")
e("v_mov_b32 v17, 1")
e("v_lshlrev_b32 v18, 5, v18")
e("s_lshl_b32 s57, s50, 3")
e("v_add_u32 v19, s57, v18")
e("v_add_u32 v6, v9, v18")
e(f"s_mov_b32 s59, {fhex(math.log2(math.e)/16)}")
lds_wait("k", 8, 5, L_QF, 44, sleep=1)
e(f"ds_read_b128 v[8:11], v3 offset:{L_QS}")
e(f"ds_read_b128 v[12:15], v3 offset:{L_QS+256}")
e("s_waitcnt lgkmcnt(0)")
stamp(3)
AC = 24
def extr(j):
    return [f"v_mov_b32_dpp v{56+j}, v{AC+4*j} quad_perm:[0,0,0,0] {DPP}"] + \
           [f"v_add_f32_dpp v{56+j}, v{AC+4*j+r}, v{56+j} quad_perm:[{r},{r},{r},{r}] {DPP}" for r in (1, 2, 3)]
chains = {j: extr(j) + [f"v_add_f32_dpp v{56+j}, v{56+j}, v{56+j} row_ror:8 {DPP}"] for j in range(8)}
ready = {j: 10**9 for j in range(8)}
pos = [0]
def em(x): e(x); pos[0] += 1
def fill(n, force=False):
    for _ in range(n):
        cand = [j for j in range(8) if chains[j] and ready[j] <= pos[0]]
        if not cand:
            if force: em("s_nop 0")
            continue
        j = cand[0]; em(chains[j].pop(0)); ready[j] = pos[0] + 2
for j in range(8):
    em(f"v_mfma_f32_16x16x32_bf16 v[{AC+4*j}:{AC+4*j+3}], v[{DV+8*j}:{DV+8*j+3}], v[8:11], 0")
    fill(2, True)
    em(f"v_mfma_f32_16x16x32_bf16 v[{AC+4*j}:{AC+4*j+3}], v[{DV+8*j+4}:{DV+8*j+7}], v[12:15], v[{AC+4*j}:{AC+4*j+3}]")
    ready[j] = pos[0] + 8
    fill(2, True)
while any(chains.values()): fill(1, True)
e("v_max3_f32 v12, v56, v57, v58")
e("v_max3_f32 v12, v12, v59, v60")
e("v_max3_f32 v12, v12, v61, v62")
e("v_max_f32 v12, v12, v63")
e("v_mov_b32 v14, v12"); nop(2)
e("v_permlane32_swap_b32 v12, v14")
e("v_max_f32 v12, v12, v14")
e("v_mov_b32 v14, v12"); nop(2)
e("v_permlane16_swap_b32 v12, v14")
e("v_max_f32 v12, v12, v14")
e("v_mov_b32 v13, 1")
e(f"ds_write_b64 v19, v[12:13] offset:{L_MB}")
e(f"s_mov_b32 s45, {SPIN*8}")
lab("L_kx")
e(f"ds_read_b128 v[20:23], v18 offset:{L_MB}")
e(f"ds_read_b128 v[24:27], v18 offset:{L_MB+16}")
e("s_sub_u32 s45, s45, 1")
e("s_cbranch_scc1 L_kxd")
e("s_waitcnt lgkmcnt(0)")
e("v_and_b32 v14, v21, v23")
e("v_and_b32 v15, v25, v27")
e("v_and_b32 v14, v14, v15")
e("v_cmp_eq_u32 vcc, 0, v14")
e("s_cbranch_vccnz L_kx")
lab("L_kxd")
e("v_max3_f32 v12, v20, v22, v24")
e("v_max_f32 v12, v12, v26")
e("v_mul_f32 v12, s59, v12")
for i in range(8): e(f"v_fma_f32 v{56+i}, v{56+i}, s59, -v12")
for i in range(8): e(f"v_exp_f32 v{56+i}, v{56+i}")
nop(1)
e("v_add_f32 v13, v56, v57")
for i in range(2, 8): e(f"v_add_f32 v13, v13, v{56+i}")
for i in range(8): e(f"v_cvt_pk_bf16_f32 v{56+i}, v{56+i}, v{56+i}")
e("v_mov_b32 v15, v13"); nop(2)
e("v_permlane32_swap_b32 v13, v15")
e("v_add_f32 v13, v13, v15")
e("v_mov_b32 v15, v13"); nop(2)
e("v_permlane16_swap_b32 v13, v15")
e("v_add_f32 v13, v13, v15")
e("s_mov_b32 exec_lo, 0x00110011")
e("s_mov_b32 exec_hi, 0x00110011")
e(f"ds_write_b128 v7, v[56:59] offset:{L_SC}")
e(f"ds_write_b128 v7, v[60:63] offset:{L_SC+16}")
e(f"ds_write_b32 v6, v12 offset:{L_XS}")
e(f"ds_write_b32 v6, v13 offset:{L_XS+16}")
e("s_mov_b64 exec, 1")
e("s_waitcnt lgkmcnt(0)")
e(f"ds_write_b32 v16, v17 offset:{L_KF}")
stamp(4)
stamp_flush(8, 5, 4)
e("s_endpgm")

lab("L_P")
if SO:
    if SO == 2:
        e("v_mov_b32 v24, 1"); e(f"ds_write_b32 v5, v24 offset:{L_QF}")
    stamp_flush(0, 1, 0, "so"); e("s_endpgm")
unit_params()
ws_srd()
e("s_waitcnt lgkmcnt(0)")
e("s_cmp_eq_u32 s3, 1")
e("s_cbranch_scc0 L_Pm1")
e("s_mul_i32 s44, s44, 0x9E3779B5")
e("s_add_u32 s44, s44, 0x7F4A7C15")
e("s_cmp_eq_u32 s44, 0")
e("s_cselect_b32 s44, 0x7F4A7C15, s44")
e("v_mov_b32 v24, s44")
e(f"ds_write_b32 v5, v24 offset:{L_T}")
e("s_getreg_b32 s46, hwreg(HW_REG_XCC_ID)")
e("s_and_b32 s46, s46, 15")
e("s_lshl_b32 s47, s28, 12")
e("s_lshl_b32 s48, s29, 7")
e("s_add_u32 s48, s48, s47")
e(f"s_add_u32 s48, s48, {XBASE}")
e("v_mov_b32 v8, s46"); e("v_mov_b32 v9, s44"); e("v_mov_b32 v10, s46"); e("v_mov_b32 v11, s44")
e("s_mov_b64 exec, 0xff")
e("buffer_store_dwordx4 v[8:11], v13, s[36:39], s48 offen sc1")
e("s_mov_b64 exec, -1")
lab("L_Pm1")
e("s_cmp_eq_u32 s51, 0")
e("s_cbranch_scc1 L_Pdone")
e("s_cmp_eq_u32 s3, 3")
e("s_cbranch_scc0 L_Pm3")
e("v_mov_b32 v16, 0x3f803f80"); e("v_mov_b32 v17, v16"); e("v_mov_b32 v18, v16"); e("v_mov_b32 v19, v16")
e(f"ds_write_b128 v13, v[16:19] offset:{L_ONES}")
e("v_and_b32 v15, 3, v0")
e("v_mul_u32_u24 v12, 896, v15")
e("v_lshrrev_b32 v14, 2, v0")
e("v_lshl_add_u32 v12, v14, 6, v12")
e("v_cmp_gt_u32 vcc, 14, v14")
e("v_mov_b32 v14, 3584")
e("v_lshlrev_b32 v15, 3, v15")
e("v_cndmask_b32 v12, v14, v12, vcc")
e("v_mov_b32 v36, 0"); e("v_mov_b32 v37, 0")
e("s_waitcnt vmcnt(0)")
for i in range(4): e(f"ds_read_b128 v[{20+4*i}:{23+4*i}], v12 offset:{L_X+16*i}")
e("s_waitcnt lgkmcnt(0)")
for i in range(16):
    e(f"v_dot2c_f32_bf16 v36, v{20+i}, v16")
    e(f"v_dot2c_f32_bf16 v37, v{20+i}, v{20+i}")
nop(4)
for sh in (4, 8):
    e(f"v_add_f32_dpp v36, v36, v36 row_ror:{sh} {DPP}")
    e(f"v_add_f32_dpp v37, v37, v37 row_ror:{sh} {DPP}")
    nop(2)
for sw in ("16", "32"):
    e("v_mov_b32 v38, v36"); e("v_mov_b32 v39, v37"); nop(2)
    e(f"v_permlane{sw}_swap_b32 v36, v38")
    e(f"v_permlane{sw}_swap_b32 v37, v39")
    e("v_add_f32 v36, v36, v38"); e("v_add_f32 v37, v37, v39")
e(f"v_mul_f32 v36, {fhex(1.0/448)}, v36")
e(f"v_mul_f32 v37, {fhex(1.0/448)}, v37")
e("v_fma_f32 v37, -v36, v36, v37")
e("v_max_f32 v37, 0, v37")
e(f"v_add_f32 v37, {fhex(1e-5)}, v37")
e("v_rsq_f32 v37, v37")
e("v_sub_f32 v36, 0, v36")
e("v_mov_b32 v40, 1")
e(f"ds_write_b64 v15, v[36:37] offset:{L_ST}")
e("s_waitcnt lgkmcnt(0)")
e(f"ds_write_b32 v5, v40 offset:{L_XF}")
lab("L_Pm3")
stamp(1)
e("v_lshlrev_b32 v10, 10, v1")
e("v_lshrrev_b32 v11, 2, v2")
e("v_lshl_add_u32 v10, v11, 7, v10")
e("v_and_b32 v11, 3, v0")
e("v_lshl_add_u32 v10, v11, 3, v10")
e("v_lshlrev_b32 v12, 3, v11")
e("v_bfe_u32 v11, v0, 3, 2")
e("v_xor_b32 v11, s3, v11")
e("v_lshl_add_u32 v6, v11, 5, v10")
e("v_mul_u32_u24 v14, 896, v2")
e("s_mul_i32 s54, s53, 448")
e(f"s_add_u32 s54, s54, {L_X}")
e("v_add_u32 v14, s54, v14")
e("v_cmp_gt_u32 vcc, 4, v2")
e(f"v_mov_b32 v15, {L_ONES}"); nop(1)
e("v_cndmask_b32 v14, v15, v14, vcc")
e("v_lshl_add_u32 v14, v1, 4, v14")
e("v_and_b32 v10, 3, v0")
e("v_lshlrev_b32 v10, 6, v10")
e("v_and_b32 v11, 12, v0")
e("v_add_u32 v10, v10, v11")
e("s_and_b32 s54, s52, 7")
e("s_lshl_b32 s54, s54, 10")
e("s_lshl_b32 s55, s53, 13")
e("s_add_u32 s54, s54, s55")
e("s_lshl_b32 s55, s28, 14")
e("s_add_u32 s54, s54, s55")
e(f"s_add_u32 s54, s54, {QBASE}")
e("s_lshl_b32 s55, s52, 11")
e("s_lshl_b32 s56, s53, 10")
e("s_add_u32 s55, s55, s56")
e(f"s_add_u32 s55, s55, {HBASE}")
e("s_cmp_eq_u32 s51, 1")
e("s_cselect_b32 s54, s54, s55")
e("s_lshl_b32 s55, s3, 8")
e("s_add_u32 s54, s54, s55")
e(f"s_add_u32 s55, s54, {ALT}")
if PREW:
    for r in range(4): e(f"v_mov_b32 v{28+r}, 0")
    e("s_cmp_eq_u32 s51, 1")
    e("s_cbranch_scc0 L_npw")
    e("s_mov_b64 exec, 0xffff")
    e("buffer_store_dwordx4 v[28:31], v13, s[36:39], s55 offen")
    e("s_mov_b64 exec, -1")
    lab("L_npw")
lds_wait("p", 27, 5, L_T, 44)
lds_wait("x", 26, 5, L_XF, 46)
XF = 96
for t in range(7): e(f"ds_read_b128 v[{XF+4*t}:{XF+4*t+3}], v14 offset:{64*t}")
e(f"ds_read_b64 v[36:37], v12 offset:{L_ST}")
e("v_mov_b32 v26, v27")
e(f"s_mov_b32 s45, {SPIN*8}")
lab("L_pl")
e(f"ds_read_b128 v[16:19], v5 offset:{L_PL}")
e("s_sub_u32 s45, s45, 1")
e("s_cbranch_scc1 L_pld")
e("s_waitcnt lgkmcnt(0)")
e("v_and_b32 v16, v16, v17")
e("v_and_b32 v18, v18, v19")
e("v_and_b32 v16, v16, v18")
e("v_cmp_eq_u32 vcc, 0, v16")
e("s_cbranch_vccnz L_pl")
lab("L_pld")
stamp(2)
for t in range(7):
    r = 64 + 4*t
    e(f"ds_read_b64_tr_b16 v[{r}:{r+1}], v6 offset:{L_PW + t*4096}")
    e(f"ds_read_b64_tr_b16 v[{r+2}:{r+3}], v6 offset:{L_PW + t*4096 + 512}")
for t in range(7):
    r = 64 + 4*t
    e(f"s_waitcnt lgkmcnt({12-2*t})")
    src = "0" if t == 0 else "v[16:19]"
    e(f"v_mfma_f32_16x16x32_bf16 v[16:19], v[{r}:{r+3}], v[{XF+4*t}:{XF+4*t+3}], {src}")
nop(8)
for r in range(4): e(f"v_mov_b32 v{20+r}, v{16+r}")
for r in range(4): e(f"v_fmac_f32_dpp v{20+r}, v{16+r}, v36 row_shl:4 {DPP}")
for r in range(4): e(f"v_mul_f32 v{20+r}, v{20+r}, v37")
e("v_cvt_pk_bf16_f32 v20, v20, v21")
e("v_cvt_pk_bf16_f32 v21, v22, v23")
e("ds_bpermute_b32 v24, v10, v20")
e("ds_bpermute_b32 v25, v10, v21")
e("s_waitcnt lgkmcnt(0)")
e("s_mov_b64 exec, 0xffff")
e("s_cmp_eq_u32 s51, 1")
e("s_cbranch_scc0 L_Pb")
e("buffer_store_dwordx4 v[24:27], v13, s[36:39], s54 offen")
for r in range(4): e(f"v_mov_b32 v{32+r}, v{24+r}")
e("s_mov_b32 s59, s54")
e("s_branch L_Pnb")
lab("L_Pb")
e("buffer_store_dwordx4 v[24:27], v13, s[36:39], s54 offen sc1")
lab("L_Pnb")
e("s_mov_b64 exec, -1")
stamp(3)
stamp_flush(0, 4, 0)
lab("L_Pdone")
e("v_mov_b32 v36, v13")
def g_bstore(sfx):
    e("s_cmp_eq_u32 s46, 2")
    e(f"s_cbranch_scc0 L_qnb{sfx}")
    e("s_cmp_eq_u32 s51, 1")
    e(f"s_cbranch_scc0 L_qnb{sfx}")
    e("s_mov_b64 exec, 0xffff")
    e("buffer_store_dwordx4 v[32:35], v36, s[36:39], s59 offen sc1")
    e("s_mov_b64 exec, -1")
    e("s_mov_b32 s51, 0")
    lab(f"L_qnb{sfx}")
e("s_cmp_eq_u32 s3, 1")
e("s_cbranch_scc1 L_G")
e("s_cmp_eq_u32 s3, 0")
e("s_cbranch_scc0 L_Pw")
e("s_mov_b64 exec, -1")
e("v_mov_b32 v5, 0")
e("s_getreg_b32 s48, hwreg(HW_REG_XCC_ID)")
e("s_and_b32 s48, s48, 15")
e("s_lshl_b32 s47, s28, 12")
e(f"s_add_u32 s47, s47, {XBASE}")
e("v_lshlrev_b32 v6, 7, v0")
lds_wait("xt", 9, 5, L_T, 44, sleep=1)
lds_wait("xq", 10, 5, L_QF, 49, sleep=2, bound=BTO)
e("s_mov_b32 exec_lo, -1"); e("s_mov_b32 exec_hi, 0")
e(f"s_mov_b32 s45, {SPIN}")
e("s_mov_b32 s49, 2")
lab("L_xpoll")
e("buffer_load_dwordx2 v[10:11], v6, s[36:39], s47 offen sc1")
e("s_sub_u32 s45, s45, 1")
e("s_waitcnt vmcnt(0) lgkmcnt(0)")
e("s_cbranch_scc1 L_xdone")
e("v_cmp_ne_u32 vcc, s44, v11")
e("s_cbranch_vccnz L_xpoll")
e("v_cmp_ne_u32 vcc, s48, v10")
e("s_cbranch_vccnz L_xdone")
e("s_mov_b32 s49, 1")
lab("L_xdone")
e("v_mov_b32 v8, s49")
e(f"ds_write_b32 v5, v8 offset:{L_VD}")
lab("L_Pw")
e("s_cmp_eq_u32 s51, 1")
e("s_cbranch_scc0 L_end")
lds_wait("pb", 28, 5, L_VD, 46, sleep=2)
g_bstore("c")
e("s_endpgm")
lab("L_G")
e("v_lshrrev_b32 v6, 2, v0")
e("v_lshlrev_b32 v6, 8, v6")
e("v_and_b32 v7, 3, v0")
e("v_lshl_add_u32 v6, v7, 4, v6")
e("v_lshlrev_b32 v7, 3, v0")
e("s_lshl_b32 s55, s28, 14")
e("s_lshl_b32 s56, s30, 6")
e("s_add_u32 s55, s55, s56")
e(f"s_add_u32 s55, s55, {QBASE}")
e("v_mov_b32 v24, s44")
stamp(1)
e(f"s_mov_b32 s45, {SPIN}")
lab("L_qpoll")
e(f"ds_read_b32 v25, v5 offset:{L_VD}")
e("s_waitcnt lgkmcnt(0)")
e("v_readfirstlane_b32 s46, v25")
g_bstore("a")
for i in range(4):
    if i: e(f"s_add_u32 s56, s55, {i*4096}")
    e(f"buffer_load_dwordx4 v[{8+4*i}:{11+4*i}], v6, s[36:39], s{56 if i else 55} offen sc1")
e("s_sub_u32 s45, s45, 1")
e("s_cbranch_scc1 L_qgo")
e("s_waitcnt vmcnt(0)")
e("v_bitop3_b32 v25, v11, v15, s44 bitop3:0x7e")
e("v_bitop3_b32 v26, v19, v23, s44 bitop3:0x7e")
e("v_or_b32 v25, v25, v26")
e("v_cmp_ne_u32 vcc, 0, v25")
e("s_cbranch_vccnz L_qpoll")
lab("L_qgo")
e("s_waitcnt vmcnt(0)")
for i in range(4): e(f"ds_write_b64 v7, v[{8+4*i}:{9+4*i}] offset:{L_QS+i*512}")
e("s_waitcnt lgkmcnt(0)")
e(f"ds_write_b32 v5, v24 offset:{L_QF}")
if STAMPS == 1: e("s_mov_b32 s47, s45")
stamp(2)
lds_wait("gv", 25, 5, L_VD, 46, sleep=2)
g_bstore("b")
if STAMPS == 1: e("s_mov_b32 s45, s47")
if STAMPS == 1:
    e(f"s_sub_u32 s70, {SPIN}, s45"); e("s_mul_i32 s70, s70, 100"); e("s_add_u32 s70, s70, s64"); e("s_mov_b32 s71, s65")
stamp_flush(4, 4, 1)
e("s_endpgm")

lab("L_VW")
ws_srd()
e("s_cmp_ge_u32 s3, 12")
e("s_cbranch_scc1 L_W")
kv_base()
e("s_lshl_b32 s52, s50, 7")
e("v_lshrrev_b32 v10, 3, v0")
e("v_lshlrev_b32 v3, 9, v10")
e("v_and_b32 v11, 7, v0")
e("v_lshl_add_u32 v3, v11, 4, v3")
e("v_add_u32 v3, s52, v3")
e("s_add_u32 s32, s8, s47")
e("s_addc_u32 s33, s9, 0")
e("s_mov_b32 s34, 0x10000")
e("s_mov_b32 s35, 0x20000")
if TLBW:
    e("s_mov_b64 exec, 1")
    e("buffer_load_dword v50, v5, s[32:35], 0 offen")
    e("s_mov_b64 exec, -1")
e("v_lshlrev_b32 v10, 6, v10")
e("v_and_b32 v12, 1, v0")
e("v_cmp_eq_u32 vcc, 1, v12")
e("v_mov_b32 v13, 0xffff")
e("v_mov_b32 v12, 0xffff0000")
e("v_cndmask_b32 v13, v13, v12, vcc")
e("v_bfe_u32 v12, v0, 1, 2")
for j in range(4):
    e(f"v_cmp_eq_u32 vcc, {j}, v12")
    nop(2)
    e(f"v_cndmask_b32 v{6+j}, 0, v13, vcc")
e("s_and_b32 s59, s29, 15")
e("v_and_b32 v12, 1, v1")
e("v_cvt_f32_u32 v2, v12")
e("v_lshl_add_u32 v12, v12, 3, v11")
e("v_xor_b32 v12, s59, v12")
e("v_lshrrev_b32 v4, 1, v1")
e("v_lshlrev_b32 v4, 15, v4")
e("v_lshl_add_u32 v4, v12, 4, v4")
e("v_lshlrev_b32 v1, 4, v1")
e("s_lshl_b32 s58, s28, 16")
e("s_lshl_b32 s59, s50, 13")
e("s_add_u32 s58, s58, s59")
e("s_lshl_b32 s59, s29, 8")
e("s_add_u32 s58, s58, s59")
e(f"s_add_u32 s58, s58, {OBASE}")
e(f"s_add_u32 s59, s58, {ALT}")
e("s_lshl_b32 s57, s50, 2")
e(f"s_add_u32 s57, s57, {L_KCR}")
e("v_mov_b32 v11, s57")
e("v_mov_b32 v12, 1")
e("s_mov_b32 s57, 0")
e("s_mov_b32 s86, 0")
e("s_mov_b32 s60, 0x00ff00ff")
e("s_mov_b32 s61, 0x00ff00ff")
if PREW:
    for r in range(4): e(f"v_mov_b32 v{16+r}, 0")
    e("s_mov_b64 exec, s[60:61]")
    e("buffer_store_dwordx4 v[16:19], v4, s[36:39], s59 offen")
    e("s_mov_b64 exec, -1")
stamp(1)
for i in range(16):
    if i: e("s_add_u32 s49, s49, 4096")
    e("s_and_b32 s54, s49, 0xffff")
    if i < NCAP: credit_wait(i+1, 11, 14, 57)
    elif UNTH:
        e("s_cmp_lg_u32 s86, 0")
        e(f"s_cbranch_scc1 L_un{i}")
        e(f"ds_read_b32 v14, v5 offset:{L_QF}")
        e(f"s_waitcnt vmcnt({NCAP-1}) lgkmcnt(0)")
        e("v_readfirstlane_b32 s86, v14")
        lab(f"L_un{i}")
    else: e(f"s_waitcnt vmcnt({NCAP-1})")
    e(f"buffer_load_dwordx4 v[{DV+4*i}:{DV+4*i+3}], v3, s[32:35], s54 offen {KVPOL}")
    if i == VSIG: e(f"ds_write_b32 v11, v12 offset:{(L_VI-L_KCR) & 0xffff}") if L_VI >= L_KCR else (e(f"v_subrev_u32 v11, {L_KCR-L_VI}, v11"), e("ds_write_b32 v11, v12"))
stamp(2)
if SO:
    e("s_waitcnt vmcnt(0)"); stamp(3); stamp(4); stamp_flush(16, 5, 8, "so"); e("s_endpgm")
e(f"s_mov_b32 s45, {SPIN*8}")
lab("L_vwait")
e(f"ds_read_b128 v[12:15], v5 offset:{L_KF}")
e("s_sub_u32 s45, s45, 1")
e("s_cbranch_scc1 L_vgo")
e("s_waitcnt lgkmcnt(0)")
e("v_and_b32 v12, v12, v13")
e("v_and_b32 v14, v14, v15")
e("v_and_b32 v12, v12, v14")
e("v_cmp_eq_u32 vcc, 0, v12")
e("s_cbranch_vccnz L_vwait")
lab("L_vgo")
lds_wait("vv", 12, 5, L_VD, 46)
SC = 16
for h in range(2):
    for i in range(4): e(f"ds_read_b128 v[{SC+16*h+4*i}:{SC+16*h+4*i+3}], v10 offset:{L_SC+512*h+16*i}")
e(f"ds_read_b128 v[48:51], v1 offset:{L_XS}")
e(f"ds_read_b32 v15, v5 offset:{L_T}")
e("s_waitcnt lgkmcnt(0)")
e("v_add_f32 v49, v49, v50")
e("v_add_f32 v49, v49, v51")
e("v_fma_f32 v14, v49, v2, v48")
stamp(3)
for t in range(16):
    tau = (t & 1)*8 + (t >> 1)
    for h in range(2):
        for k in range(4): e(f"v_and_b32 v{48+4*h+k}, v{SC+16*h+tau}, v{6+k}")
    nop(1)
    e(f"s_waitcnt vmcnt({15-t})")
    for h in range(2):
        src = "0" if t == 0 else f"v[{56+4*h}:{59+4*h}]"
        e(f"v_mfma_f32_16x16x32_bf16 v[{56+4*h}:{59+4*h}], v[{48+4*h}:{51+4*h}], v[{DV+4*t}:{DV+4*t+3}], {src}")
nop(8)
for r in range(4): e(f"v_permlane32_swap_b32 v{56+r}, v{60+r}")
for r in range(4): e(f"v_add_f32_dpp v{56+r}, v{60+r}, v{56+r} row_ror:8 {DPP}")
e("s_mov_b64 exec, s[60:61]")
e("v_cvt_pk_bf16_f32 v12, v56, v57")
e("v_cvt_pk_bf16_f32 v13, v58, v59")
e("buffer_store_dwordx4 v[12:15], v4, s[36:39], s58 offen")
stamp(4, 2)
e("s_cmp_eq_u32 s46, 1")
e("s_cbranch_scc1 L_Vnb")
e("buffer_store_dwordx4 v[12:15], v4, s[36:39], s58 offen sc1")
lab("L_Vnb")
e("v_mov_b32 v16, 1")
e("s_mov_b64 exec, 1")
e(f"ds_add_u32 v5, v16 offset:{L_VP}")
if PADWG >= 0:
    e(f"s_cmp_lg_u32 s2, {PADWG}")
    e("s_cbranch_scc1 L_npad")
    lab("L_padw")
    e("s_memrealtime s[66:67]"); e("s_waitcnt lgkmcnt(0)")
    e("s_sub_u32 s69, s66, s64"); e("s_cmp_lt_u32 s69, 4000"); e("s_cbranch_scc1 L_padw")
    lab("L_npad")
if STAMPS == 2:
    e("s_waitcnt vmcnt(0)"); stamp(5, 2)
    e("s_cmp_lg_u32 s3, 8"); e("s_cbranch_scc1 L_v8"); wstamp_flush([(0, 0)], "v0"); lab("L_v8"); wstamp_flush([(4, 4), (8, 5)], "v")
stamp_flush(16, 5, 8)
e("s_endpgm")

lab("L_W")
e("s_cmp_ge_u32 s29, 28")
e("s_cbranch_scc1 L_R")
e("s_lshr_b32 s47, s29, 2")
e("s_and_b32 s49, s29, 1")
e("s_bfe_u32 s46, s29, 0x10001")
e("s_lshl_b32 s85, s28, 1")
e("s_add_u32 s85, s85, s46")
e("s_lshl_b32 s51, s85, 2")
e("s_add_u32 s51, s51, s50")
e("s_lshr_b32 s55, s51, 1")
e("s_and_b32 s48, s51, 1")
e("s_mul_i32 s84, s50, 0x3000")
e(f"s_add_u32 s84, s84, {L_WW}")
e("s_mov_b64 s[32:33], s[12:13]"); e(f"s_mov_b32 s34, {4096*448*2}"); e("s_mov_b32 s35, 0x20000")
e("s_mov_b64 s[80:81], s[20:21]"); e(f"s_mov_b32 s82, {1792*448*2}"); e("s_mov_b32 s83, 0x20000")
e(f"s_mul_i32 s62, s51, {64*896}")
e(f"s_mul_i32 s63, s51, {32*896}")
e("s_lshl_b32 s57, s47, 7")
e("s_add_u32 s62, s62, s57")
e("s_add_u32 s63, s63, s57")
if TLBW:
    e("s_mov_b64 exec, 1")
    e("buffer_load_dword v50, v5, s[32:35], s62 offen")
    e("buffer_load_dword v51, v5, s[80:83], s63 offen")
    e("s_mov_b64 exec, -1")
e("v_lshrrev_b32 v6, 3, v0")
e("v_mul_u32_u24 v6, 896, v6")
e("v_and_b32 v40, 7, v0")
e("v_bfe_u32 v41, v0, 4, 1")
e("v_lshlrev_b32 v41, 1, v41")
e("v_xor_b32 v40, v40, v41")
e("v_xor_b32 v41, 4, v40")
e("v_lshl_add_u32 v40, v40, 4, v6")
e("v_lshl_add_u32 v41, v41, 4, v6")
e("v_lshlrev_b32 v10, 10, v1")
e("v_lshrrev_b32 v11, 2, v2")
e("v_lshl_add_u32 v10, v11, 7, v10")
e("v_and_b32 v11, 3, v0")
e("v_lshl_add_u32 v10, v11, 3, v10")
e("v_add_u32 v10, s84, v10")
e("v_bfe_u32 v11, v0, 3, 2")
for j in range(4):
    e(f"v_xor_b32 v12, {j}, v11")
    e(f"v_lshl_add_u32 v{6+j}, v12, 5, v10")
e("v_and_b32 v10, 1, v0")
e("v_lshlrev_b32 v10, 10, v10")
e("v_bfe_u32 v11, v0, 3, 1")
e("v_lshl_add_u32 v10, v11, 6, v10")
e("v_lshrrev_b32 v11, 1, v1")
e("v_lshl_add_u32 v10, v11, 8, v10")
e("v_and_b32 v11, 1, v1")
e("v_lshl_add_u32 v10, v11, 5, v10")
e("v_lshlrev_b32 v14, 4, v1")
e("v_bfe_u32 v11, v0, 2, 1")
e("v_lshl_add_u32 v10, v11, 4, v10")
e("v_lshl_add_u32 v14, v11, 3, v14")
e("s_lshl_b32 s53, s55, 11")
e("s_lshl_b32 s54, s48, 9")
e("s_add_u32 s53, s53, s54")
e("s_lshl_b32 s54, s49, 7")
e("s_add_u32 s53, s53, s54")
e(f"s_add_u32 s53, s53, {HBASE}")
e("s_mov_b64 s[40:41], s[18:19]"); e("s_mov_b32 s42, 3584"); e("s_mov_b32 s43, 0x20000")
e("s_lshl_b32 s54, s51, 6")
e("buffer_load_dwordx2 v[20:21], v14, s[40:43], s54 offen")
e("s_lshl_b32 s54, s51, 13")
e("s_lshl_b32 s58, s49, 12")
e("s_add_u32 s54, s54, s58")
e(f"s_add_u32 s61, s54, {OBASE}")
e("v_lshlrev_b32 v11, 4, v0")
e("v_lshrrev_b32 v13, 1, v1")
e(f"v_mul_u32_u24 v13, {7*8192}, v13")
e("v_and_b32 v12, 1, v1")
e("v_lshl_add_u32 v13, v12, 12, v13")
e("v_lshl_add_u32 v13, v2, 4, v13")
e("s_mul_i32 s56, s49, 14")
e("s_add_u32 s56, s56, s47")
e("s_lshl_b32 s56, s56, 13")
e("s_lshl_b32 s58, s85, 8")
e("s_add_u32 s56, s56, s58")
e(f"s_add_u32 s56, s56, {FBASE}")
e("s_lshl_b32 s58, s50, 9")
e("v_lshl_add_u32 v12, v0, 3, s58")
for k in range(1, 4): e(f"v_xor_b32 v{112+k}, {512*k}, v12")
e("s_lshl_b32 s58, s50, 12")
e(f"s_add_u32 s58, s58, {L_OG}")
e("v_xor_b32 v4, v1, v2")
e("v_lshlrev_b32 v14, 8, v2")
e("v_add_u32 v14, s58, v14")
for t in range(2):
    for ee in range(2):
        e(f"v_xor_b32 v42, {ee*8+4*t}, v4")
        e(f"v_lshl_add_u32 v{44+2*t+ee}, v42, 4, v14")
e("s_lshl_b32 s57, s50, 2")
e("v_mov_b32 v43, s57")
e("s_add_u32 m0, s84, 8192")
if SO: lds_wait("w", 14, 43, L_VI, 44, sleep=2)
else: lds_wait("w", 14, 5, L_QF, 44, sleep=2)
G = 16; BF = 64; ACC = 48
for j in range(4): e(f"v_mov_b32 v{ACC+4*j}, 0")
for i in range(4):
    if i: e(f"s_add_u32 s63, s63, {8*896-1024}")
    e(f"buffer_load_dwordx4 v{40+(i&1)}, s[80:83], s63 offen offset:{i*1024} {WPOL} lds")
e("buffer_load_dwordx4 v[16:19], v10, s[36:39], s53 offen sc1")
e("s_mov_b32 m0, s84")
lds_wait("c", 14, 43, L_VI, 52, sleep=1)
for i in range(8):
    if i == 4: e("s_add_u32 m0, s84, 4096")
    if i: e(f"s_add_u32 s62, s62, {8*896-1024 if i != 4 else 8*896+3072}")
    e(f"buffer_load_dwordx4 v{40+(i&1)}, s[32:35], s62 offen offset:{(i&3)*1024} {WPOL} lds")
if SO:
    e("s_waitcnt vmcnt(0)"); stamp(1); stamp(2); stamp(3); stamp_flush(24, 4, 12, "so"); e("s_endpgm")
e("s_cmp_eq_u32 s28, 7")
e("s_cbranch_scc1 L_skipm")
e("s_waitcnt vmcnt(8)")
e(f"s_mov_b32 s45, {SPIN}")
e("s_branch L_achk")
lab("L_apoll")
e("buffer_load_dwordx4 v[16:19], v10, s[36:39], s53 offen sc1")
e("s_sub_u32 s45, s45, 1")
e("s_waitcnt vmcnt(0)")
e("s_cbranch_scc1 L_ago")
lab("L_achk")
e("v_cmp_ne_u32 vcc, s44, v19")
e("s_cbranch_vccnz L_apoll")
lab("L_ago")
stamp(1)
for j in range(4):
    r = 96 + j*4
    e(f"ds_read_b64_tr_b16 v[{r}:{r+1}], v{6+j} offset:8192")
    e(f"ds_read_b64_tr_b16 v[{r+2}:{r+3}], v{6+j} offset:{8192+512}")
e("v_lshlrev_b32 v24, 16, v16"); e("v_and_b32 v25, 0xffff0000, v16")
e("v_lshlrev_b32 v26, 16, v17"); e("v_and_b32 v27, 0xffff0000, v17")
e("v_lshlrev_b32 v28, 16, v20"); e("v_and_b32 v29, 0xffff0000, v20")
e("v_lshlrev_b32 v30, 16, v21"); e("v_and_b32 v31, 0xffff0000, v21")
for r in range(4): e(f"v_add_f32_dpp v{24+r}, v{24+r}, v{24+r} quad_perm:[1,0,3,2] {DPP}")
for r in range(4): e(f"v_add_f32 v{24+r}, v{24+r}, v{28+r}")
for r in range(4): e(f"v_min_f32 v{28+r}, 0x41a00000, v{24+r}")
for r in range(4): e(f"v_mul_f32 v{28+r}, {fhex(math.log2(math.e))}, v{28+r}")
for r in range(4): e(f"v_exp_f32 v{28+r}, v{28+r}")
nop(1)
for r in range(4): e(f"v_add_f32 v{32+r}, 2.0, v{28+r}")
for r in range(4): e(f"v_mul_f32 v{28+r}, v{28+r}, v{32+r}")
for r in range(4): e(f"v_add_f32 v{32+r}, 2.0, v{28+r}")
for r in range(4): e(f"v_rcp_f32 v{32+r}, v{32+r}")
nop(1)
for r in range(4): e(f"v_mul_f32 v{28+r}, v{28+r}, v{32+r}")
for r in range(4): e(f"v_mul_f32 v{24+r}, v{24+r}, v{28+r}")
e("v_cvt_pk_bf16_f32 v32, v24, v25")
e("v_cvt_pk_bf16_f32 v33, v26, v27")
nop(2)
for bsel in range(2):
    for ee in range(2):
        for d in range(2):
            e(f"v_mov_b32_dpp v{16+2*ee+d}, v{32+d} row_newbcast:{8*bsel+4*ee} row_mask:0xf bank_mask:{0x3 << (2*bsel):#x}")
nop(1)
e("s_waitcnt lgkmcnt(0)")
for j in range(4):
    e(f"v_mfma_f32_16x16x32_bf16 v[{ACC+4*j}:{ACC+4*j+3}], v[16:19], v[{96+4*j}:{99+4*j}], 0")
lab("L_skipm")
stamp(2)
nop(8)
for j in range(4): e(f"v_mul_f32 v{36+j}, 0.5, v{ACC+4*j}")
e("s_mov_b32 m0, s58")
e("s_mov_b32 s54, s61")
def oissue():
    for j in range(4): e(f"buffer_load_dwordx4 v11, s[36:39], s54 offen offset:{j*1024} sc1 lds")
for t in range(2):
    e(f"s_waitcnt vmcnt({4 if t == 0 else 0})")
    if t == 1:
        stamp(3, 2)
        oissue()
    for j in range(4):
        r = BF + (j*2+t)*4
        e(f"ds_read_b64_tr_b16 v[{r}:{r+1}], v{6+j} offset:{t*4096}")
        e(f"ds_read_b64_tr_b16 v[{r+2}:{r+3}], v{6+j} offset:{t*4096+512}")
    e("s_waitcnt lgkmcnt(0)")
for j in range(4): e(f"v_mov_b32 v{6+j}, v{36+j}")
e("v_mov_b32 v42, 1")
e("v_mov_b32 v34, s44")
e("v_mov_b32 v35, s44")
stamp(4)
e(f"s_mov_b32 s45, {SPIN}")
e("s_branch L_ochk")
lab("L_opoll")
oissue()
lab("L_ochk")
e("s_waitcnt vmcnt(0)")
for k in range(4): e(f"ds_read_b128 v[{G+4*k}:{G+4*k+3}], v{44+k}")
e("s_sub_u32 s45, s45, 1")
e("s_cbranch_scc1 L_ogo")
e("s_waitcnt lgkmcnt(0)")
e(f"v_bitop3_b32 v{ACC}, v{G+3}, v{G+7}, s44 bitop3:0x7e")
e(f"v_bitop3_b32 v{ACC+1}, v{G+11}, v{G+15}, s44 bitop3:0x7e")
e(f"v_or_b32 v{ACC}, v{ACC}, v{ACC+1}")
e(f"v_cmp_ne_u32 vcc, 0, v{ACC}")
e("s_cbranch_vccnz L_opoll")
lab("L_ogo")
e("s_waitcnt lgkmcnt(0)")
stamp(5, 2)
e("s_mov_b64 exec, 1")
e(f"ds_add_rtn_u32 v43, v5, v42 offset:{L_OC}")
e("s_mov_b64 exec, -1")
e(f"v_mov_b32 v{G+2}, v{G+4}")
e(f"v_mov_b32 v{G+3}, v{G+5}")
e(f"v_max_f32_dpp v14, v{G+10}, v{G+10} quad_perm:[1,0,3,2] {DPP}")
e(f"v_mov_b32 v10, v{G+10}")
e(f"v_mov_b32 v{G+10}, v{G+12}")
e(f"v_mov_b32 v{G+11}, v{G+13}")
valu = [[f"v_max_f32_dpp v14, v14, v14 quad_perm:[2,3,0,1] {DPP}"],
        [f"v_max_f32_dpp v14, v14, v14 row_half_mirror {DPP}", "v_sub_f32 v10, v10, v14", "v_exp_f32 v10, v10"],
        [f"v_mul_f32 v14, v10, v{G+6}"],
        [f"v_add_f32_dpp v14, v14, v14 quad_perm:[1,0,3,2] {DPP}"],
        [f"v_add_f32_dpp v14, v14, v14 quad_perm:[2,3,0,1] {DPP}"],
        [f"v_add_f32_dpp v14, v14, v14 row_half_mirror {DPP}", "v_rcp_f32 v14, v14"],
        ["v_mul_f32 v10, v10, v14", "v_mov_b32 v14, v10"],
        ["v_mov_b32_dpp v14, v10 row_ror:12 row_mask:0x2 bank_mask:0xf",
         "v_mov_b32_dpp v14, v10 row_ror:8 row_mask:0x4 bank_mask:0xf",
         "v_mov_b32_dpp v14, v10 row_ror:4 row_mask:0x8 bank_mask:0xf"]]
k = 0
for t in range(2):
    for j in range(4):
        r = BF + (j*2+t)*4
        src = "0" if t == 0 else f"v[{ACC+4*j}:{ACC+4*j+3}]"
        e(f"v_mfma_f32_16x16x32_bf16 v[{ACC+4*j}:{ACC+4*j+3}], v[{G+8*t}:{G+8*t+3}], v[{r}:{r+3}], {src}")
        nop(1)
        for x in valu[k]: e(x)
        k += 1
e("s_waitcnt lgkmcnt(0)")
e("v_readfirstlane_b32 s46, v43")
def zreads():
    e(f"ds_read_b32 v43, v5 offset:{L_ZC}")
    for k in range(3): e(f"ds_read_b64 v[{24+2*k}:{25+2*k}], v{113+k} offset:{L_Z}")
zreads()
for r in range(4):
    for j in range(4): e(f"v_fmac_f32_dpp v{6+j}, v14, v{ACC+4*j+r} row_newbcast:{r} {DPP}")
e("s_cmp_eq_u32 s46, 3")
e("v_permlane16_swap_b32 v6, v7")
e("v_permlane16_swap_b32 v8, v9")
e("v_add_f32 v32, v6, v7")
e("v_add_f32 v33, v8, v9")
e("s_cbranch_scc1 L_coll")
e(f"ds_write_b64 v12, v[32:33] offset:{L_Z}")
e("s_mov_b64 exec, 1")
e(f"ds_add_u32 v5, v42 offset:{L_ZC}")
e("s_branch L_wfin")
lab("L_zre")
zreads()
lab("L_coll")
e("s_waitcnt lgkmcnt(0)")
e("v_cmp_gt_u32 vcc, 3, v43")
e("s_cbranch_vccnz L_zre")
e("v_add_f32 v26, v26, v28"); e("v_add_f32 v27, v27, v29")
e("v_add_f32 v32, v32, v24"); e("v_add_f32 v33, v33, v25")
e("v_add_f32 v32, v32, v26"); e("v_add_f32 v33, v33, v27")
e("buffer_store_dwordx4 v[32:35], v13, s[36:39], s56 offen sc1")
lab("L_wfin")
stamp(6, 2)
if STAMPS == 2:
    e("s_waitcnt vmcnt(0)"); stamp(7, 2)
    e(f"s_sub_u32 s66, {SPIN}, s45"); e("s_mul_i32 s66, s66, 100"); e("s_add_u32 s66, s66, s64"); e("s_mov_b32 s67, s65")
    wstamp_flush([(12, 3), (16, 5), (20, 6), (24, 7), (28, 1)], "w")
stamp_flush(24, 7, 12)
e("s_endpgm")
lab("L_R")
if SO: e("s_endpgm")
e("s_lshl_b32 s46, s28, 2")
e("s_add_u32 s46, s46, s29")
e("s_sub_u32 s46, s46, 28")
e("s_cmp_ge_u32 s46, 28")
e("s_cbranch_scc1 L_end")
e("s_lshr_b32 s47, s46, 2")
e("s_and_b32 s48, s46, 1")
e("s_bfe_u32 s49, s46, 0x10001")
e("s_mul_i32 s59, s50, 896")
e("s_lshl_b32 s58, s47, 7"); e("s_add_u32 s59, s59, s58")
e("s_lshl_b32 s58, s49, 5"); e("s_add_u32 s59, s59, s58")
e("s_lshl_b32 s58, s48, 4"); e("s_add_u32 s59, s59, s58")
e("v_and_b32 v14, 7, v0")
e("v_lshlrev_b32 v15, 1, v14")
e("v_lshrrev_b32 v11, 5, v0")
e("v_lshl_add_u32 v15, v11, 6, v15")
e("s_mov_b64 s[40:41], s[4:5]"); e("s_mov_b32 s42, 3584"); e("s_mov_b32 s43, 0x20000")
e("buffer_load_ushort v3, v15, s[40:43], s59 offen")
e("s_mov_b64 s[32:33], s[22:23]"); e("s_mov_b32 s34, 3584"); e("s_mov_b32 s35, 0x20000")
e("s_mul_i32 s52, s50, 7")
e("s_add_u32 s52, s52, s47")
e("s_lshl_b32 s52, s52, 1")
e("s_add_u32 s52, s52, s49")
e("s_lshl_b32 s52, s52, 12")
e("s_lshl_b32 s58, s48, 7")
e("s_add_u32 s52, s52, s58")
e(f"s_add_u32 s52, s52, {FBASE}")
e("v_lshrrev_b32 v12, 3, v0")
e("v_lshlrev_b32 v12, 8, v12")
e("v_lshl_add_u32 v12, v14, 4, v12")
MK = 80
R = 16
for i in range(2): e(f"s_mov_b64 s[{MK+2*i}:{MK+2*i+1}], -1")
for i in range(2): e(f"v_mov_b32 v{R+4*i+3}, 0")
lds_wait("rt", 7, 5, L_T, 44, sleep=2)
e("s_waitcnt vmcnt(0)")
e("v_lshlrev_b32 v8, 16, v3")
lds_wait("rv", 14, 5, L_VP, 56, need=4, sleep=2)
e(f"s_mov_b32 s45, {SPIN*4}")
lab("L_fpoll")
for i in range(2):
    e(f"s_mov_b64 exec, s[{MK+2*i}:{MK+2*i+1}]")
    e(f"s_cbranch_execz L_fs{i}")
    e(f"buffer_load_dwordx4 v[{R+4*i}:{R+4*i+3}], v12, s[36:39], s52 offen offset:{i*2048} sc1")
    lab(f"L_fs{i}")
e("s_mov_b64 exec, -1")
e("s_sub_u32 s45, s45, 1")
e(f"s_waitcnt vmcnt({FDEP})")
e("s_cbranch_scc1 L_fgo")
for i in range(2): e(f"v_cmp_ne_u32 s[{MK+2*i}:{MK+2*i+1}], s44, v{R+4*i+3}")
e(f"s_or_b64 s[56:57], s[{MK}:{MK+1}], s[{MK+2}:{MK+3}]")
e("s_cbranch_scc1 L_fpoll")
lab("L_fgo")
e("s_waitcnt vmcnt(0)")
e(f"v_add_f32 v{R}, v{R}, v{R+4}");  e(f"v_add_f32 v{R+1}, v{R+1}, v{R+5}")
nop(2)
e(f"v_permlane32_swap_b32 v{R}, v{R+1}")
e(f"v_add_f32 v{R}, v{R}, v{R+1}")
e(f"v_mov_b32 v{R+1}, v{R}"); nop(2)
e(f"v_permlane16_swap_b32 v{R}, v{R+1}")
e(f"v_add_f32 v{R}, v{R}, v{R+1}"); nop(2)
e(f"v_add_f32_dpp v{R}, v{R}, v{R} row_ror:8 {DPP}")
e(f"v_add_f32 v8, v8, v{R}")
e("v_cvt_pk_bf16_f32 v8, v8, v8")
e("s_mov_b32 exec_lo, 0xff")
e("s_mov_b32 exec_hi, 0xff")
e("buffer_store_short v8, v15, s[32:35], s59 offen")
stamp(7, 2)
if STAMPS == 2:
    e("v_mov_b32 v20, v5")
    e(f"s_sub_u32 s66, {SPIN*4}, s45"); e("s_mul_i32 s66, s66, 100"); e("s_add_u32 s66, s66, s64"); e("s_mov_b32 s67, s65")
    wstamp_flush([(20, 7), (28, 1)], "r")
    e("v_mov_b32 v5, 0")
if PADTO:
    e("s_memrealtime s[66:67]"); e("s_waitcnt lgkmcnt(0)")
    e("s_sub_u32 s68, s66, s64"); e(f"s_mul_i32 s68, s68, {REPORT}"); e(f"s_add_u32 s68, s68, {PADTO}")
    lab("L_pad")
    e("s_memrealtime s[66:67]"); e("s_waitcnt lgkmcnt(0)")
    e("s_sub_u32 s69, s66, s64"); e("s_cmp_lt_u32 s69, s68"); e("s_cbranch_scc1 L_pad")
e("s_cmp_lg_u32 s59, 0")
e("s_cbranch_scc1 L_wend")
e("s_mov_b64 exec, 1")
e("buffer_store_dword v7, v5, s[36:39], 0 offen")
lab("L_wend")
if STAMPS == 1:
    e("s_mov_b64 s[64:65], s[78:79]")
stamp_flush(31, 1, 12, "r")
lab("L_end")
e("s_endpgm")

ref = open('parallel_sum__sliding_block_cached__dense_activation_mish__decode.s.ref').read().split('\n')
hdr = [l for l in ref if l.startswith(';') and '@launch' not in l]
print("\n".join(hdr))
print(f"; @launch grid=(256,1,1) block=(1024,1,1) lds={LDS_BYTES}")
print(f""".amdgcn_target "amdgcn-amd-amdhsa--gfx950"
.text
.globl {NAME}
.p2align {ALIGN}
.p2align 8
.type {NAME},@function
{NAME}:""")
print("\n".join(L))
print(f""".section .rodata,"a"
.p2align 6
.amdhsa_kernel {NAME}
  .amdhsa_next_free_vgpr 128
  .amdhsa_next_free_sgpr 100
  .amdhsa_accum_offset 128
  .amdhsa_group_segment_fixed_size 0
  .amdhsa_kernarg_size 96
  .amdhsa_user_sgpr_count 2
  .amdhsa_user_sgpr_kernarg_segment_ptr 1
  .amdhsa_system_sgpr_workgroup_id_x 1
.end_amdhsa_kernel""")
```

```python
import sys, math, struct
NAME = "parallel_sum__sliding_block_cached__dense_activation_mish__decode_kernel"
opts = dict(a.split('=') for a in sys.argv[1:] if '=' in a)
STAMPS = int(opts.get('stamps', 0))
ROT = int(opts.get('rot', 2))
PPOL = opts.get('ppol', 'nt').replace('_', ' ')
WPOL = opts.get('wpol', '').replace('_', ' ')
KVPOL = opts.get('kvpol', 'nt').replace('_', ' ')
SPIN = int(opts.get('spin', 40000))
NCAP = int(opts.get('ncap', 6))
WPRE = int(opts.get('wpre', 0))
WPOS = int(opts.get('wpos', 10))
DUAL = int(opts.get('dual', 1))
PREW = int(opts.get('prew', 1))
SO = int(opts.get('so', 0))
UNTH = int(opts.get('unth', 1))
TLBW = int(opts.get('tlbw', 1))
ALIGN = int(opts.get('align', 12))
PADTO = int(opts.get('padto', 0))
REPORT = int(opts.get('report', 0))
PADWG = int(opts.get('padwg', -1))
REP = opts.get('rep', '')
def rpoint(name):
    if REP == name:
        e("s_memrealtime s[66:67]"); e("s_waitcnt lgkmcnt(0)")
def rexit(role):
    if REP.startswith(role + "_"):
        e("s_sub_u32 s68, s66, s64"); e("s_add_u32 s68, s68, 4000")
        lab("L_rx")
        e("s_memrealtime s[66:67]"); e("s_waitcnt lgkmcnt(0)")
        e("s_sub_u32 s69, s66, s64"); e("s_cmp_lt_u32 s69, s68"); e("s_cbranch_scc1 L_rx")
def fhex(x): return "%#x" % struct.unpack('<I', struct.pack('<f', x))[0]
L = []
def e(s): L.append("    " + s)
def lab(s): L.append(s + ":")
def nop(n):
    if n > 0: e(f"s_nop {n-1}")
DPP = "row_mask:0xf bank_mask:0xf"
QBASE, HBASE, FBASE, OBASE, ALT, WSN = 0x1000, 0x21000, 0x40000, 0x180000, 0, 0x200000
VSIG = int(opts.get('vsig', 15))
L_T, L_QF, L_EF, L_XF, L_KF, L_VI, L_KCR, L_PL, L_ST, L_XS, L_MB = 0, 4, 8, 12, 16, 32, 48, 64, 80, 128, 192
L_OC, L_VP, L_ZC = 112, 116, 124
L_Z = 0x1400
LATEB = int(opts.get('lateb', 1))
FDEP = int(opts.get('fdep', 0))
L_VD = 120
XBASE = 0x30000
BTO = int(opts.get('bto', 48))
QDEP = int(opts.get('qdep', 1))
CBX = int(opts.get('cbx', 0))
LAT = int(opts.get('lat', 1))
C3 = int(opts.get('c3', 0))
LROT = opts.get('lrot', '0')
PPF = int(opts.get('ppf', 6))
PFPOL = opts.get('pfpol', '').replace('_', ' ')
NOUSIG = int(opts.get('nousig', 6))
OEARLY = int(opts.get('oearly', 9))
FSLEEP = int(opts.get('fsleep', 1))
OMASK = int(opts.get('omask', 1))
NOP_ = int(opts.get('nop', 0))
NOW_ = int(opts.get('now', 0))
KPRE = int(opts.get('kpre', 1))
OUTW = int(opts.get('outw', 1))
OUTPOL = opts.get('outpol', '').replace('_', ' ')
PCONT = int(opts.get('pcont', 0))
WCONT = int(opts.get('wcont', 0))
OSLEEP = int(opts.get('osleep', 0))
NOTAB = int(opts.get('notab', 0))
CRED = int(opts.get('cred', 0))
CAPL = int(opts.get('capl', 0))
L_SC, L_ONES, L_QS, L_X, L_PW, L_WW, L_OG = 0x100, 0x500, 0x900, 0x1400, 0x2400, 0x9400, 0x15400
LDS_BYTES = 0x19400
def stamp(slot, lvl=1):
    if STAMPS == 1 or (STAMPS == 2 and lvl == 2):
        e(f"s_memrealtime s[{64+2*slot}:{65+2*slot}]")
        e("s_waitcnt lgkmcnt(0)")
def stamp_flush(base, n, cond_wave, sfx=""):
    if STAMPS != 1: return
    lbl = f"L_sf{base}{sfx}"
    e(f"s_cmp_lg_u32 s3, {cond_wave}")
    e(f"s_cbranch_scc1 {lbl}")
    e("s_lshl_b32 s60, s2, 8")
    e(f"s_add_u32 s60, s60, {0x8000000 + base*8}")
    e("s_add_u32 s62, s26, s60")
    e("s_addc_u32 s63, s27, 0")
    e("s_mov_b64 exec, 1")
    e("v_mov_b32 v2, 0")
    for i in range(n):
        e(f"v_mov_b32 v4, s{64+2*i}")
        e(f"v_mov_b32 v5, s{65+2*i}")
        e(f"global_store_dwordx2 v2, v[4:5], s[62:63] offset:{8*i}")
        nop(1)
    lab(lbl)
def wstamp_flush(pairs, sfx):
    e("s_lshl_b32 s60, s2, 8")
    e("s_and_b32 s61, s3, 3"); e("s_lshl_b32 s61, s61, 3"); e("s_add_u32 s60, s60, s61")
    e(f"s_add_u32 s60, s60, {0x8000000}")
    e("s_add_u32 s62, s26, s60")
    e("s_addc_u32 s63, s27, 0")
    e("s_mov_b64 exec, 1")
    e("v_mov_b32 v2, 0")
    for base, i in pairs:
        e(f"v_mov_b32 v4, s{64+2*i}")
        e(f"v_mov_b32 v5, s{65+2*i}")
        e(f"global_store_dwordx2 v2, v[4:5], s[62:63] offset:{8*base}")
        nop(1)
def ws_srd():
    e("s_mov_b64 s[36:37], s[26:27]"); e(f"s_mov_b32 s38, {WSN}"); e("s_mov_b32 s39, 0x20000")
def lds_wait(tag, vt, vz, off, sdst, need=1, sleep=0, bound=None):
    e(f"s_mov_b32 s45, {bound if bound else SPIN*8}")
    lab(f"L_lw{tag}")
    if sleep: e(f"s_sleep {sleep}")
    e(f"ds_read_b32 v{vt}, v{vz} offset:{off}")
    e("s_sub_u32 s45, s45, 1")
    e("s_cbranch_scc1 L_lwd" + tag)
    e("s_waitcnt lgkmcnt(0)")
    e(f"v_readfirstlane_b32 s{sdst}, v{vt}")
    e(f"s_cmp_lt_u32 s{sdst}, {need}")
    e(f"s_cbranch_scc1 L_lw{tag}")
    lab(f"L_lwd{tag}")
cw_n = [0]
def credit_wait(need, vaddr, vt, sc):
    cw_n[0] += 1; n = cw_n[0]
    lab(f"L_cw{n}")
    e(f"s_cmp_ge_u32 s{sc}, {need}")
    e(f"s_cbranch_scc1 L_cwd{n}")
    if need == 1: e("s_sleep 1")
    e(f"ds_read_b32 v{vt}, v{vaddr}")
    e("s_waitcnt lgkmcnt(0)")
    e(f"v_readfirstlane_b32 s{sc}, v{vt}")
    e(f"s_branch L_cw{n}")
    lab(f"L_cwd{n}")
lc_n = [0]
def light_flag():
    if not CAPL: return
    e("s_sub_u32 s87, s29, 25")
    e("s_cmp_lt_u32 s87, 3")
    e("s_cselect_b64 vcc, -1, 0")
    e("s_cmp_lt_u32 s29, 16")
    e("s_cselect_b64 vcc, -1, vcc")
def light_wait():
    if not CAPL: return
    lc_n[0] += 1
    e(f"s_cbranch_vccnz L_lc{lc_n[0]}")
    e(f"s_waitcnt vmcnt({CAPL-1})")
    lab(f"L_lc{lc_n[0]}")
def kv_base():
    if LAT:
        e("s_lshl_b32 s46, s30, 3")
        e("s_add_u32 s46, s46, s28")
        e("s_lshl_b32 s47, s46, 21")
        e("s_add_u32 s47, s47, 0x180000")
        if LROT == 'b4': e("s_lshl_b32 s49, s30, 2")
        elif LROT == '0': e("s_mov_b32 s49, 0")
        elif LROT == 'bk': e("s_lshl_b32 s49, s30, 2"); e("s_add_u32 s49, s49, s28")
        elif LROT == 'k2': e("s_lshl_b32 s49, s28, 1")
        return
    e("s_lshl_b32 s46, s30, 3")
    e("s_add_u32 s46, s46, s28")
    e("s_lshl_b32 s47, s46, 21")
    e("s_lshl_b32 s48, s31, 16")
    e("s_add_u32 s47, s47, s48")
    e("s_add_u32 s47, s47, 0x180000")
    if ROT == 0: e("s_mov_b32 s49, 0")
    elif ROT == 1: e("s_mul_i32 s49, s2, 37")
    elif ROT == 2: e("s_mov_b32 s49, s29")
    elif ROT == 3: e("s_mul_i32 s49, s2, 5"); e("s_add_u32 s49, s49, s29")
    elif ROT == 4: e("s_mov_b32 s49, s31")
    elif ROT == 5: e("s_mul_i32 s49, s30, 3"); e("s_add_u32 s49, s49, s31"); e("s_add_u32 s49, s49, s28")
    e("s_lshl_b32 s49, s49, 12")
def unit_params():
    e("s_mul_i32 s52, s28, 7")
    e("s_add_u32 s52, s52, s29")
    e("s_sub_u32 s52, s52, 25")
    e("s_lshl_b32 s53, s28, 4")
    e("s_add_u32 s53, s53, s29")
    if CBX: e(f"s_xor_b32 s53, s53, {CBX*2}")
    e("s_cmp_ge_u32 s29, 25")
    e("s_cselect_b32 s51, 2, 0")
    e("s_cmp_lt_u32 s29, 16")
    e("s_cselect_b32 s51, 1, s51")
    e("s_cselect_b32 s52, s53, s52")
    e("s_and_b32 s53, s52, 1")
    e("s_lshr_b32 s52, s52, 1")

if STAMPS or PADTO or PADWG >= 0 or REP: e("s_memrealtime s[64:65]")
e("s_cmp_ge_u32 s2, 256")
e("s_cbranch_scc1 L_end")
e("s_load_dwordx16 s[4:19], s[0:1], 0")
e("s_load_dwordx8 s[20:27], s[0:1], 64")
e("v_lshrrev_b32 v1, 6, v0")
e("v_and_b32 v0, 63, v0")
e("s_and_b32 s28, s2, 7")
e("v_readfirstlane_b32 s3, v1")
e("s_lshr_b32 s29, s2, 3")
e("s_lshr_b32 s30, s29, 3")
e("s_and_b32 s31, s29, 7")
e("v_lshrrev_b32 v1, 4, v0")
e("v_and_b32 v2, 15, v0")
e("s_and_b32 s50, s3, 3")
e("v_mov_b32 v5, 0")
e("s_cmp_lt_u32 s3, 8")
e("s_cbranch_scc1 L_lt8")
e("s_getpc_b64 s[40:41]")
lab("L_pc")
e("v_lshlrev_b32 v3, 2, v0")
e("ds_write_b32 v3, v5")
e("s_mul_i32 s46, s3, 1280")
e(f"s_sub_u32 s46, s46, {8*1280-1024}")
e("v_lshl_add_u32 v3, v0, 7, s46")
e("v_min_u32 v3, L_end-L_pc, v3")
e("s_mov_b64 exec, 0x3ff")
e("global_load_dword v120, v3, s[40:41]")
e("s_mov_b64 exec, -1")
e("s_waitcnt lgkmcnt(0)")
e("s_barrier")
e("s_branch L_VW")
lab("L_lt8")
e("s_cmp_ge_u32 s3, 4")
e("s_cbranch_scc1 L_K")
e("v_lshlrev_b32 v13, 4, v0")
e("s_mov_b32 s42, 3584"); e("s_mov_b32 s43, 0x20000")
e(f"s_mov_b32 m0, {L_X}")
e("s_waitcnt lgkmcnt(0)")
e("s_mov_b64 s[40:41], s[4:5]")
e("s_cmp_eq_u32 s3, 3")
e("s_cbranch_scc0 L_Pn3")
for i in range(4):
    e(f"buffer_load_dwordx4 v13, s[40:43], 0 offen offset:{i*1024} lds")
lab("L_Pn3")
e("s_load_dword s44, s[26:27], 0")
e("s_barrier")
e("s_branch L_P")
lab("L_K")
unit_params()
e("s_cmp_lg_u32 s51, 2")
e("s_cselect_b32 s54, 16, 7")
e("s_lshl_b32 s54, s54, 9")
e("v_lshrrev_b32 v3, 3, v0")
e("v_mul_u32_u24 v3, s54, v3")
e("v_and_b32 v4, 7, v0")
e("v_bfe_u32 v6, v0, 4, 1")
e("v_lshlrev_b32 v6, 1, v6")
e("v_xor_b32 v4, v4, v6")
e("s_and_b32 s55, s50, 1")
e("s_lshl_b32 s55, s55, 2")
e("v_xor_b32 v4, s55, v4")
e("v_lshl_add_u32 v4, v4, 4, v3")
e("s_mul_i32 s55, s53, 224")
e("s_lshl_b32 s56, s50, 3")
e("s_add_u32 s55, s55, s56")
e("s_mul_i32 s55, s55, s54")
e("s_lshl_b32 s56, s52, 7")
e("s_add_u32 s55, s55, s56")
e("s_lshl_b32 s56, s54, 5")
if PCONT:
    e("v_lshlrev_b32 v4, 4, v0")
    e("s_lshl_b32 s55, s52, 1"); e("s_add_u32 s55, s55, s53"); e("s_mul_i32 s55, s55, 28672")
    e("s_lshl_b32 s56, s50, 10"); e("s_add_u32 s55, s55, s56"); e("s_mov_b32 s56, 4096")
e("s_mul_i32 s42, s54, 448")
e("s_mov_b32 s43, 0x20000")
e("s_lshl_b32 s57, s50, 10")
e(f"s_add_u32 m0, s57, {L_PW}")
kv_base()
if LAT:
    e("s_lshr_b32 s57, s50, 1")
    e("s_add_u32 s49, s49, s57")
    e("s_add_u32 s48, s49, s31")
    e("s_lshl_b32 s48, s48, 12")
    e("s_lshl_b32 s49, s49, 15")
    e("s_and_b32 s57, s50, 1")
    e("s_lshl_b32 s57, s57, 11")
    e("s_add_u32 s47, s47, s57")
else:
    e("s_lshl_b32 s57, s50, 11")
    e("s_add_u32 s49, s49, s57")
e("v_lshrrev_b32 v3, 2, v2")
e("v_lshlrev_b32 v3, 9, v3")
e("v_lshl_add_u32 v3, v1, 6, v3")
e("v_and_b32 v6, 3, v0")
e("v_lshl_add_u32 v3, v6, 4, v3")
e(f"s_mov_b32 s34, {0x80000 if LAT else 0x10000}")
e("s_mov_b32 s35, 0x20000")
e("s_lshl_b32 s58, s50, 2")
e("v_mov_b32 v9, s58")
e("v_mov_b32 v8, 1")
e("s_cmp_lg_u32 s51, 2")
e("s_waitcnt lgkmcnt(0)")
e("s_cselect_b64 s[40:41], s[10:11], s[16:17]")
e("s_add_u32 s32, s6, s47")
e("s_addc_u32 s33, s7, 0")
DV = 64
def kload(i):
    j, lo = i >> 1, i & 1
    if lo == 0 and LAT:
        if j: e("s_add_u32 s49, s49, 65536"); e("s_add_u32 s48, s48, 8192")
        e("s_and_b32 s54, s49, 0x7ffff")
        e("s_and_b32 s46, s48, 0x7fff")
        e("s_or_b32 s54, s54, s46")
    elif lo == 0:
        if j: e(f"s_add_u32 s49, s49, 8192")
        e("s_and_b32 s54, s49, 0xffff")
    return f"buffer_load_dwordx4 v[{DV+4*i}:{DV+4*i+3}], v3, s[32:35], s54 offen offset:{lo*256} {KVPOL}"
light_flag()
if NOP_: e("s_mov_b32 s51, 0")
e("s_cmp_eq_u32 s51, 0")
e("s_cbranch_scc1 L_Knou")
if C3:
    e("s_sub_u32 s58, s29, 8")
    e("s_cmp_lt_u32 s58, 8")
    e("s_cbranch_scc0 L_noc3")
    e("s_lshl_b32 s58, s58, 2")
    e("s_add_u32 s58, s58, s50")
    e("s_and_b32 s59, s58, 15")
    e("s_lshl_b32 s59, s59, 3")
    e("s_lshr_b32 s58, s58, 4")
    e("s_mul_i32 s58, s58, 224")
    e("s_add_u32 s58, s58, s59")
    e("s_lshl_b32 s58, s58, 13")
    e("s_lshl_b32 s59, s28, 10")
    e("s_add_u32 s58, s58, s59")
    e(f"buffer_load_dwordx4 v[{DV}:{DV+3}], v4, s[40:43], s58 offen offset:384")
    lab("L_noc3")
for t in range(7):
    if t:
        e("s_add_u32 m0, m0, 4096")
        e("s_add_u32 s55, s55, s56")
    e(f"buffer_load_dwordx4 v4, s[40:43], s55 offen {PPOL} lds")
    if t == 6 and not KPRE: e("s_barrier")
for i in range(NCAP):
    ld = kload(i)
    if KPRE and i == KPRE: e("s_barrier")
    if 7 + i >= NCAP and i >= KPRE: e(f"s_waitcnt vmcnt({NCAP-1})")
    if i == NCAP - 1: e(f"ds_write_b32 v9, v8 offset:{L_PL}")
    e(ld)
e("s_branch L_Kc")
lab("L_Knou")
if PPF:
    e("s_sub_u32 s55, s29, 16")
    e("s_lshl_b32 s55, s55, 2")
    e("s_add_u32 s55, s55, s50")
    e(f"s_mul_i32 s56, s55, {PPF}")
    e("s_cmp_ge_u32 s55, 18")
    e(f"s_cselect_b32 s57, {224 - 18*PPF}, 0")
    e("s_add_u32 s56, s56, s57")
    e(f"s_add_u32 s56, s56, {224 - 18*PPF}")
    e("s_lshl_b32 s56, s56, 13")
    e("s_lshl_b32 s57, s28, 10")
    e("s_add_u32 s56, s56, s57")
    e("v_lshlrev_b32 v4, 4, v0")
    for j in range(PPF):
        if j: e("s_add_u32 s56, s56, 8192")
        e(f"buffer_load_dwordx4 v[{DV+4*j}:{DV+4*j+3}], v4, s[40:43], s56 offen {PFPOL}")
    e("s_barrier")
    for i in range(NCAP):
        ld = kload(i)
        if PPF + i >= NCAP: e(f"s_waitcnt vmcnt({NCAP-1})")
        e(ld)
else:
    for i in range(NCAP): e(kload(i))
    e("s_barrier")
lab("L_Kc")
rpoint("k_6")
stamp(1)
for i in range(NCAP, 16):
    ld = kload(i)
    e(f"s_waitcnt vmcnt({NCAP-1})")
    light_wait()
    if i == NOUSIG: e(f"ds_write_b32 v9, v8 offset:{L_PL}")
    e(ld)
stamp(2)
for k in range(NCAP):
    e(f"v_mov_b32 v8, {k+1}")
    e(f"s_waitcnt vmcnt({NCAP-1-k})")
    e(f"ds_write_b32 v9, v8 offset:{L_KCR}")
rpoint("k_land")
if SO:
    stamp(3); stamp(4); stamp_flush(8, 5, 4, "so"); e("s_endpgm")
e("v_bfe_u32 v18, v0, 2, 1")
e("v_lshlrev_b32 v7, 9, v18")
e("v_lshl_add_u32 v7, v1, 6, v7")
e("s_lshr_b32 s56, s50, 1")
e("s_lshl_b32 s58, s56, 5")
e("s_and_b32 s57, s50, 1")
e("s_lshl_b32 s57, s57, 8")
e("s_add_u32 s57, s58, s57")
e("v_add_u32 v7, s57, v7")
e("v_mov_b32 v16, v9")
e("v_mov_b32 v17, 1")
e("v_lshlrev_b32 v18, 5, v18")
e("s_lshl_b32 s57, s50, 3")
e("v_add_u32 v19, s57, v18")
e("v_add_u32 v6, v9, v18")
e(f"s_mov_b32 s59, {fhex(math.log2(math.e)/16)}")
lds_wait("k", 8, 5, L_QF, 44, sleep=1)
e(f"ds_read_b128 v[8:11], v3 offset:{L_QS}")
e(f"ds_read_b128 v[12:15], v3 offset:{L_QS+256}")
e("s_waitcnt lgkmcnt(0)")
rpoint("k_q")
stamp(3)
AC = 24
def extr(j):
    return [f"v_mov_b32_dpp v{56+j}, v{AC+4*j} quad_perm:[0,0,0,0] {DPP}"] + \
           [f"v_add_f32_dpp v{56+j}, v{AC+4*j+r}, v{56+j} quad_perm:[{r},{r},{r},{r}] {DPP}" for r in (1, 2, 3)]
chains = {j: extr(j) + [f"v_add_f32_dpp v{56+j}, v{56+j}, v{56+j} row_ror:8 {DPP}"] for j in range(8)}
ready = {j: 10**9 for j in range(8)}
pos = [0]
def em(x): e(x); pos[0] += 1
def fill(n, force=False):
    for _ in range(n):
        cand = [j for j in range(8) if chains[j] and ready[j] <= pos[0]]
        if not cand:
            if force: em("s_nop 0")
            continue
        j = cand[0]; em(chains[j].pop(0)); ready[j] = pos[0] + 2
for j in range(8):
    em(f"v_mfma_f32_16x16x32_bf16 v[{AC+4*j}:{AC+4*j+3}], v[{DV+8*j}:{DV+8*j+3}], v[8:11], 0")
    fill(2, True)
    em(f"v_mfma_f32_16x16x32_bf16 v[{AC+4*j}:{AC+4*j+3}], v[{DV+8*j+4}:{DV+8*j+7}], v[12:15], v[{AC+4*j}:{AC+4*j+3}]")
    ready[j] = pos[0] + 8
    fill(2, True)
while any(chains.values()): fill(1, True)
e("v_max3_f32 v12, v56, v57, v58")
e("v_max3_f32 v12, v12, v59, v60")
e("v_max3_f32 v12, v12, v61, v62")
e("v_max_f32 v12, v12, v63")
e("v_mov_b32 v14, v12"); nop(2)
e("v_permlane32_swap_b32 v12, v14")
e("v_max_f32 v12, v12, v14")
e("v_mov_b32 v14, v12"); nop(2)
e("v_permlane16_swap_b32 v12, v14")
e("v_max_f32 v12, v12, v14")
e("v_mov_b32 v13, 1")
e(f"ds_write_b64 v19, v[12:13] offset:{L_MB}")
e(f"s_mov_b32 s45, {SPIN*8}")
lab("L_kx")
e(f"ds_read_b128 v[20:23], v18 offset:{L_MB}")
e(f"ds_read_b128 v[24:27], v18 offset:{L_MB+16}")
e("s_sub_u32 s45, s45, 1")
e("s_cbranch_scc1 L_kxd")
e("s_waitcnt lgkmcnt(0)")
e("v_and_b32 v14, v21, v23")
e("v_and_b32 v15, v25, v27")
e("v_and_b32 v14, v14, v15")
e("v_cmp_eq_u32 vcc, 0, v14")
e("s_cbranch_vccnz L_kx")
lab("L_kxd")
e("v_max3_f32 v12, v20, v22, v24")
e("v_max_f32 v12, v12, v26")
e("v_mul_f32 v12, s59, v12")
for i in range(8): e(f"v_fma_f32 v{56+i}, v{56+i}, s59, -v12")
for i in range(8): e(f"v_exp_f32 v{56+i}, v{56+i}")
nop(1)
e("v_add_f32 v13, v56, v57")
for i in range(2, 8): e(f"v_add_f32 v13, v13, v{56+i}")
for i in range(8): e(f"v_cvt_pk_bf16_f32 v{56+i}, v{56+i}, v{56+i}")
e("v_mov_b32 v15, v13"); nop(2)
e("v_permlane32_swap_b32 v13, v15")
e("v_add_f32 v13, v13, v15")
e("v_mov_b32 v15, v13"); nop(2)
e("v_permlane16_swap_b32 v13, v15")
e("v_add_f32 v13, v13, v15")
e("s_mov_b32 exec_lo, 0x00110011")
e("s_mov_b32 exec_hi, 0x00110011")
e(f"ds_write_b128 v7, v[56:59] offset:{L_SC}")
e(f"ds_write_b128 v7, v[60:63] offset:{L_SC+16}")
e(f"ds_write_b32 v6, v12 offset:{L_XS}")
e(f"ds_write_b32 v6, v13 offset:{L_XS+16}")
e("s_mov_b64 exec, 1")
e("s_waitcnt lgkmcnt(0)")
e(f"ds_write_b32 v16, v17 offset:{L_KF}")
rpoint("k_done")
rexit("k")
stamp(4)
stamp_flush(8, 5, 4)
e("s_endpgm")

lab("L_P")
if SO:
    if SO == 2:
        e("v_mov_b32 v24, 1"); e(f"ds_write_b32 v5, v24 offset:{L_QF}")
    stamp_flush(0, 1, 0, "so"); e("s_endpgm")
unit_params()
ws_srd()
e("s_waitcnt lgkmcnt(0)")
e("s_cmp_eq_u32 s3, 1")
e("s_cbranch_scc0 L_Pm1")
e("s_mul_i32 s44, s44, 0x9E3779B5")
e("s_add_u32 s44, s44, 0x7F4A7C15")
e("s_cmp_eq_u32 s44, 0")
e("s_cselect_b32 s44, 0x7F4A7C15, s44")
e("v_mov_b32 v24, s44")
e(f"ds_write_b32 v5, v24 offset:{L_T}")
e("s_getreg_b32 s46, hwreg(HW_REG_XCC_ID)")
e("s_and_b32 s46, s46, 15")
e("s_lshl_b32 s47, s28, 12")
e("s_lshl_b32 s48, s29, 7")
e("s_add_u32 s48, s48, s47")
e(f"s_add_u32 s48, s48, {XBASE}")
e("v_mov_b32 v8, s46"); e("v_mov_b32 v9, s44"); e("v_mov_b32 v10, s46"); e("v_mov_b32 v11, s44")
e("s_mov_b64 exec, 0xff")
if not NOTAB: e("buffer_store_dwordx4 v[8:11], v13, s[36:39], s48 offen sc1")
e("s_mov_b64 exec, -1")
lab("L_Pm1")
e("s_cmp_eq_u32 s51, 0")
e("s_cbranch_scc1 L_Pdone")
e("s_cmp_eq_u32 s3, 3")
e("s_cbranch_scc0 L_Pm3")
e("v_mov_b32 v16, 0x3f803f80"); e("v_mov_b32 v17, v16"); e("v_mov_b32 v18, v16"); e("v_mov_b32 v19, v16")
e(f"ds_write_b128 v13, v[16:19] offset:{L_ONES}")
e("v_and_b32 v15, 3, v0")
e("v_mul_u32_u24 v12, 896, v15")
e("v_lshrrev_b32 v14, 2, v0")
e("v_lshl_add_u32 v12, v14, 6, v12")
e("v_cmp_gt_u32 vcc, 14, v14")
e("v_mov_b32 v14, 3584")
e("v_lshlrev_b32 v15, 3, v15")
e("v_cndmask_b32 v12, v14, v12, vcc")
e("v_mov_b32 v36, 0"); e("v_mov_b32 v37, 0")
e("s_waitcnt vmcnt(0)")
for i in range(4): e(f"ds_read_b128 v[{20+4*i}:{23+4*i}], v12 offset:{L_X+16*i}")
e("s_waitcnt lgkmcnt(0)")
for i in range(16):
    e(f"v_dot2c_f32_bf16 v36, v{20+i}, v16")
    e(f"v_dot2c_f32_bf16 v37, v{20+i}, v{20+i}")
nop(4)
for sh in (4, 8):
    e(f"v_add_f32_dpp v36, v36, v36 row_ror:{sh} {DPP}")
    e(f"v_add_f32_dpp v37, v37, v37 row_ror:{sh} {DPP}")
    nop(2)
for sw in ("16", "32"):
    e("v_mov_b32 v38, v36"); e("v_mov_b32 v39, v37"); nop(2)
    e(f"v_permlane{sw}_swap_b32 v36, v38")
    e(f"v_permlane{sw}_swap_b32 v37, v39")
    e("v_add_f32 v36, v36, v38"); e("v_add_f32 v37, v37, v39")
e(f"v_mul_f32 v36, {fhex(1.0/448)}, v36")
e(f"v_mul_f32 v37, {fhex(1.0/448)}, v37")
e("v_fma_f32 v37, -v36, v36, v37")
e("v_max_f32 v37, 0, v37")
e(f"v_add_f32 v37, {fhex(1e-5)}, v37")
e("v_rsq_f32 v37, v37")
e("v_sub_f32 v36, 0, v36")
e("v_mov_b32 v40, 1")
e(f"ds_write_b64 v15, v[36:37] offset:{L_ST}")
e("s_waitcnt lgkmcnt(0)")
e(f"ds_write_b32 v5, v40 offset:{L_XF}")
lab("L_Pm3")
stamp(1)
e("v_lshlrev_b32 v10, 10, v1")
e("v_lshrrev_b32 v11, 2, v2")
e("v_lshl_add_u32 v10, v11, 7, v10")
e("v_and_b32 v11, 3, v0")
e("v_lshl_add_u32 v10, v11, 3, v10")
e("v_lshlrev_b32 v12, 3, v11")
e("v_bfe_u32 v11, v0, 3, 2")
e("v_xor_b32 v11, s3, v11")
e("v_lshl_add_u32 v6, v11, 5, v10")
e("v_mul_u32_u24 v14, 896, v2")
e("s_mul_i32 s54, s53, 448")
e(f"s_add_u32 s54, s54, {L_X}")
e("v_add_u32 v14, s54, v14")
e("v_cmp_gt_u32 vcc, 4, v2")
e(f"v_mov_b32 v15, {L_ONES}"); nop(1)
e("v_cndmask_b32 v14, v15, v14, vcc")
e("v_lshl_add_u32 v14, v1, 4, v14")
e("v_and_b32 v10, 3, v0")
e("v_lshlrev_b32 v10, 6, v10")
e("v_and_b32 v11, 12, v0")
e("v_add_u32 v10, v10, v11")
e("s_and_b32 s54, s52, 7")
e("s_lshl_b32 s54, s54, 8")
e("s_lshl_b32 s55, s53, 11")
e("s_add_u32 s54, s54, s55")
e("s_lshl_b32 s55, s3, 6")
e("s_add_u32 s54, s54, s55")
e("s_lshl_b32 s55, s28, 14")
e("s_add_u32 s54, s54, s55")
e(f"s_add_u32 s54, s54, {QBASE}")
e("s_lshl_b32 s55, s52, 11")
e("s_lshl_b32 s56, s53, 10")
e("s_add_u32 s55, s55, s56")
e(f"s_add_u32 s55, s55, {HBASE}")
e("s_lshl_b32 s56, s3, 8")
e("s_add_u32 s55, s55, s56")
e("s_cmp_eq_u32 s51, 1")
e("s_cselect_b32 s54, s54, s55")
e("s_cselect_b32 s56, 12, 6")
e("v_lshrrev_b32 v11, 2, v2")
e("v_lshlrev_b32 v11, s56, v11")
e("v_and_b32 v13, 3, v0")
e("v_lshl_add_u32 v13, v13, 4, v11")
e(f"s_add_u32 s55, s54, {ALT}")
if PREW:
    for r in range(4): e(f"v_mov_b32 v{28+r}, 0")
    e("s_cmp_eq_u32 s51, 1")
    e("s_cbranch_scc0 L_npw")
    e("s_mov_b64 exec, 0xffff")
    e("buffer_store_dwordx4 v[28:31], v13, s[36:39], s55 offen")
    e("s_mov_b64 exec, -1")
    lab("L_npw")
lds_wait("p", 27, 5, L_T, 44)
lds_wait("x", 26, 5, L_XF, 46)
XF = 96
for t in range(7): e(f"ds_read_b128 v[{XF+4*t}:{XF+4*t+3}], v14 offset:{64*t}")
e(f"ds_read_b64 v[36:37], v12 offset:{L_ST}")
e("v_mov_b32 v26, v27")
e(f"s_mov_b32 s45, {SPIN*8}")
lab("L_pl")
e(f"ds_read_b128 v[16:19], v5 offset:{L_PL}")
e("s_sub_u32 s45, s45, 1")
e("s_cbranch_scc1 L_pld")
e("s_waitcnt lgkmcnt(0)")
e("v_and_b32 v16, v16, v17")
e("v_and_b32 v18, v18, v19")
e("v_and_b32 v16, v16, v18")
e("v_cmp_eq_u32 vcc, 0, v16")
e("s_cbranch_vccnz L_pl")
lab("L_pld")
stamp(2)
for t in range(7):
    r = 64 + 4*t
    e(f"ds_read_b64_tr_b16 v[{r}:{r+1}], v6 offset:{L_PW + t*4096}")
    e(f"ds_read_b64_tr_b16 v[{r+2}:{r+3}], v6 offset:{L_PW + t*4096 + 512}")
for t in range(7):
    r = 64 + 4*t
    e(f"s_waitcnt lgkmcnt({12-2*t})")
    src = "0" if t == 0 else "v[16:19]"
    e(f"v_mfma_f32_16x16x32_bf16 v[16:19], v[{r}:{r+3}], v[{XF+4*t}:{XF+4*t+3}], {src}")
nop(8)
for r in range(4): e(f"v_mov_b32 v{20+r}, v{16+r}")
for r in range(4): e(f"v_fmac_f32_dpp v{20+r}, v{16+r}, v36 row_shl:4 {DPP}")
for r in range(4): e(f"v_mul_f32 v{20+r}, v{20+r}, v37")
e("v_cvt_pk_bf16_f32 v20, v20, v21")
e("v_cvt_pk_bf16_f32 v21, v22, v23")
e("ds_bpermute_b32 v24, v10, v20")
e("ds_bpermute_b32 v25, v10, v21")
e("s_waitcnt lgkmcnt(0)")
e("s_mov_b64 exec, 0xffff")
e("s_cmp_eq_u32 s51, 1")
e("s_cbranch_scc0 L_Pb")
e("buffer_store_dwordx4 v[24:27], v13, s[36:39], s54 offen")
for r in range(4): e(f"v_mov_b32 v{32+r}, v{24+r}")
e("s_mov_b32 s59, s54")
e("s_branch L_Pnb")
lab("L_Pb")
e("buffer_store_dwordx4 v[24:27], v13, s[36:39], s54 offen sc1")
lab("L_Pnb")
e("s_mov_b64 exec, -1")
stamp(3)
stamp_flush(0, 4, 0)
lab("L_Pdone")
e("v_mov_b32 v36, v13")
def g_bstore(sfx):
    e("s_cmp_eq_u32 s46, 2")
    e(f"s_cbranch_scc0 L_qnb{sfx}")
    e("s_cmp_eq_u32 s51, 1")
    e(f"s_cbranch_scc0 L_qnb{sfx}")
    e("s_mov_b64 exec, 0xffff")
    e("buffer_store_dwordx4 v[32:35], v36, s[36:39], s59 offen sc1")
    e("s_mov_b64 exec, -1")
    e("s_mov_b32 s51, 0")
    lab(f"L_qnb{sfx}")
e("s_cmp_eq_u32 s3, 1")
e("s_cbranch_scc1 L_G")
e("s_cmp_eq_u32 s3, 0")
e("s_cbranch_scc0 L_Pw")
e("s_mov_b64 exec, -1")
e("v_mov_b32 v5, 0")
e("s_getreg_b32 s48, hwreg(HW_REG_XCC_ID)")
e("s_and_b32 s48, s48, 15")
e("s_lshl_b32 s47, s28, 12")
e(f"s_add_u32 s47, s47, {XBASE}")
e("v_lshlrev_b32 v6, 7, v0")
lds_wait("xt", 9, 5, L_T, 44, sleep=1)
lds_wait("xq", 10, 5, L_QF, 49, sleep=2, bound=BTO)
e("s_mov_b32 exec_lo, -1"); e("s_mov_b32 exec_hi, 0")
e(f"s_mov_b32 s45, {SPIN}")
e("s_mov_b32 s49, 2")
if NOTAB: e("s_mov_b32 s49, 1"); e("s_branch L_xdone")
lab("L_xpoll")
e("buffer_load_dwordx2 v[10:11], v6, s[36:39], s47 offen sc1")
e("s_sub_u32 s45, s45, 1")
e("s_waitcnt vmcnt(0) lgkmcnt(0)")
e("s_cbranch_scc1 L_xdone")
e("v_cmp_ne_u32 vcc, s44, v11")
e("s_cbranch_vccnz L_xpoll")
e("v_cmp_ne_u32 vcc, s48, v10")
e("s_cbranch_vccnz L_xdone")
e("s_mov_b32 s49, 1")
lab("L_xdone")
e("v_mov_b32 v8, s49")
e(f"ds_write_b32 v5, v8 offset:{L_VD}")
lab("L_Pw")
e("s_cmp_eq_u32 s51, 1")
e("s_cbranch_scc0 L_end")
lds_wait("pb", 28, 5, L_VD, 46, sleep=2)
g_bstore("c")
e("s_endpgm")
lab("L_G")
e("v_lshlrev_b32 v6, 4, v0")
e("v_lshlrev_b32 v7, 3, v0")
e("s_lshl_b32 s55, s28, 14")
e("s_lshl_b32 s56, s30, 12")
e("s_add_u32 s55, s55, s56")
e(f"s_add_u32 s55, s55, {QBASE}")
e("v_mov_b32 v24, s44")
rpoint("g_start")
stamp(1)
e(f"s_mov_b32 s45, {SPIN}")
for i in range(4): e(f"s_mov_b64 s[{80+2*i}:{81+2*i}], -1")
lds_wait("gp", 25, 5, L_PL, 46, sleep=1)
e(f"s_mov_b32 s45, {SPIN}")
QD = max(1, QDEP)
def qissue(k):
    for i in range(4):
        e(f"s_or_b64 exec, s[{80+2*i}:{81+2*i}], 1")
        r = 64 + 16*k + 4*i
        e(f"buffer_load_dwordx4 v[{r}:{r+3}], v6, s[36:39], s55 offen offset:{i*1024} sc1")
        e(f"s_mov_b64 s[{64+16+0}:{64+16+1}], s[80:81]") if False else None
def qcheck(k):
    for i in range(4):
        r = 64 + 16*k + 4*i
        e(f"s_mov_b64 exec, s[{80+2*i}:{81+2*i}]")
        e(f"v_cmpx_eq_u32 vcc, s44, v{r+3}")
        e(f"ds_write_b64 v7, v[{r}:{r+1}] offset:{L_QS+i*512}")
        e(f"s_andn2_b64 s[{80+2*i}:{81+2*i}], s[{80+2*i}:{81+2*i}], exec")
    e("s_or_b64 s[48:49], s[80:81], s[82:83]")
    e("s_or_b64 s[48:49], s[48:49], s[84:85]")
    e("s_or_b64 s[48:49], s[48:49], s[86:87]")
    e("s_cbranch_scc0 L_qgo")
for k in range(QD):
    for i in range(4): e(f"v_mov_b32 v{64+16*k+4*i+3}, 0")
qissue(0)
e("s_waitcnt vmcnt(0)")
qcheck(0)
for k in range(QD-1):
    qissue(k)
    e(f"s_sleep {int(opts.get('qgap', 8))}")
lab("L_qpoll")
for k in range(QD):
    qissue((k + QD - 1) % QD)
    e(f"s_waitcnt vmcnt({4*(QD-1)})")
    qcheck(k)
e("s_mov_b64 exec, -1")
e(f"ds_read_b32 v25, v5 offset:{L_VD}")
e("s_waitcnt lgkmcnt(0)")
e("v_readfirstlane_b32 s46, v25")
g_bstore("a")
e("s_sub_u32 s45, s45, 1")
e("s_cbranch_scc0 L_qpoll")
lab("L_qgo")
e("s_mov_b64 exec, -1")
e("s_waitcnt lgkmcnt(0)")
e(f"ds_write_b32 v5, v24 offset:{L_QF}")
rpoint("g_q")
if STAMPS == 1: e("s_mov_b32 s47, s45")
stamp(2)
lds_wait("gv", 25, 5, L_VD, 46, sleep=2)
g_bstore("b")
rexit("g")
if STAMPS == 1: e("s_mov_b32 s45, s47")
if STAMPS == 1:
    e(f"s_sub_u32 s70, {SPIN}, s45"); e("s_mul_i32 s70, s70, 100"); e("s_add_u32 s70, s70, s64"); e("s_mov_b32 s71, s65")
stamp_flush(4, 4, 1)
e("s_endpgm")

lab("L_VW")
ws_srd()
e("s_cmp_ge_u32 s3, 12")
e("s_cbranch_scc1 L_W")
kv_base()
if LAT:
    e("s_add_u32 s48, s49, s31")
    e("s_lshl_b32 s48, s48, 12")
    e("s_lshl_b32 s49, s49, 15")
e("s_lshl_b32 s52, s50, 7")
e("v_lshrrev_b32 v10, 3, v0")
e("v_lshlrev_b32 v3, 9, v10")
e("v_and_b32 v11, 7, v0")
e("v_lshl_add_u32 v3, v11, 4, v3")
e("v_add_u32 v3, s52, v3")
e("s_add_u32 s32, s8, s47")
e("s_addc_u32 s33, s9, 0")
e(f"s_mov_b32 s34, {0x80000 if LAT else 0x10000}")
e("s_mov_b32 s35, 0x20000")
if TLBW:
    e("s_mov_b64 exec, 1")
    e("buffer_load_dword v121, v5, s[32:35], 0 offen")
    e("s_mov_b64 exec, -1")
e("v_lshlrev_b32 v10, 6, v10")
e("v_and_b32 v12, 1, v0")
e("v_cmp_eq_u32 vcc, 1, v12")
e("v_mov_b32 v13, 0xffff")
e("v_mov_b32 v12, 0xffff0000")
e("v_cndmask_b32 v13, v13, v12, vcc")
e("v_bfe_u32 v12, v0, 1, 2")
for j in range(4):
    e(f"v_cmp_eq_u32 vcc, {j}, v12")
    nop(2)
    e(f"v_cndmask_b32 v{6+j}, 0, v13, vcc")
e("s_and_b32 s59, s29, 15")
e("v_and_b32 v12, 1, v1")
e("v_cvt_f32_u32 v2, v12")
e("v_lshl_add_u32 v12, v12, 3, v11")
e("v_xor_b32 v12, s59, v12")
e("v_lshrrev_b32 v4, 1, v1")
e("v_lshlrev_b32 v4, 15, v4")
e("v_lshl_add_u32 v4, v12, 4, v4")
e("v_lshlrev_b32 v1, 4, v1")
e("s_lshl_b32 s58, s28, 16")
e("s_lshl_b32 s59, s50, 13")
e("s_add_u32 s58, s58, s59")
e("s_lshl_b32 s59, s29, 8")
e("s_add_u32 s58, s58, s59")
e(f"s_add_u32 s58, s58, {OBASE}")
e(f"s_add_u32 s59, s58, {ALT}")
e("s_lshl_b32 s57, s50, 2")
e(f"s_add_u32 s57, s57, {L_KCR}")
e("v_mov_b32 v11, s57")
e("v_mov_b32 v12, 1")
e("s_mov_b32 s57, 0")
e("s_mov_b32 s86, 0")
e("s_mov_b32 s60, 0x00ff00ff")
e("s_mov_b32 s61, 0x00ff00ff")
if PREW:
    for r in range(4): e(f"v_mov_b32 v{16+r}, 0")
    e("s_mov_b64 exec, s[60:61]")
    e("buffer_store_dwordx4 v[16:19], v4, s[36:39], s59 offen" + {1:"", 2:" sc1", 3:" nt", 4:" sc0"}[PREW])
    e("s_mov_b64 exec, -1")
stamp(1)
light_flag()
for i in range(16):
    if LAT:
        if i: e("s_add_u32 s49, s49, 32768"); e("s_add_u32 s48, s48, 4096")
        e("s_and_b32 s54, s49, 0x7ffff")
        e("s_and_b32 s46, s48, 0x7fff")
        e("s_or_b32 s54, s54, s46")
    else:
        if i: e("s_add_u32 s49, s49, 4096")
        e("s_and_b32 s54, s49, 0xffff")
    if i < NCAP: credit_wait(i+1, 11, 14, 57)
    elif UNTH:
        e("s_cmp_lg_u32 s86, 0")
        e(f"s_cbranch_scc1 L_un{i}")
        e(f"ds_read_b32 v14, v5 offset:{L_QF}")
        e(f"s_waitcnt vmcnt({NCAP-1}) lgkmcnt(0)")
        e("v_readfirstlane_b32 s86, v14")
        lab(f"L_un{i}")
    else: e(f"s_waitcnt vmcnt({NCAP-1})")
    if CAPL and i >= CAPL: light_wait()
    e(f"buffer_load_dwordx4 v[{DV+4*i}:{DV+4*i+3}], v3, s[32:35], s54 offen {KVPOL}")
    if i == VSIG: e(f"ds_write_b32 v11, v12 offset:{(L_VI-L_KCR) & 0xffff}") if L_VI >= L_KCR else (e(f"v_subrev_u32 v11, {L_KCR-L_VI}, v11"), e("ds_write_b32 v11, v12"))
rpoint("v_iss")
stamp(2)
if SO:
    e("s_waitcnt vmcnt(0)"); stamp(3); stamp(4); stamp_flush(16, 5, 8, "so"); e("s_endpgm")
e(f"s_mov_b32 s45, {SPIN*8}")
lab("L_vwait")
e(f"ds_read_b128 v[12:15], v5 offset:{L_KF}")
e("s_sub_u32 s45, s45, 1")
e("s_cbranch_scc1 L_vgo")
e("s_waitcnt lgkmcnt(0)")
e("v_and_b32 v12, v12, v13")
e("v_and_b32 v14, v14, v15")
e("v_and_b32 v12, v12, v14")
e("v_cmp_eq_u32 vcc, 0, v12")
e("s_cbranch_vccnz L_vwait")
lab("L_vgo")
SC = 16
for h in range(2):
    for i in range(4): e(f"ds_read_b128 v[{SC+16*h+4*i}:{SC+16*h+4*i+3}], v10 offset:{L_SC+512*h+16*i}")
e(f"ds_read_b128 v[48:51], v1 offset:{L_XS}")
e(f"ds_read_b32 v15, v5 offset:{L_T}")
e("s_waitcnt lgkmcnt(0)")
e("v_add_f32 v49, v49, v50")
e("v_add_f32 v49, v49, v51")
e("v_fma_f32 v14, v49, v2, v48")
rpoint("v_p")
stamp(3)
for t in range(16):
    tau = (t & 1)*8 + (t >> 1)
    for h in range(2):
        for k in range(4): e(f"v_and_b32 v{48+4*h+k}, v{SC+16*h+tau}, v{6+k}")
    nop(1)
    e(f"s_waitcnt vmcnt({15-t})")
    for h in range(2):
        src = "0" if t == 0 else f"v[{56+4*h}:{59+4*h}]"
        e(f"v_mfma_f32_16x16x32_bf16 v[{56+4*h}:{59+4*h}], v[{48+4*h}:{51+4*h}], v[{DV+4*t}:{DV+4*t+3}], {src}")
nop(8)
for r in range(4): e(f"v_permlane32_swap_b32 v{56+r}, v{60+r}")
for r in range(4): e(f"v_add_f32_dpp v{56+r}, v{60+r}, v{56+r} row_ror:8 {DPP}")
e("s_mov_b64 exec, s[60:61]")
e("v_cvt_pk_bf16_f32 v12, v56, v57")
e("v_cvt_pk_bf16_f32 v13, v58, v59")
e("buffer_store_dwordx4 v[12:15], v4, s[36:39], s58 offen")
rpoint("v_pub")
stamp(4, 2)
e("v_mov_b32 v16, 1")
e("s_mov_b64 exec, 1")
e(f"ds_add_u32 v5, v16 offset:{L_VP}")
e("s_mov_b64 exec, s[60:61]")
lds_wait("vv", 17, 5, L_VD, 46, sleep=1)
e("s_cmp_eq_u32 s46, 1")
e("s_cbranch_scc1 L_Vnb")
e("buffer_store_dwordx4 v[12:15], v4, s[36:39], s58 offen sc1")
lab("L_Vnb")
rexit("v")
if PADWG >= 0:
    e(f"s_cmp_lg_u32 s2, {PADWG}")
    e("s_cbranch_scc1 L_npad")
    lab("L_padw")
    e("s_memrealtime s[66:67]"); e("s_waitcnt lgkmcnt(0)")
    e("s_sub_u32 s69, s66, s64"); e("s_cmp_lt_u32 s69, 4000"); e("s_cbranch_scc1 L_padw")
    lab("L_npad")
if STAMPS == 2:
    e("s_waitcnt vmcnt(0)"); stamp(5, 2)
    e("s_cmp_lg_u32 s3, 8"); e("s_cbranch_scc1 L_v8"); wstamp_flush([(0, 0)], "v0"); lab("L_v8"); wstamp_flush([(4, 4), (8, 5)], "v")
stamp_flush(16, 5, 8)
e("s_endpgm")

lab("L_W")
if NOW_: e("s_endpgm")
e("s_cmp_ge_u32 s29, 28")
e("s_cbranch_scc1 L_R")
e("s_lshr_b32 s47, s29, 2")
e("s_and_b32 s49, s29, 1")
e("s_bfe_u32 s46, s29, 0x10001")
e("s_lshl_b32 s85, s28, 1")
e("s_add_u32 s85, s85, s46")
e("s_lshl_b32 s51, s85, 2")
e("s_add_u32 s51, s51, s50")
e("s_lshr_b32 s55, s51, 1")
e("s_and_b32 s48, s51, 1")
e("s_mul_i32 s84, s50, 0x3000")
e(f"s_add_u32 s84, s84, {L_WW}")
e("s_mov_b64 s[32:33], s[12:13]"); e(f"s_mov_b32 s34, {4096*448*2}"); e("s_mov_b32 s35, 0x20000")
e("s_mov_b64 s[80:81], s[20:21]"); e(f"s_mov_b32 s82, {1792*448*2}"); e("s_mov_b32 s83, 0x20000")
e(f"s_mul_i32 s62, s51, {64*896}")
e(f"s_mul_i32 s63, s51, {32*896}")
e("s_lshl_b32 s57, s47, 7")
e("s_add_u32 s62, s62, s57")
e("s_add_u32 s63, s63, s57")
if TLBW:
    e("s_mov_b64 exec, 1")
    e("buffer_load_dword v121, v5, s[32:35], s62 offen")
    e("buffer_load_dword v122, v5, s[80:83], s63 offen")
    e("s_mov_b64 exec, -1")
e("v_lshrrev_b32 v6, 3, v0")
e("v_mul_u32_u24 v6, 896, v6")
e("v_and_b32 v40, 7, v0")
e("v_bfe_u32 v41, v0, 4, 1")
e("v_lshlrev_b32 v41, 1, v41")
e("v_xor_b32 v40, v40, v41")
e("v_xor_b32 v41, 4, v40")
e("v_lshl_add_u32 v40, v40, 4, v6")
e("v_lshl_add_u32 v41, v41, 4, v6")
e("v_lshlrev_b32 v10, 10, v1")
e("v_lshrrev_b32 v11, 2, v2")
e("v_lshl_add_u32 v10, v11, 7, v10")
e("v_and_b32 v11, 3, v0")
e("v_lshl_add_u32 v10, v11, 3, v10")
e("v_add_u32 v10, s84, v10")
e("v_bfe_u32 v11, v0, 3, 2")
for j in range(4):
    e(f"v_xor_b32 v12, {j}, v11")
    e(f"v_lshl_add_u32 v{6+j}, v12, 5, v10")
e("v_and_b32 v10, 1, v0")
e("v_lshlrev_b32 v10, 10, v10")
e("v_bfe_u32 v11, v0, 3, 1")
e("v_lshl_add_u32 v10, v11, 6, v10")
e("v_lshrrev_b32 v11, 1, v1")
e("v_lshl_add_u32 v10, v11, 8, v10")
e("v_and_b32 v11, 1, v1")
e("v_lshl_add_u32 v10, v11, 5, v10")
e("v_lshlrev_b32 v14, 4, v1")
e("v_bfe_u32 v11, v0, 2, 1")
e("v_lshl_add_u32 v10, v11, 4, v10")
e("v_lshl_add_u32 v14, v11, 3, v14")
e("s_lshl_b32 s53, s55, 11")
e("s_lshl_b32 s54, s48, 9")
e("s_add_u32 s53, s53, s54")
e("s_lshl_b32 s54, s49, 7")
e("s_add_u32 s53, s53, s54")
e(f"s_add_u32 s53, s53, {HBASE}")
e("s_mov_b64 s[40:41], s[18:19]"); e("s_mov_b32 s42, 3584"); e("s_mov_b32 s43, 0x20000")
e("s_lshl_b32 s54, s51, 6")
e("buffer_load_dwordx2 v[20:21], v14, s[40:43], s54 offen")
e("s_lshl_b32 s54, s51, 13")
e("s_lshl_b32 s58, s49, 12")
e("s_add_u32 s54, s54, s58")
e(f"s_add_u32 s61, s54, {OBASE}")
e("v_lshlrev_b32 v11, 4, v0")
e("v_lshrrev_b32 v13, 1, v1")
e(f"v_mul_u32_u24 v13, {7*8192}, v13")
e("v_and_b32 v12, 1, v1")
e("v_lshl_add_u32 v13, v12, 12, v13")
e("v_lshl_add_u32 v13, v2, 4, v13")
e("s_mul_i32 s56, s49, 14")
e("s_add_u32 s56, s56, s47")
e("s_lshl_b32 s56, s56, 13")
e("s_lshl_b32 s58, s85, 8")
e("s_add_u32 s56, s56, s58")
e(f"s_add_u32 s56, s56, {FBASE}")
e("s_lshl_b32 s58, s50, 9")
e("v_lshl_add_u32 v12, v0, 3, s58")
for k in range(1, 4): e(f"v_xor_b32 v{112+k}, {512*k}, v12")
e("s_lshl_b32 s58, s50, 12")
e(f"s_add_u32 s58, s58, {L_OG}")
e("v_xor_b32 v4, v1, v2")
e("v_lshlrev_b32 v14, 8, v2")
e("v_add_u32 v14, s58, v14")
for t in range(2):
    for ee in range(2):
        e(f"v_xor_b32 v42, {ee*8+4*t}, v4")
        e(f"v_lshl_add_u32 v{44+2*t+ee}, v42, 4, v14")
e("s_lshl_b32 s57, s50, 2")
e("v_mov_b32 v43, s57")
e("s_add_u32 m0, s84, 8192")
if CRED:
    e("s_lshr_b32 s89, s28, 1")
    e("s_mul_i32 s88, s89, 7")
    e("s_add_u32 s88, s88, s47")
    e("s_lshl_b32 s88, s88, 1")
    e("s_and_b32 s90, s28, 1")
    e("s_add_u32 s88, s88, s90")
    e("s_lshl_b32 s88, s88, 12")
    e("s_and_b32 s91, s29, 3")
    e("s_lshl_b32 s92, s91, 6")
    e("s_add_u32 s88, s88, s92")
    e(f"s_add_u32 s88, s88, {FBASE}")
    e("s_mul_i32 s89, s89, 896")
    e("s_lshl_b32 s92, s47, 7"); e("s_add_u32 s89, s89, s92")
    e("s_lshl_b32 s92, s90, 5"); e("s_add_u32 s89, s89, s92")
    e("s_lshl_b32 s92, s91, 3"); e("s_add_u32 s89, s89, s92")
    e("v_and_b32 v117, 3, v0")
    e("v_lshrrev_b32 v116, 2, v0")
    e("v_lshlrev_b32 v116, 8, v116")
    e("v_lshl_add_u32 v116, v117, 4, v116")
    e("v_lshlrev_b32 v117, 1, v117")
    e("v_lshrrev_b32 v118, 5, v0")
    e("v_lshl_add_u32 v117, v118, 6, v117")
    e("s_mov_b64 s[40:41], s[4:5]")
    e("buffer_load_ushort v118, v117, s[40:43], s89 offen")
    e("s_waitcnt vmcnt(0)")
    e("v_lshlrev_b32 v118, 16, v118")
    e("s_mov_b64 s[40:41], s[22:23]")
if not SO: lds_wait("w", 14, 5, L_T, 44, sleep=2)
G = 16; BF = 64; ACC = 48
for j in range(4): e(f"v_mov_b32 v{ACC+4*j}, 0")
HEARLY = int(opts.get('hearly', 1))
if HEARLY and not SO: lds_wait("hq", 14, 5, L_QF, 52, sleep=2)
else: lds_wait("c", 14, 43, L_VI, 52, sleep=1)
e("buffer_load_dwordx4 v[16:19], v10, s[36:39], s53 offen sc1")
if WCONT == 1:
    e("v_lshlrev_b32 v40, 4, v0")
    e("s_mul_i32 s62, s28, 28"); e("s_add_u32 s62, s62, s29"); e("s_lshl_b32 s62, s62, 2"); e("s_add_u32 s62, s62, s50")
    e("s_lshl_b32 s63, s62, 11"); e("s_lshl_b32 s62, s62, 12")
    for i in range(2): e(f"buffer_load_dwordx4 v40, s[80:83], s63 offen offset:{i*1024} {WPOL} lds")
    for i in range(4): e(f"buffer_load_dwordx4 v40, s[32:35], s62 offen offset:{i*1024} {WPOL} lds")
elif WCONT == 2:
    e(f"s_mul_i32 s52, s49, {16*896}"); e("s_add_u32 s63, s63, s52"); e("s_add_u32 s62, s62, s52"); e("s_add_u32 s62, s62, s52")
    for i in range(2):
        if i: e(f"s_add_u32 s63, s63, {8*896-1024}")
        e(f"buffer_load_dwordx4 v{40+(i&1)}, s[80:83], s63 offen offset:{i*1024} {WPOL} lds")
    for i in range(4):
        if i: e(f"s_add_u32 s62, s62, {8*896-1024}")
        e(f"buffer_load_dwordx4 v{40+(i&1)}, s[32:35], s62 offen offset:{i*1024} {WPOL} lds")
else:
    for i in range(4):
        if i: e(f"s_add_u32 s63, s63, {8*896-1024}")
        e(f"buffer_load_dwordx4 v{40+(i&1)}, s[80:83], s63 offen offset:{i*1024} {WPOL} lds")
    e("s_mov_b32 m0, s84")
    if HEARLY and not SO: lds_wait("c", 14, 43, L_VI, 52, sleep=1)
    nop(1)
    for i in range(8):
        if i == 4: e("s_add_u32 m0, s84, 4096")
        if i: e(f"s_add_u32 s62, s62, {8*896-1024 if i != 4 else 8*896+3072}")
        e(f"buffer_load_dwordx4 v{40+(i&1)}, s[32:35], s62 offen offset:{(i&3)*1024} {WPOL} lds")
if SO:
    e("s_waitcnt vmcnt(0)"); stamp(1); stamp(2); stamp(3); stamp_flush(24, 4, 12, "so"); e("s_endpgm")
e("s_cmp_eq_u32 s28, 7")
e("s_cbranch_scc1 L_skipm")
e("s_waitcnt vmcnt(8)")
e(f"s_mov_b32 s45, {SPIN}")
e("s_branch L_achk")
lab("L_apoll")
e("buffer_load_dwordx4 v[16:19], v10, s[36:39], s53 offen sc1")
e("s_sub_u32 s45, s45, 1")
e("s_waitcnt vmcnt(0)")
e("s_cbranch_scc1 L_ago")
lab("L_achk")
e("v_cmp_ne_u32 vcc, s44, v19")
e("s_cbranch_vccnz L_apoll")
lab("L_ago")
stamp(1)
for j in range(4):
    r = 96 + j*4
    e(f"ds_read_b64_tr_b16 v[{r}:{r+1}], v{6+j} offset:8192")
    e(f"ds_read_b64_tr_b16 v[{r+2}:{r+3}], v{6+j} offset:{8192+512}")
e("v_lshlrev_b32 v24, 16, v16"); e("v_and_b32 v25, 0xffff0000, v16")
e("v_lshlrev_b32 v26, 16, v17"); e("v_and_b32 v27, 0xffff0000, v17")
e("v_lshlrev_b32 v28, 16, v20"); e("v_and_b32 v29, 0xffff0000, v20")
e("v_lshlrev_b32 v30, 16, v21"); e("v_and_b32 v31, 0xffff0000, v21")
for r in range(4): e(f"v_add_f32_dpp v{24+r}, v{24+r}, v{24+r} quad_perm:[1,0,3,2] {DPP}")
for r in range(4): e(f"v_add_f32 v{24+r}, v{24+r}, v{28+r}")
for r in range(4): e(f"v_min_f32 v{28+r}, 0x41a00000, v{24+r}")
for r in range(4): e(f"v_mul_f32 v{28+r}, {fhex(math.log2(math.e))}, v{28+r}")
for r in range(4): e(f"v_exp_f32 v{28+r}, v{28+r}")
nop(1)
for r in range(4): e(f"v_add_f32 v{32+r}, 2.0, v{28+r}")
for r in range(4): e(f"v_mul_f32 v{28+r}, v{28+r}, v{32+r}")
for r in range(4): e(f"v_add_f32 v{32+r}, 2.0, v{28+r}")
for r in range(4): e(f"v_rcp_f32 v{32+r}, v{32+r}")
nop(1)
for r in range(4): e(f"v_mul_f32 v{28+r}, v{28+r}, v{32+r}")
for r in range(4): e(f"v_mul_f32 v{24+r}, v{24+r}, v{28+r}")
e("v_cvt_pk_bf16_f32 v32, v24, v25")
e("v_cvt_pk_bf16_f32 v33, v26, v27")
nop(2)
for bsel in range(2):
    for ee in range(2):
        for d in range(2):
            e(f"v_mov_b32_dpp v{16+2*ee+d}, v{32+d} row_newbcast:{8*bsel+4*ee} row_mask:0xf bank_mask:{0x3 << (2*bsel):#x}")
nop(1)
e("s_waitcnt lgkmcnt(0)")
for j in range(4):
    e(f"v_mfma_f32_16x16x32_bf16 v[{ACC+4*j}:{ACC+4*j+3}], v[16:19], v[{96+4*j}:{99+4*j}], 0")
lab("L_skipm")
stamp(2)
nop(8)
for j in range(4): e(f"v_mul_f32 v{36+j}, 0.5, v{ACC+4*j}")
e("s_mov_b32 m0, s58")
e("s_mov_b32 s54, s61")
def oissue():
    for j in range(4): e(f"buffer_load_dwordx4 v11, s[36:39], s54 offen offset:{j*1024} sc1 lds")
if OEARLY == 9: lds_wait("wvp", 14, 5, L_VP, 52, need=4)
if OEARLY >= 8: oissue()
for t in range(2):
    if OEARLY >= 8:
        e(f"s_waitcnt vmcnt({8 if t == 0 else 4})")
        if t == 1: rpoint("w_land"); stamp(3, 2)
    elif t == 0: e("s_waitcnt vmcnt(4)")
    elif OEARLY:
        e(f"s_waitcnt vmcnt({OEARLY})")
        oissue()
        e("s_waitcnt vmcnt(4)")
        rpoint("w_land"); stamp(3, 2)
    else:
        e("s_waitcnt vmcnt(0)")
        rpoint("w_land"); stamp(3, 2)
        oissue()
    for j in range(4):
        r = BF + (j*2+t)*4
        e(f"ds_read_b64_tr_b16 v[{r}:{r+1}], v{6+j} offset:{t*4096}")
        e(f"ds_read_b64_tr_b16 v[{r+2}:{r+3}], v{6+j} offset:{t*4096+512}")
    e("s_waitcnt lgkmcnt(0)")
for j in range(4): e(f"v_mov_b32 v{6+j}, v{36+j}")
e("v_mov_b32 v42, 1")
e("v_mov_b32 v34, s44")
e("v_mov_b32 v35, s44")
stamp(4)
e(f"s_mov_b32 s45, {SPIN}")
e("s_branch L_ochk")
lab("L_opoll")
if OSLEEP: e(f"s_sleep {OSLEEP}")
if OMASK:
    e("s_or_b32 s52, vcc_lo, vcc_hi")
    e("s_lshr_b32 s53, s52, 16")
    e("s_or_b32 s52, s52, s53")
    for j in range(4):
        e(f"s_and_b32 s53, s52, {0xF << (4*j):#x}")
        e(f"s_cbranch_scc0 L_os{j}")
        e(f"buffer_load_dwordx4 v11, s[36:39], s54 offen offset:{j*1024} sc1 lds")
        lab(f"L_os{j}")
else: oissue()
lab("L_ochk")
e("s_waitcnt vmcnt(0)")
for k in range(4): e(f"ds_read_b128 v[{G+4*k}:{G+4*k+3}], v{44+k}")
e("s_sub_u32 s45, s45, 1")
e("s_cbranch_scc1 L_ogo")
e("s_waitcnt lgkmcnt(0)")
e(f"v_bitop3_b32 v{ACC}, v{G+3}, v{G+7}, s44 bitop3:0x7e")
e(f"v_bitop3_b32 v{ACC+1}, v{G+11}, v{G+15}, s44 bitop3:0x7e")
e(f"v_or_b32 v{ACC}, v{ACC}, v{ACC+1}")
e(f"v_cmp_ne_u32 vcc, 0, v{ACC}")
e("s_cbranch_vccnz L_opoll")
lab("L_ogo")
e("s_waitcnt lgkmcnt(0)")
rpoint("w_ook")
stamp(5, 2)
e("s_mov_b64 exec, 1")
e(f"ds_add_rtn_u32 v43, v5, v42 offset:{L_OC}")
e("s_mov_b64 exec, -1")
e(f"v_mov_b32 v{G+2}, v{G+4}")
e(f"v_mov_b32 v{G+3}, v{G+5}")
e(f"v_max_f32_dpp v14, v{G+10}, v{G+10} quad_perm:[1,0,3,2] {DPP}")
e(f"v_mov_b32 v10, v{G+10}")
e(f"v_mov_b32 v{G+10}, v{G+12}")
e(f"v_mov_b32 v{G+11}, v{G+13}")
valu = [[f"v_max_f32_dpp v14, v14, v14 quad_perm:[2,3,0,1] {DPP}"],
        [f"v_max_f32_dpp v14, v14, v14 row_half_mirror {DPP}", "v_sub_f32 v10, v10, v14", "v_exp_f32 v10, v10"],
        [f"v_mul_f32 v14, v10, v{G+6}"],
        [f"v_add_f32_dpp v14, v14, v14 quad_perm:[1,0,3,2] {DPP}"],
        [f"v_add_f32_dpp v14, v14, v14 quad_perm:[2,3,0,1] {DPP}"],
        [f"v_add_f32_dpp v14, v14, v14 row_half_mirror {DPP}", "v_rcp_f32 v14, v14"],
        ["v_mul_f32 v10, v10, v14", "v_mov_b32 v14, v10"],
        ["v_mov_b32_dpp v14, v10 row_ror:12 row_mask:0x2 bank_mask:0xf",
         "v_mov_b32_dpp v14, v10 row_ror:8 row_mask:0x4 bank_mask:0xf",
         "v_mov_b32_dpp v14, v10 row_ror:4 row_mask:0x8 bank_mask:0xf"]]
k = 0
for t in range(2):
    for j in range(4):
        r = BF + (j*2+t)*4
        src = "0" if t == 0 else f"v[{ACC+4*j}:{ACC+4*j+3}]"
        e(f"v_mfma_f32_16x16x32_bf16 v[{ACC+4*j}:{ACC+4*j+3}], v[{G+8*t}:{G+8*t+3}], v[{r}:{r+3}], {src}")
        nop(1)
        for x in valu[k]: e(x)
        k += 1
e("s_waitcnt lgkmcnt(0)")
e("v_readfirstlane_b32 s46, v43")
def zreads():
    e(f"ds_read_b32 v43, v5 offset:{L_ZC}")
    for k in range(3): e(f"ds_read_b64 v[{24+2*k}:{25+2*k}], v{113+k} offset:{L_Z}")
zreads()
for r in range(4):
    for j in range(4): e(f"v_fmac_f32_dpp v{6+j}, v14, v{ACC+4*j+r} row_newbcast:{r} {DPP}")
e("s_cmp_eq_u32 s46, 3")
e("v_permlane16_swap_b32 v6, v7")
e("v_permlane16_swap_b32 v8, v9")
e("v_add_f32 v32, v6, v7")
e("v_add_f32 v33, v8, v9")
e("s_cbranch_scc1 L_coll")
e(f"ds_write_b64 v12, v[32:33] offset:{L_Z}")
e("s_mov_b64 exec, 1")
e(f"ds_add_u32 v5, v42 offset:{L_ZC}")
e("s_branch L_wfin")
lab("L_zre")
zreads()
lab("L_coll")
e("s_waitcnt lgkmcnt(0)")
e("v_cmp_gt_u32 vcc, 3, v43")
e("s_cbranch_vccnz L_zre")
e("v_add_f32 v26, v26, v28"); e("v_add_f32 v27, v27, v29")
e("v_add_f32 v32, v32, v24"); e("v_add_f32 v33, v33, v25")
e("v_add_f32 v32, v32, v26"); e("v_add_f32 v33, v33, v27")
e("buffer_store_dwordx4 v[32:35], v13, s[36:39], s56 offen sc1")
if CRED:
    stamp(6, 2)
    e(f"s_mov_b32 s45, {SPIN*4}")
    lab("L_cpoll")
    if FSLEEP: e(f"s_sleep {FSLEEP}")
    e("buffer_load_dwordx4 v[16:19], v116, s[36:39], s88 offen sc1")
    e("s_sub_u32 s45, s45, 1")
    e("s_waitcnt vmcnt(0)")
    e("s_cbranch_scc1 L_cgo")
    e("v_cmpx_ne_u32 vcc, s44, v19")
    e("s_cbranch_execnz L_cpoll")
    lab("L_cgo")
    e("s_mov_b64 exec, -1")
    nop(4)
    e("v_permlane32_swap_b32 v16, v17")
    e("v_add_f32 v16, v16, v17")
    e("v_mov_b32 v17, v16"); nop(2)
    e("v_permlane16_swap_b32 v16, v17")
    e("v_add_f32 v16, v16, v17"); nop(2)
    e(f"v_add_f32_dpp v16, v16, v16 row_ror:8 {DPP}"); nop(2)
    e(f"v_add_f32_dpp v16, v16, v16 row_ror:4 {DPP}")
    e("v_add_f32 v16, v16, v118")
    e("v_cvt_pk_bf16_f32 v16, v16, v16")
    e("s_mov_b32 exec_lo, 15")
    e("s_mov_b32 exec_hi, 15")
    e("buffer_store_short v16, v117, s[40:43], s89 offen")
    stamp(2, 2)
    e(f"s_cmp_lg_u32 s89, {3*896}")
    e("s_cbranch_scc1 L_cne")
    e("s_mov_b64 exec, 1")
    e("buffer_store_dword v34, v5, s[36:39], 0 offen")
    lab("L_cne")
    if STAMPS == 2:
        e("s_and_b32 s3, s3, 12")
        wstamp_flush([(1, 2), (2, 6)], "c")
        e("s_endpgm")
lab("L_wfin")
rpoint("w_pub")
rexit("w")
stamp(6, 2)
if STAMPS == 2:
    e("s_waitcnt vmcnt(0)"); stamp(7, 2)
    e(f"s_sub_u32 s66, {SPIN}, s45"); e("s_mul_i32 s66, s66, 100"); e("s_add_u32 s66, s66, s64"); e("s_mov_b32 s67, s65")
    wstamp_flush([(12, 3), (16, 5), (20, 6), (24, 7), (28, 1)], "w")
stamp_flush(24, 7, 12)
e("s_endpgm")
lab("L_R")
if SO or CRED: e("s_endpgm")
e("s_lshl_b32 s46, s28, 2")
e("s_add_u32 s46, s46, s29")
e("s_sub_u32 s46, s46, 28")
e("s_cmp_ge_u32 s46, 28")
e("s_cbranch_scc1 L_end")
e("s_lshr_b32 s47, s46, 2")
e("s_and_b32 s48, s46, 1")
e("s_bfe_u32 s49, s46, 0x10001")
e("s_mul_i32 s59, s50, 896")
e("s_lshl_b32 s58, s47, 7"); e("s_add_u32 s59, s59, s58")
e("s_lshl_b32 s58, s49, 5"); e("s_add_u32 s59, s59, s58")
e("s_lshl_b32 s58, s48, 4"); e("s_add_u32 s59, s59, s58")
e("v_and_b32 v14, 7, v0")
e("v_lshlrev_b32 v15, 1, v14")
e("v_lshrrev_b32 v11, 5, v0")
e("v_lshl_add_u32 v15, v11, 6, v15")
e("s_mov_b64 s[40:41], s[4:5]"); e("s_mov_b32 s42, 3584"); e("s_mov_b32 s43, 0x20000")
e("buffer_load_ushort v3, v15, s[40:43], s59 offen")
e("s_mov_b64 s[32:33], s[22:23]"); e("s_mov_b32 s34, 3584"); e("s_mov_b32 s35, 0x20000")
if OUTW: e("buffer_load_ushort v121, v15, s[32:35], s59 offen")
e("s_mul_i32 s52, s50, 7")
e("s_add_u32 s52, s52, s47")
e("s_lshl_b32 s52, s52, 1")
e("s_add_u32 s52, s52, s49")
e("s_lshl_b32 s52, s52, 12")
e("s_lshl_b32 s58, s48, 7")
e("s_add_u32 s52, s52, s58")
e(f"s_add_u32 s52, s52, {FBASE}")
e("v_lshrrev_b32 v12, 3, v0")
e("v_lshlrev_b32 v12, 8, v12")
e("v_lshl_add_u32 v12, v14, 4, v12")
MK = 80
R = 16
for i in range(2): e(f"s_mov_b64 s[{MK+2*i}:{MK+2*i+1}], -1")
for i in range(2): e(f"v_mov_b32 v{R+4*i+3}, 0")
lds_wait("rt", 7, 5, L_T, 44, sleep=2)
e("s_waitcnt vmcnt(0)")
e("v_lshlrev_b32 v8, 16, v3")
lds_wait("rv", 14, 5, L_VP, 56, need=4, sleep=2)
e(f"s_mov_b32 s45, {SPIN*4}")
lab("L_fpoll")
if FSLEEP: e(f"s_sleep {FSLEEP}")
for i in range(2):
    e(f"s_mov_b64 exec, s[{MK+2*i}:{MK+2*i+1}]")
    e(f"s_cbranch_execz L_fs{i}")
    e(f"buffer_load_dwordx4 v[{R+4*i}:{R+4*i+3}], v12, s[36:39], s52 offen offset:{i*2048} sc1")
    lab(f"L_fs{i}")
e("s_mov_b64 exec, -1")
e("s_sub_u32 s45, s45, 1")
e(f"s_waitcnt vmcnt({FDEP})")
e("s_cbranch_scc1 L_fgo")
for i in range(2): e(f"v_cmp_ne_u32 s[{MK+2*i}:{MK+2*i+1}], s44, v{R+4*i+3}")
e(f"s_or_b64 s[56:57], s[{MK}:{MK+1}], s[{MK+2}:{MK+3}]")
e("s_cbranch_scc1 L_fpoll")
lab("L_fgo")
e("s_waitcnt vmcnt(0)")
e(f"v_add_f32 v{R}, v{R}, v{R+4}");  e(f"v_add_f32 v{R+1}, v{R+1}, v{R+5}")
nop(2)
e(f"v_permlane32_swap_b32 v{R}, v{R+1}")
e(f"v_add_f32 v{R}, v{R}, v{R+1}")
e(f"v_mov_b32 v{R+1}, v{R}"); nop(2)
e(f"v_permlane16_swap_b32 v{R}, v{R+1}")
e(f"v_add_f32 v{R}, v{R}, v{R+1}"); nop(2)
e(f"v_add_f32_dpp v{R}, v{R}, v{R} row_ror:8 {DPP}")
e(f"v_add_f32 v8, v8, v{R}")
e("v_cvt_pk_bf16_f32 v8, v8, v8")
e("s_mov_b32 exec_lo, 0xff")
e("s_mov_b32 exec_hi, 0xff")
e(f"buffer_store_short v8, v15, s[32:35], s59 offen {OUTPOL}")
stamp(7, 2)
if STAMPS == 2:
    e("v_mov_b32 v20, v5")
    e(f"s_sub_u32 s66, {SPIN*4}, s45"); e("s_mul_i32 s66, s66, 100"); e("s_add_u32 s66, s66, s64"); e("s_mov_b32 s67, s65")
    wstamp_flush([(20, 7), (28, 1)], "r")
    e("v_mov_b32 v5, 0")
if PADTO:
    e("s_memrealtime s[66:67]"); e("s_waitcnt lgkmcnt(0)")
    e("s_sub_u32 s68, s66, s64"); e(f"s_mul_i32 s68, s68, {REPORT}"); e(f"s_add_u32 s68, s68, {PADTO}")
    lab("L_pad")
    e("s_memrealtime s[66:67]"); e("s_waitcnt lgkmcnt(0)")
    e("s_sub_u32 s69, s66, s64"); e("s_cmp_lt_u32 s69, s68"); e("s_cbranch_scc1 L_pad")
e(f"s_cmp_lg_u32 s59, {3*896}")
e("s_cbranch_scc1 L_wend")
e("s_mov_b64 exec, 1")
e("buffer_store_dword v7, v5, s[36:39], 0 offen")
lab("L_wend")
if STAMPS == 1:
    e("s_mov_b64 s[64:65], s[78:79]")
stamp_flush(31, 1, 12, "r")
lab("L_end")
e("s_endpgm")

ref = open('parallel_sum__sliding_block_cached__dense_activation_mish__decode.s.ref').read().split('\n')
hdr = [l for l in ref if l.startswith(';') and '@launch' not in l]
print("\n".join(hdr))
print(f"; @launch grid=(256,1,1) block=(1024,1,1) lds={LDS_BYTES}")
print(f""".amdgcn_target "amdgcn-amd-amdhsa--gfx950"
.text
.globl {NAME}
.p2align {ALIGN}
.p2align 8
.type {NAME},@function
{NAME}:""")
print("\n".join(L))
print(f""".section .rodata,"a"
.p2align 6
.amdhsa_kernel {NAME}
  .amdhsa_next_free_vgpr 128
  .amdhsa_next_free_sgpr 100
  .amdhsa_accum_offset 128
  .amdhsa_group_segment_fixed_size 0
  .amdhsa_kernarg_size 96
  .amdhsa_user_sgpr_count 2
  .amdhsa_user_sgpr_kernarg_segment_ptr 1
  .amdhsa_system_sgpr_workgroup_id_x 1
.end_amdhsa_kernel""")
```

```python
import sys, math, struct
NAME = "parallel_sum__sliding_block_cached__dense_activation_mish__decode_kernel"
opts = dict(a.split('=') for a in sys.argv[1:] if '=' in a)
STAMPS = int(opts.get('stamps', 0))
ROT = int(opts.get('rot', 2))
PPOL = opts.get('ppol', 'nt').replace('_', ' ')
WPOL = opts.get('wpol', '').replace('_', ' ')
KVPOL = opts.get('kvpol', 'nt').replace('_', ' ')
SPIN = int(opts.get('spin', 40000))
NCAP = int(opts.get('ncap', 6))
WPRE = int(opts.get('wpre', 0))
WPOS = int(opts.get('wpos', 10))
DUAL = int(opts.get('dual', 1))
PREW = int(opts.get('prew', 1))
SO = int(opts.get('so', 0))
UNTH = int(opts.get('unth', 1))
TLBW = int(opts.get('tlbw', 1))
ALIGN = int(opts.get('align', 12))
PADTO = int(opts.get('padto', 0))
REPORT = int(opts.get('report', 0))
PADWG = int(opts.get('padwg', -1))
REP = opts.get('rep', '')
def rpoint(name):
    if REP == name:
        e("s_memrealtime s[66:67]"); e("s_waitcnt lgkmcnt(0)")
def rexit(role):
    if REP.startswith(role + "_"):
        e("s_sub_u32 s68, s66, s64"); e("s_add_u32 s68, s68, 4000")
        lab("L_rx")
        e("s_memrealtime s[66:67]"); e("s_waitcnt lgkmcnt(0)")
        e("s_sub_u32 s69, s66, s64"); e("s_cmp_lt_u32 s69, s68"); e("s_cbranch_scc1 L_rx")
def fhex(x): return "%#x" % struct.unpack('<I', struct.pack('<f', x))[0]
L = []
def e(s): L.append("    " + s)
def lab(s): L.append(s + ":")
def nop(n):
    if n > 0: e(f"s_nop {n-1}")
DPP = "row_mask:0xf bank_mask:0xf"
QBASE, HBASE, FBASE, OBASE, ALT, WSN = 0x1000, 0x21000, 0x40000, 0x180000, 0, 0x200000
VSIG = int(opts.get('vsig', 15))
L_T, L_QF, L_EF, L_XF, L_KF, L_VI, L_KCR, L_PL, L_ST, L_XS, L_MB = 0, 4, 8, 12, 16, 32, 48, 64, 80, 128, 192
L_OC, L_VP, L_ZC = 112, 116, 124
L_Z = 0x1400
LATEB = int(opts.get('lateb', 1))
FDEP = int(opts.get('fdep', 0))
L_VD = 120
XBASE = 0x30000
BTO = int(opts.get('bto', 48))
QDEP = int(opts.get('qdep', 1))
CBX = int(opts.get('cbx', 0))
DRY = int(opts.get('dry', 0))
MERGE = int(opts.get('merge', 1))
CUT = int(opts.get('cut', 0))
CPF = int(opts.get('cpf', 1))
NOX = int(opts.get('nox', 0))
REMAP = int(opts.get('remap', 1))
ATOM = int(opts.get('atom', 1))
VTP = int(opts.get('vtp', 99))
VTC = int(opts.get('vtc', 5))
WCAP = int(opts.get('wcap', 0))
KUN = int(opts.get('kun', 0))
LAT = int(opts.get('lat', 1))
C3 = int(opts.get('c3', 0))
LROT = opts.get('lrot', '0')
PPF = int(opts.get('ppf', 6))
PFPOL = opts.get('pfpol', '').replace('_', ' ')
NOUSIG = int(opts.get('nousig', 6))
OEARLY = int(opts.get('oearly', 9))
FSLEEP = int(opts.get('fsleep', 1))
OMASK = int(opts.get('omask', 1))
NOP_ = int(opts.get('nop', 0))
NOW_ = int(opts.get('now', 0))
KPRE = int(opts.get('kpre', 1))
OUTW = int(opts.get('outw', 1))
OUTPOL = opts.get('outpol', '').replace('_', ' ')
PCONT = int(opts.get('pcont', 0))
WCONT = int(opts.get('wcont', 0))
OSLEEP = int(opts.get('osleep', 0))
NOTAB = int(opts.get('notab', 0))
CRED = int(opts.get('cred', 0))
CAPL = int(opts.get('capl', 0))
L_SC, L_ONES, L_QS, L_X, L_PW, L_WW, L_OG = 0x100, 0x500, 0x900, 0x1400, 0x2400, 0x9400, 0x15400
LDS_BYTES = 0x19400
def stamp(slot, lvl=1):
    if STAMPS == 1 or (STAMPS == 2 and lvl == 2):
        e(f"s_memrealtime s[{64+2*slot}:{65+2*slot}]")
        e("s_waitcnt lgkmcnt(0)")
def stamp_flush(base, n, cond_wave, sfx=""):
    if STAMPS != 1: return
    lbl = f"L_sf{base}{sfx}"
    e(f"s_cmp_lg_u32 s3, {cond_wave}")
    e(f"s_cbranch_scc1 {lbl}")
    e("s_lshl_b32 s60, s2, 8")
    e(f"s_add_u32 s60, s60, {0x8000000 + base*8}")
    e("s_add_u32 s62, s26, s60")
    e("s_addc_u32 s63, s27, 0")
    e("s_mov_b64 exec, 1")
    e("v_mov_b32 v2, 0")
    for i in range(n):
        e(f"v_mov_b32 v4, s{64+2*i}")
        e(f"v_mov_b32 v5, s{65+2*i}")
        e(f"global_store_dwordx2 v2, v[4:5], s[62:63] offset:{8*i}")
        nop(1)
    lab(lbl)
def wstamp_flush(pairs, sfx):
    e("s_lshl_b32 s60, s2, 8")
    e("s_and_b32 s61, s3, 3"); e("s_lshl_b32 s61, s61, 3"); e("s_add_u32 s60, s60, s61")
    e(f"s_add_u32 s60, s60, {0x8000000}")
    e("s_add_u32 s62, s26, s60")
    e("s_addc_u32 s63, s27, 0")
    e("s_mov_b64 exec, 1")
    e("v_mov_b32 v2, 0")
    for base, i in pairs:
        e(f"v_mov_b32 v4, s{64+2*i}")
        e(f"v_mov_b32 v5, s{65+2*i}")
        e(f"global_store_dwordx2 v2, v[4:5], s[62:63] offset:{8*base}")
        nop(1)
def ws_srd():
    e("s_mov_b64 s[36:37], s[26:27]"); e(f"s_mov_b32 s38, {WSN}"); e("s_mov_b32 s39, 0x20000")
def lds_wait(tag, vt, vz, off, sdst, need=1, sleep=0, bound=None):
    e(f"s_mov_b32 s45, {bound if bound else SPIN*8}")
    lab(f"L_lw{tag}")
    if sleep: e(f"s_sleep {sleep}")
    e(f"ds_read_b32 v{vt}, v{vz} offset:{off}")
    e("s_sub_u32 s45, s45, 1")
    e("s_cbranch_scc1 L_lwd" + tag)
    e("s_waitcnt lgkmcnt(0)")
    e(f"v_readfirstlane_b32 s{sdst}, v{vt}")
    e(f"s_cmp_lt_u32 s{sdst}, {need}")
    e(f"s_cbranch_scc1 L_lw{tag}")
    lab(f"L_lwd{tag}")
cw_n = [0]
def credit_wait(need, vaddr, vt, sc):
    cw_n[0] += 1; n = cw_n[0]
    lab(f"L_cw{n}")
    e(f"s_cmp_ge_u32 s{sc}, {need}")
    e(f"s_cbranch_scc1 L_cwd{n}")
    if need == 1: e("s_sleep 1")
    e(f"ds_read_b32 v{vt}, v{vaddr}")
    e("s_waitcnt lgkmcnt(0)")
    e(f"v_readfirstlane_b32 s{sc}, v{vt}")
    e(f"s_branch L_cw{n}")
    lab(f"L_cwd{n}")
lc_n = [0]
def light_flag():
    if not CAPL: return
    e("s_sub_u32 s87, s29, 25")
    e("s_cmp_lt_u32 s87, 3")
    e("s_cselect_b64 vcc, -1, 0")
    e("s_cmp_lt_u32 s29, 16")
    e("s_cselect_b64 vcc, -1, vcc")
def light_wait():
    if not CAPL: return
    lc_n[0] += 1
    e(f"s_cbranch_vccnz L_lc{lc_n[0]}")
    e(f"s_waitcnt vmcnt({CAPL-1})")
    lab(f"L_lc{lc_n[0]}")
def kv_base():
    if LAT:
        e("s_lshl_b32 s46, s30, 3")
        e("s_add_u32 s46, s46, s28")
        e("s_lshl_b32 s47, s46, 21")
        e("s_add_u32 s47, s47, 0x180000")
        if LROT == 'b4': e("s_lshl_b32 s49, s30, 2")
        elif LROT == '0': e("s_mov_b32 s49, 0")
        elif LROT == 'bk': e("s_lshl_b32 s49, s30, 2"); e("s_add_u32 s49, s49, s28")
        elif LROT == 'k2': e("s_lshl_b32 s49, s28, 1")
        return
    e("s_lshl_b32 s46, s30, 3")
    e("s_add_u32 s46, s46, s28")
    e("s_lshl_b32 s47, s46, 21")
    e("s_lshl_b32 s48, s31, 16")
    e("s_add_u32 s47, s47, s48")
    e("s_add_u32 s47, s47, 0x180000")
    if ROT == 0: e("s_mov_b32 s49, 0")
    elif ROT == 1: e("s_mul_i32 s49, s2, 37")
    elif ROT == 2: e("s_mov_b32 s49, s29")
    elif ROT == 3: e("s_mul_i32 s49, s2, 5"); e("s_add_u32 s49, s49, s29")
    elif ROT == 4: e("s_mov_b32 s49, s31")
    elif ROT == 5: e("s_mul_i32 s49, s30, 3"); e("s_add_u32 s49, s49, s31"); e("s_add_u32 s49, s49, s28")
    e("s_lshl_b32 s49, s49, 12")
def unit_params():
    if REMAP:
        e("s_lshr_b32 s51, 0x300000c0, s29")
        e("s_and_b32 s51, s51, 1")
        e("s_mul_i32 s51, s51, 26")
        e("s_xor_b32 s59, s29, s51")
        e("s_mul_i32 s52, s28, 5")
        e("s_add_u32 s52, s52, s59")
        e("s_sub_u32 s52, s52, 25")
        e("s_mul_i32 s53, s52, 43")
        e("s_lshr_b32 s53, s53, 8")
        e("s_lshl_b32 s53, s53, 1")
        e("s_add_u32 s52, s52, s53")
        e("s_lshl_b32 s53, s28, 3")
        e("s_add_u32 s53, s53, s59")
        e("s_sub_u32 s53, s53, 24")
        e("s_cmp_lt_u32 s53, 56")
        e("s_cselect_b32 s53, s53, s52")
        e("s_cmp_ge_u32 s59, 30")
        e("s_cselect_b32 s52, s53, s52")
        e("s_lshl_b32 s53, s28, 4")
        e("s_add_u32 s53, s53, s59")
        e("s_cmp_ge_u32 s59, 25")
        e("s_cselect_b32 s51, 2, 0")
        e("s_cmp_lt_u32 s59, 16")
        e("s_cselect_b32 s51, 1, s51")
        e("s_cselect_b32 s52, s53, s52")
        e("s_and_b32 s53, s52, 1")
        e("s_lshr_b32 s52, s52, 1")
        return
    e("s_mul_i32 s52, s28, 7")
    e("s_add_u32 s52, s52, s29")
    e("s_sub_u32 s52, s52, 25")
    e("s_lshl_b32 s53, s28, 4")
    e("s_add_u32 s53, s53, s29")
    if CBX: e(f"s_xor_b32 s53, s53, {CBX*2}")
    e("s_cmp_ge_u32 s29, 25")
    e("s_cselect_b32 s51, 2, 0")
    e("s_cmp_lt_u32 s29, 16")
    e("s_cselect_b32 s51, 1, s51")
    e("s_cselect_b32 s52, s53, s52")
    e("s_and_b32 s53, s52, 1")
    e("s_lshr_b32 s52, s52, 1")

if STAMPS or PADTO or PADWG >= 0 or REP: e("s_memrealtime s[64:65]")
e("s_cmp_ge_u32 s2, 256")
e("s_cbranch_scc1 L_end")
e("s_load_dwordx16 s[4:19], s[0:1], 0")
e("s_load_dwordx8 s[20:27], s[0:1], 64")
e("v_lshrrev_b32 v1, 6, v0")
e("v_and_b32 v0, 63, v0")
e("s_and_b32 s28, s2, 7")
e("v_readfirstlane_b32 s3, v1")
e("s_lshr_b32 s29, s2, 3")
e("s_lshr_b32 s30, s29, 3")
e("s_and_b32 s31, s29, 7")
e("v_lshrrev_b32 v1, 4, v0")
e("v_and_b32 v2, 15, v0")
e("s_and_b32 s50, s3, 3")
e("v_mov_b32 v5, 0")
e("s_cmp_lt_u32 s3, 8")
e("s_cbranch_scc1 L_lt8")
e("s_getpc_b64 s[40:41]")
lab("L_pc")
e("v_lshlrev_b32 v3, 2, v0")
e("ds_write_b32 v3, v5")
e("s_mul_i32 s46, s3, 1280")
e(f"s_sub_u32 s46, s46, {8*1280-1024}")
e("v_lshl_add_u32 v3, v0, 7, s46")
e("v_min_u32 v3, L_end-L_pc, v3")
if CPF == 2:
    e("s_cmp_lt_u32 s29, 28")
    e("s_cbranch_scc1 L_nocpf")
if CPF:
    e("s_mov_b64 exec, 0x3ff")
    e("global_load_dword v120, v3, s[40:41]")
    e("s_mov_b64 exec, -1")
lab("L_nocpf")
e("s_waitcnt lgkmcnt(0)")
e("s_barrier")
e("s_branch L_VW")
lab("L_lt8")
e("s_cmp_ge_u32 s3, 4")
e("s_cbranch_scc1 L_K")
e("v_lshlrev_b32 v13, 4, v0")
e("s_mov_b32 s42, 3584"); e("s_mov_b32 s43, 0x20000")
e(f"s_mov_b32 m0, {L_X}")
e("s_waitcnt lgkmcnt(0)")
e("s_mov_b64 s[40:41], s[4:5]")
e("s_cmp_eq_u32 s3, 3")
e("s_cbranch_scc0 L_Pn3")
for i in range(4):
    if not NOX: e(f"buffer_load_dwordx4 v13, s[40:43], 0 offen offset:{i*1024} lds")
lab("L_Pn3")
e("s_load_dword s44, s[26:27], 0")
e("s_barrier")
e("s_branch L_P")
lab("L_K")
unit_params()
e("s_cmp_lg_u32 s51, 2")
e("s_cselect_b32 s54, 16, 7")
e("s_lshl_b32 s54, s54, 9")
e("v_lshrrev_b32 v3, 3, v0")
e("v_mul_u32_u24 v3, s54, v3")
e("v_and_b32 v4, 7, v0")
e("v_bfe_u32 v6, v0, 4, 1")
e("v_lshlrev_b32 v6, 1, v6")
e("v_xor_b32 v4, v4, v6")
e("s_and_b32 s55, s50, 1")
e("s_lshl_b32 s55, s55, 2")
e("v_xor_b32 v4, s55, v4")
e("v_lshl_add_u32 v4, v4, 4, v3")
e("s_mul_i32 s55, s53, 224")
e("s_lshl_b32 s56, s50, 3")
e("s_add_u32 s55, s55, s56")
e("s_mul_i32 s55, s55, s54")
e("s_lshl_b32 s56, s52, 7")
e("s_add_u32 s55, s55, s56")
e("s_lshl_b32 s56, s54, 5")
if PCONT:
    e("v_lshlrev_b32 v4, 4, v0")
    e("s_lshl_b32 s55, s52, 1"); e("s_add_u32 s55, s55, s53"); e("s_mul_i32 s55, s55, 28672")
    e("s_lshl_b32 s56, s50, 10"); e("s_add_u32 s55, s55, s56"); e("s_mov_b32 s56, 4096")
e("s_mul_i32 s42, s54, 448")
e("s_mov_b32 s43, 0x20000")
e("s_lshl_b32 s57, s50, 10")
e(f"s_add_u32 m0, s57, {L_PW}")
kv_base()
if LAT:
    e("s_lshr_b32 s57, s50, 1")
    e("s_add_u32 s49, s49, s57")
    e("s_add_u32 s48, s49, s31")
    e("s_lshl_b32 s48, s48, 12")
    e("s_lshl_b32 s49, s49, 15")
    e("s_and_b32 s57, s50, 1")
    e("s_lshl_b32 s57, s57, 11")
    e("s_add_u32 s47, s47, s57")
else:
    e("s_lshl_b32 s57, s50, 11")
    e("s_add_u32 s49, s49, s57")
e("v_lshrrev_b32 v3, 2, v2")
e("v_lshlrev_b32 v3, 9, v3")
e("v_lshl_add_u32 v3, v1, 6, v3")
e("v_and_b32 v6, 3, v0")
e("v_lshl_add_u32 v3, v6, 4, v3")
e(f"s_mov_b32 s34, {0x80000 if LAT else 0x10000}")
e("s_mov_b32 s35, 0x20000")
e("s_lshl_b32 s58, s50, 2")
e("v_mov_b32 v9, s58")
e("v_mov_b32 v8, 1")
e("s_cmp_lg_u32 s51, 2")
e("s_waitcnt lgkmcnt(0)")
e("s_cselect_b64 s[40:41], s[10:11], s[16:17]")
e("s_add_u32 s32, s6, s47")
e("s_addc_u32 s33, s7, 0")
DV = 64
def kload(i):
    j, lo = i >> 1, i & 1
    if lo == 0 and LAT:
        if j: e("s_add_u32 s49, s49, 65536"); e("s_add_u32 s48, s48, 8192")
        e("s_and_b32 s54, s49, 0x7ffff")
        e("s_and_b32 s46, s48, 0x7fff")
        e("s_or_b32 s54, s54, s46")
    elif lo == 0:
        if j: e(f"s_add_u32 s49, s49, 8192")
        e("s_and_b32 s54, s49, 0xffff")
    return f"buffer_load_dwordx4 v[{DV+4*i}:{DV+4*i+3}], v3, s[32:35], s54 offen offset:{lo*256} {KVPOL}"
light_flag()
if NOP_: e("s_mov_b32 s51, 0")
e("s_cmp_eq_u32 s51, 0")
e("s_cbranch_scc1 L_Knou")
if C3:
    e("s_sub_u32 s58, s29, 8")
    e("s_cmp_lt_u32 s58, 8")
    e("s_cbranch_scc0 L_noc3")
    e("s_lshl_b32 s58, s58, 2")
    e("s_add_u32 s58, s58, s50")
    e("s_and_b32 s59, s58, 15")
    e("s_lshl_b32 s59, s59, 3")
    e("s_lshr_b32 s58, s58, 4")
    e("s_mul_i32 s58, s58, 224")
    e("s_add_u32 s58, s58, s59")
    e("s_lshl_b32 s58, s58, 13")
    e("s_lshl_b32 s59, s28, 10")
    e("s_add_u32 s58, s58, s59")
    e(f"buffer_load_dwordx4 v[{DV}:{DV+3}], v4, s[40:43], s58 offen offset:384")
    lab("L_noc3")
for t in range(7):
    if t:
        e("s_add_u32 m0, m0, 4096")
        e("s_add_u32 s55, s55, s56")
    e(f"buffer_load_dwordx4 v4, s[40:43], s55 offen {PPOL} lds")
    if t == 6 and not KPRE: e("s_barrier")
for i in range(NCAP):
    ld = kload(i)
    if KPRE and i == KPRE: e("s_barrier")
    if 7 + i >= NCAP and i >= KPRE: e(f"s_waitcnt vmcnt({NCAP-1})")
    if i == NCAP - 1: e(f"ds_write_b32 v9, v8 offset:{L_PL}")
    e(ld)
e("s_branch L_Kc")
lab("L_Knou")
if PPF:
    e("s_sub_u32 s55, s29, 16")
    e("s_lshl_b32 s55, s55, 2")
    e("s_add_u32 s55, s55, s50")
    e(f"s_mul_i32 s56, s55, {PPF}")
    e("s_cmp_ge_u32 s55, 18")
    e(f"s_cselect_b32 s57, {224 - 18*PPF}, 0")
    e("s_add_u32 s56, s56, s57")
    e(f"s_add_u32 s56, s56, {224 - 18*PPF}")
    e("s_lshl_b32 s56, s56, 13")
    e("s_lshl_b32 s57, s28, 10")
    e("s_add_u32 s56, s56, s57")
    e("v_lshlrev_b32 v4, 4, v0")
    for j in range(PPF):
        if j: e("s_add_u32 s56, s56, 8192")
        e(f"buffer_load_dwordx4 v[{DV+4*j}:{DV+4*j+3}], v4, s[40:43], s56 offen {PFPOL}")
    e("s_barrier")
    for i in range(NCAP):
        ld = kload(i)
        if PPF + i >= NCAP: e(f"s_waitcnt vmcnt({NCAP-1})")
        e(ld)
else:
    for i in range(NCAP): e(kload(i))
    e("s_barrier")
lab("L_Kc")
rpoint("k_6")
stamp(1)
for i in range(NCAP, 16):
    ld = kload(i)
    e(f"s_waitcnt vmcnt({NCAP-1})")
    light_wait()
    if i == NOUSIG: e(f"ds_write_b32 v9, v8 offset:{L_PL}")
    e(ld)
stamp(2)
for k in range(NCAP):
    e(f"v_mov_b32 v8, {k+1}")
    e(f"s_waitcnt vmcnt({NCAP-1-k})")
    e(f"ds_write_b32 v9, v8 offset:{L_KCR}")
rpoint("k_land")
if SO:
    stamp(3); stamp(4); stamp_flush(8, 5, 4, "so"); e("s_endpgm")
e("v_bfe_u32 v18, v0, 2, 1")
e("v_lshlrev_b32 v7, 9, v18")
e("v_lshl_add_u32 v7, v1, 6, v7")
e("s_lshr_b32 s56, s50, 1")
e("s_lshl_b32 s58, s56, 5")
e("s_and_b32 s57, s50, 1")
e("s_lshl_b32 s57, s57, 8")
e("s_add_u32 s57, s58, s57")
e("v_add_u32 v7, s57, v7")
e("v_mov_b32 v16, v9")
e("v_mov_b32 v17, 1")
e("v_lshlrev_b32 v18, 5, v18")
e("s_lshl_b32 s57, s50, 3")
e("v_add_u32 v19, s57, v18")
e("v_add_u32 v6, v9, v18")
e(f"s_mov_b32 s59, {fhex(math.log2(math.e)/16)}")
lds_wait("k", 8, 5, L_QF, 44, sleep=1)
e(f"ds_read_b128 v[8:11], v3 offset:{L_QS}")
e(f"ds_read_b128 v[12:15], v3 offset:{L_QS+256}")
e("s_waitcnt lgkmcnt(0)")
rpoint("k_q")
stamp(3)
AC = 24
def extr(j):
    return [f"v_mov_b32_dpp v{56+j}, v{AC+4*j} quad_perm:[0,0,0,0] {DPP}"] + \
           [f"v_add_f32_dpp v{56+j}, v{AC+4*j+r}, v{56+j} quad_perm:[{r},{r},{r},{r}] {DPP}" for r in (1, 2, 3)]
chains = {j: extr(j) + [f"v_add_f32_dpp v{56+j}, v{56+j}, v{56+j} row_ror:8 {DPP}"] for j in range(8)}
ready = {j: 10**9 for j in range(8)}
pos = [0]
def em(x): e(x); pos[0] += 1
def fill(n, force=False):
    for _ in range(n):
        cand = [j for j in range(8) if chains[j] and ready[j] <= pos[0]]
        if not cand:
            if force: em("s_nop 0")
            continue
        j = cand[0]; em(chains[j].pop(0)); ready[j] = pos[0] + 2
for j in range(8):
    em(f"v_mfma_f32_16x16x32_bf16 v[{AC+4*j}:{AC+4*j+3}], v[{DV+8*j}:{DV+8*j+3}], v[8:11], 0")
    fill(2, True)
    em(f"v_mfma_f32_16x16x32_bf16 v[{AC+4*j}:{AC+4*j+3}], v[{DV+8*j+4}:{DV+8*j+7}], v[12:15], v[{AC+4*j}:{AC+4*j+3}]")
    ready[j] = pos[0] + 8
    fill(2, True)
while any(chains.values()): fill(1, True)
e("v_max3_f32 v12, v56, v57, v58")
e("v_max3_f32 v12, v12, v59, v60")
e("v_max3_f32 v12, v12, v61, v62")
e("v_max_f32 v12, v12, v63")
e("v_mov_b32 v14, v12"); nop(2)
e("v_permlane32_swap_b32 v12, v14")
e("v_max_f32 v12, v12, v14")
e("v_mov_b32 v14, v12"); nop(2)
e("v_permlane16_swap_b32 v12, v14")
e("v_max_f32 v12, v12, v14")
e("v_mov_b32 v13, 1")
e(f"ds_write_b64 v19, v[12:13] offset:{L_MB}")
e(f"s_mov_b32 s45, {SPIN*8}")
lab("L_kx")
e(f"ds_read_b128 v[20:23], v18 offset:{L_MB}")
e(f"ds_read_b128 v[24:27], v18 offset:{L_MB+16}")
e("s_sub_u32 s45, s45, 1")
e("s_cbranch_scc1 L_kxd")
e("s_waitcnt lgkmcnt(0)")
e("v_and_b32 v14, v21, v23")
e("v_and_b32 v15, v25, v27")
e("v_and_b32 v14, v14, v15")
e("v_cmp_eq_u32 vcc, 0, v14")
e("s_cbranch_vccnz L_kx")
lab("L_kxd")
e("v_max3_f32 v12, v20, v22, v24")
e("v_max_f32 v12, v12, v26")
e("v_mul_f32 v12, s59, v12")
for i in range(8): e(f"v_fma_f32 v{56+i}, v{56+i}, s59, -v12")
for i in range(8): e(f"v_exp_f32 v{56+i}, v{56+i}")
nop(1)
e("v_add_f32 v13, v56, v57")
for i in range(2, 8): e(f"v_add_f32 v13, v13, v{56+i}")
for i in range(8): e(f"v_cvt_pk_bf16_f32 v{56+i}, v{56+i}, v{56+i}")
e("v_mov_b32 v15, v13"); nop(2)
e("v_permlane32_swap_b32 v13, v15")
e("v_add_f32 v13, v13, v15")
e("v_mov_b32 v15, v13"); nop(2)
e("v_permlane16_swap_b32 v13, v15")
e("v_add_f32 v13, v13, v15")
e("s_mov_b32 exec_lo, 0x00110011")
e("s_mov_b32 exec_hi, 0x00110011")
e(f"ds_write_b128 v7, v[56:59] offset:{L_SC}")
e(f"ds_write_b128 v7, v[60:63] offset:{L_SC+16}")
e(f"ds_write_b32 v6, v12 offset:{L_XS}")
e(f"ds_write_b32 v6, v13 offset:{L_XS+16}")
e("s_mov_b64 exec, 1")
e("s_waitcnt lgkmcnt(0)")
e(f"ds_write_b32 v16, v17 offset:{L_KF}")
rpoint("k_done")
rexit("k")
stamp(4)
stamp_flush(8, 5, 4)
e("s_endpgm")

lab("L_P")
if SO:
    if SO == 2:
        e("v_mov_b32 v24, 1"); e(f"ds_write_b32 v5, v24 offset:{L_QF}")
    stamp_flush(0, 1, 0, "so"); e("s_endpgm")
unit_params()
ws_srd()
e("s_waitcnt lgkmcnt(0)")
e("s_cmp_eq_u32 s3, 1")
e("s_cbranch_scc0 L_Pm1")
e("s_mul_i32 s44, s44, 0x9E3779B5")
e("s_add_u32 s44, s44, 0x7F4A7C15")
e("s_cmp_eq_u32 s44, 0")
e("s_cselect_b32 s44, 0x7F4A7C15, s44")
e("v_mov_b32 v24, s44")
e(f"ds_write_b32 v5, v24 offset:{L_T}")
e("s_getreg_b32 s46, hwreg(HW_REG_XCC_ID)")
e("s_and_b32 s46, s46, 15")
e("s_lshl_b32 s47, s28, 12")
e("s_lshl_b32 s48, s29, 7")
e("s_add_u32 s48, s48, s47")
e(f"s_add_u32 s48, s48, {XBASE}")
e("v_mov_b32 v8, s46"); e("v_mov_b32 v9, s44"); e("v_mov_b32 v10, s46"); e("v_mov_b32 v11, s44")
e("s_mov_b64 exec, 0xff")
if not NOTAB: e("buffer_store_dwordx4 v[8:11], v13, s[36:39], s48 offen sc1")
e("s_mov_b64 exec, -1")
lab("L_Pm1")
e("s_cmp_eq_u32 s51, 0")
e("s_cbranch_scc1 L_Pdone")
e("s_cmp_eq_u32 s3, 3")
e("s_cbranch_scc0 L_Pm3")
e("v_mov_b32 v16, 0x3f803f80"); e("v_mov_b32 v17, v16"); e("v_mov_b32 v18, v16"); e("v_mov_b32 v19, v16")
e(f"ds_write_b128 v13, v[16:19] offset:{L_ONES}")
e("v_and_b32 v15, 3, v0")
e("v_mul_u32_u24 v12, 896, v15")
e("v_lshrrev_b32 v14, 2, v0")
e("v_lshl_add_u32 v12, v14, 6, v12")
e("v_cmp_gt_u32 vcc, 14, v14")
e("v_mov_b32 v14, 3584")
e("v_lshlrev_b32 v15, 3, v15")
e("v_cndmask_b32 v12, v14, v12, vcc")
e("v_mov_b32 v36, 0"); e("v_mov_b32 v37, 0")
e("s_waitcnt vmcnt(0)")
for i in range(4): e(f"ds_read_b128 v[{20+4*i}:{23+4*i}], v12 offset:{L_X+16*i}")
e("s_waitcnt lgkmcnt(0)")
for i in range(16):
    e(f"v_dot2c_f32_bf16 v36, v{20+i}, v16")
    e(f"v_dot2c_f32_bf16 v37, v{20+i}, v{20+i}")
nop(4)
for sh in (4, 8):
    e(f"v_add_f32_dpp v36, v36, v36 row_ror:{sh} {DPP}")
    e(f"v_add_f32_dpp v37, v37, v37 row_ror:{sh} {DPP}")
    nop(2)
for sw in ("16", "32"):
    e("v_mov_b32 v38, v36"); e("v_mov_b32 v39, v37"); nop(2)
    e(f"v_permlane{sw}_swap_b32 v36, v38")
    e(f"v_permlane{sw}_swap_b32 v37, v39")
    e("v_add_f32 v36, v36, v38"); e("v_add_f32 v37, v37, v39")
e(f"v_mul_f32 v36, {fhex(1.0/448)}, v36")
e(f"v_mul_f32 v37, {fhex(1.0/448)}, v37")
e("v_fma_f32 v37, -v36, v36, v37")
e("v_max_f32 v37, 0, v37")
e(f"v_add_f32 v37, {fhex(1e-5)}, v37")
e("v_rsq_f32 v37, v37")
e("v_sub_f32 v36, 0, v36")
e("v_mov_b32 v40, 1")
e(f"ds_write_b64 v15, v[36:37] offset:{L_ST}")
e("s_waitcnt lgkmcnt(0)")
e(f"ds_write_b32 v5, v40 offset:{L_XF}")
lab("L_Pm3")
stamp(1)
e("v_lshlrev_b32 v10, 10, v1")
e("v_lshrrev_b32 v11, 2, v2")
e("v_lshl_add_u32 v10, v11, 7, v10")
e("v_and_b32 v11, 3, v0")
e("v_lshl_add_u32 v10, v11, 3, v10")
e("v_lshlrev_b32 v12, 3, v11")
e("v_bfe_u32 v11, v0, 3, 2")
e("v_xor_b32 v11, s3, v11")
e("v_lshl_add_u32 v6, v11, 5, v10")
e("v_mul_u32_u24 v14, 896, v2")
e("s_mul_i32 s54, s53, 448")
e(f"s_add_u32 s54, s54, {L_X}")
e("v_add_u32 v14, s54, v14")
e("v_cmp_gt_u32 vcc, 4, v2")
e(f"v_mov_b32 v15, {L_ONES}"); nop(1)
e("v_cndmask_b32 v14, v15, v14, vcc")
e("v_lshl_add_u32 v14, v1, 4, v14")
e("v_and_b32 v10, 3, v0")
e("v_lshlrev_b32 v10, 6, v10")
e("v_and_b32 v11, 12, v0")
e("v_add_u32 v10, v10, v11")
e("s_and_b32 s54, s52, 7")
e("s_lshl_b32 s54, s54, 8")
e("s_lshl_b32 s55, s53, 11")
e("s_add_u32 s54, s54, s55")
e("s_lshl_b32 s55, s3, 6")
e("s_add_u32 s54, s54, s55")
e("s_lshl_b32 s55, s28, 14")
e("s_add_u32 s54, s54, s55")
e(f"s_add_u32 s54, s54, {QBASE}")
e("s_lshl_b32 s55, s52, 11")
e("s_lshl_b32 s56, s53, 10")
e("s_add_u32 s55, s55, s56")
e(f"s_add_u32 s55, s55, {HBASE}")
e("s_lshl_b32 s56, s3, 8")
e("s_add_u32 s55, s55, s56")
e("s_cmp_eq_u32 s51, 1")
e("s_cselect_b32 s54, s54, s55")
e("s_cselect_b32 s56, 12, 6")
e("v_lshrrev_b32 v11, 2, v2")
e("v_lshlrev_b32 v11, s56, v11")
e("v_and_b32 v13, 3, v0")
e("v_lshl_add_u32 v13, v13, 4, v11")
e(f"s_add_u32 s55, s54, {ALT}")
if PREW:
    for r in range(4): e(f"v_mov_b32 v{28+r}, 0")
    e("s_cmp_eq_u32 s51, 1")
    e("s_cbranch_scc0 L_npw")
    e("s_mov_b64 exec, 0xffff")
    e("buffer_store_dwordx4 v[28:31], v13, s[36:39], s55 offen")
    e("s_mov_b64 exec, -1")
    lab("L_npw")
lds_wait("p", 27, 5, L_T, 44)
lds_wait("x", 26, 5, L_XF, 46)
XF = 96
for t in range(7): e(f"ds_read_b128 v[{XF+4*t}:{XF+4*t+3}], v14 offset:{64*t}")
e(f"ds_read_b64 v[36:37], v12 offset:{L_ST}")
e("v_mov_b32 v26, v27")
e(f"s_mov_b32 s45, {SPIN*8}")
lab("L_pl")
e(f"ds_read_b128 v[16:19], v5 offset:{L_PL}")
e("s_sub_u32 s45, s45, 1")
e("s_cbranch_scc1 L_pld")
e("s_waitcnt lgkmcnt(0)")
e("v_and_b32 v16, v16, v17")
e("v_and_b32 v18, v18, v19")
e("v_and_b32 v16, v16, v18")
e("v_cmp_eq_u32 vcc, 0, v16")
e("s_cbranch_vccnz L_pl")
lab("L_pld")
stamp(2)
for t in range(7):
    r = 64 + 4*t
    e(f"ds_read_b64_tr_b16 v[{r}:{r+1}], v6 offset:{L_PW + t*4096}")
    e(f"ds_read_b64_tr_b16 v[{r+2}:{r+3}], v6 offset:{L_PW + t*4096 + 512}")
for t in range(7):
    r = 64 + 4*t
    e(f"s_waitcnt lgkmcnt({12-2*t})")
    src = "0" if t == 0 else "v[16:19]"
    e(f"v_mfma_f32_16x16x32_bf16 v[16:19], v[{r}:{r+3}], v[{XF+4*t}:{XF+4*t+3}], {src}")
nop(8)
for r in range(4): e(f"v_mov_b32 v{20+r}, v{16+r}")
for r in range(4): e(f"v_fmac_f32_dpp v{20+r}, v{16+r}, v36 row_shl:4 {DPP}")
for r in range(4): e(f"v_mul_f32 v{20+r}, v{20+r}, v37")
e("v_cvt_pk_bf16_f32 v20, v20, v21")
e("v_cvt_pk_bf16_f32 v21, v22, v23")
e("ds_bpermute_b32 v24, v10, v20")
e("ds_bpermute_b32 v25, v10, v21")
e("s_waitcnt lgkmcnt(0)")
e("s_mov_b64 exec, 0xffff")
e("s_cmp_eq_u32 s51, 1")
e("s_cbranch_scc0 L_Pb")
e("buffer_store_dwordx4 v[24:27], v13, s[36:39], s54 offen")
for r in range(4): e(f"v_mov_b32 v{32+r}, v{24+r}")
e("s_mov_b32 s59, s54")
e("s_branch L_Pnb")
lab("L_Pb")
e("buffer_store_dwordx4 v[24:27], v13, s[36:39], s54 offen sc1")
lab("L_Pnb")
e("s_mov_b64 exec, -1")
stamp(3)
stamp_flush(0, 4, 0)
lab("L_Pdone")
e("v_mov_b32 v36, v13")
def g_bstore(sfx):
    e("s_cmp_eq_u32 s46, 2")
    e(f"s_cbranch_scc0 L_qnb{sfx}")
    e("s_cmp_eq_u32 s51, 1")
    e(f"s_cbranch_scc0 L_qnb{sfx}")
    e("s_mov_b64 exec, 0xffff")
    e("buffer_store_dwordx4 v[32:35], v36, s[36:39], s59 offen sc1")
    e("s_mov_b64 exec, -1")
    e("s_mov_b32 s51, 0")
    lab(f"L_qnb{sfx}")
e("s_cmp_eq_u32 s3, 1")
e("s_cbranch_scc1 L_G")
e("s_cmp_eq_u32 s3, 0")
e("s_cbranch_scc0 L_Pw")
e("s_mov_b64 exec, -1")
e("v_mov_b32 v5, 0")
e("s_getreg_b32 s48, hwreg(HW_REG_XCC_ID)")
e("s_and_b32 s48, s48, 15")
e("s_lshl_b32 s47, s28, 12")
e(f"s_add_u32 s47, s47, {XBASE}")
e("v_lshlrev_b32 v6, 7, v0")
lds_wait("xt", 9, 5, L_T, 44, sleep=1)
lds_wait("xq", 10, 5, L_QF, 49, sleep=2, bound=BTO)
e("s_mov_b32 exec_lo, -1"); e("s_mov_b32 exec_hi, 0")
e(f"s_mov_b32 s45, {SPIN}")
e("s_mov_b32 s49, 2")
if NOTAB: e("s_mov_b32 s49, 1"); e("s_branch L_xdone")
lab("L_xpoll")
e("buffer_load_dwordx2 v[10:11], v6, s[36:39], s47 offen sc1")
e("s_sub_u32 s45, s45, 1")
e("s_waitcnt vmcnt(0) lgkmcnt(0)")
e("s_cbranch_scc1 L_xdone")
e("v_cmp_ne_u32 vcc, s44, v11")
e("s_cbranch_vccnz L_xpoll")
e("v_cmp_ne_u32 vcc, s48, v10")
e("s_cbranch_vccnz L_xdone")
e("s_mov_b32 s49, 1")
lab("L_xdone")
e("v_mov_b32 v8, s49")
e(f"ds_write_b32 v5, v8 offset:{L_VD}")
lab("L_Pw")
e("s_cmp_eq_u32 s51, 1")
e("s_cbranch_scc0 L_end")
lds_wait("pb", 28, 5, L_VD, 46, sleep=2)
g_bstore("c")
e("s_endpgm")
lab("L_G")
e("v_lshlrev_b32 v6, 4, v0")
e("v_lshlrev_b32 v7, 3, v0")
e("s_lshl_b32 s55, s28, 14")
e("s_lshl_b32 s56, s30, 12")
e("s_add_u32 s55, s55, s56")
e(f"s_add_u32 s55, s55, {QBASE}")
e("v_mov_b32 v24, s44")
rpoint("g_start")
stamp(1)
e(f"s_mov_b32 s45, {SPIN}")
for i in range(4): e(f"s_mov_b64 s[{80+2*i}:{81+2*i}], -1")
lds_wait("gp", 25, 5, L_PL, 46, sleep=1)
e(f"s_mov_b32 s45, {SPIN}")
QD = max(1, QDEP)
def qissue(k):
    for i in range(4):
        e(f"s_or_b64 exec, s[{80+2*i}:{81+2*i}], 1")
        r = 64 + 16*k + 4*i
        e(f"buffer_load_dwordx4 v[{r}:{r+3}], v6, s[36:39], s55 offen offset:{i*1024} sc1")
        e(f"s_mov_b64 s[{64+16+0}:{64+16+1}], s[80:81]") if False else None
def qcheck(k):
    for i in range(4):
        r = 64 + 16*k + 4*i
        e(f"s_mov_b64 exec, s[{80+2*i}:{81+2*i}]")
        e(f"v_cmpx_eq_u32 vcc, s44, v{r+3}")
        e(f"ds_write_b64 v7, v[{r}:{r+1}] offset:{L_QS+i*512}")
        e(f"s_andn2_b64 s[{80+2*i}:{81+2*i}], s[{80+2*i}:{81+2*i}], exec")
    e("s_or_b64 s[48:49], s[80:81], s[82:83]")
    e("s_or_b64 s[48:49], s[48:49], s[84:85]")
    e("s_or_b64 s[48:49], s[48:49], s[86:87]")
    e("s_cbranch_scc0 L_qgo")
for k in range(QD):
    for i in range(4): e(f"v_mov_b32 v{64+16*k+4*i+3}, 0")
qissue(0)
e("s_waitcnt vmcnt(0)")
qcheck(0)
for k in range(QD-1):
    qissue(k)
    e(f"s_sleep {int(opts.get('qgap', 8))}")
lab("L_qpoll")
for k in range(QD):
    qissue((k + QD - 1) % QD)
    e(f"s_waitcnt vmcnt({4*(QD-1)})")
    qcheck(k)
e("s_mov_b64 exec, -1")
e(f"ds_read_b32 v25, v5 offset:{L_VD}")
e("s_waitcnt lgkmcnt(0)")
e("v_readfirstlane_b32 s46, v25")
g_bstore("a")
e("s_sub_u32 s45, s45, 1")
e("s_cbranch_scc0 L_qpoll")
lab("L_qgo")
e("s_mov_b64 exec, -1")
e("s_waitcnt lgkmcnt(0)")
e(f"ds_write_b32 v5, v24 offset:{L_QF}")
rpoint("g_q")
if STAMPS == 1: e("s_mov_b32 s47, s45")
stamp(2)
lds_wait("gv", 25, 5, L_VD, 46, sleep=2)
g_bstore("b")
rexit("g")
if STAMPS == 1: e("s_mov_b32 s45, s47")
if STAMPS == 1:
    e(f"s_sub_u32 s70, {SPIN}, s45"); e("s_mul_i32 s70, s70, 100"); e("s_add_u32 s70, s70, s64"); e("s_mov_b32 s71, s65")
stamp_flush(4, 4, 1)
e("s_endpgm")

lab("L_VW")
ws_srd()
e("s_cmp_ge_u32 s3, 12")
e("s_cbranch_scc1 L_W")
kv_base()
if LAT:
    e("s_add_u32 s48, s49, s31")
    e("s_lshl_b32 s48, s48, 12")
    e("s_lshl_b32 s49, s49, 15")
e("s_lshl_b32 s52, s50, 7")
e("v_lshrrev_b32 v10, 3, v0")
e("v_lshlrev_b32 v3, 9, v10")
e("v_and_b32 v11, 7, v0")
e("v_lshl_add_u32 v3, v11, 4, v3")
e("v_add_u32 v3, s52, v3")
e("s_add_u32 s32, s8, s47")
e("s_addc_u32 s33, s9, 0")
e(f"s_mov_b32 s34, {0x80000 if LAT else 0x10000}")
e("s_mov_b32 s35, 0x20000")
if TLBW:
    e("s_mov_b64 exec, 1")
    e("buffer_load_dword v121, v5, s[32:35], 0 offen")
    e("s_mov_b64 exec, -1")
e("v_lshlrev_b32 v10, 6, v10")
e("v_and_b32 v12, 1, v0")
e("v_cmp_eq_u32 vcc, 1, v12")
e("v_mov_b32 v13, 0xffff")
e("v_mov_b32 v12, 0xffff0000")
e("v_cndmask_b32 v13, v13, v12, vcc")
e("v_bfe_u32 v12, v0, 1, 2")
for j in range(4):
    e(f"v_cmp_eq_u32 vcc, {j}, v12")
    nop(2)
    e(f"v_cndmask_b32 v{6+j}, 0, v13, vcc")
e("s_and_b32 s59, s29, 15")
e("v_and_b32 v12, 1, v1")
e("v_cvt_f32_u32 v2, v12")
e("v_lshl_add_u32 v12, v12, 3, v11")
e("v_xor_b32 v12, s59, v12")
e("v_lshrrev_b32 v4, 1, v1")
e("v_lshlrev_b32 v4, 15, v4")
e("v_lshl_add_u32 v4, v12, 4, v4")
e("v_lshlrev_b32 v1, 4, v1")
e("s_lshl_b32 s58, s28, 16")
e("s_lshl_b32 s59, s50, 13")
e("s_add_u32 s58, s58, s59")
e("s_lshl_b32 s59, s29, 8")
e("s_add_u32 s58, s58, s59")
e(f"s_add_u32 s58, s58, {OBASE}")
e(f"s_add_u32 s59, s58, {ALT}")
e("s_lshl_b32 s57, s50, 2")
e(f"s_add_u32 s57, s57, {L_KCR}")
e("v_mov_b32 v11, s57")
e("v_mov_b32 v12, 1")
e("s_mov_b32 s57, 0")
e("s_mov_b32 s86, 0")
e("s_mov_b32 s60, 0x00ff00ff")
e("s_mov_b32 s61, 0x00ff00ff")
if PREW:
    for r in range(4): e(f"v_mov_b32 v{16+r}, 0")
    e("s_mov_b64 exec, s[60:61]")
    e("buffer_store_dwordx4 v[16:19], v4, s[36:39], s59 offen" + {1:"", 2:" sc1", 3:" nt", 4:" sc0"}[PREW])
    e("s_mov_b64 exec, -1")
stamp(1)
light_flag()
for i in range(16):
    if LAT:
        if i: e("s_add_u32 s49, s49, 32768"); e("s_add_u32 s48, s48, 4096")
        e("s_and_b32 s54, s49, 0x7ffff")
        e("s_and_b32 s46, s48, 0x7fff")
        e("s_or_b32 s54, s54, s46")
    else:
        if i: e("s_add_u32 s49, s49, 4096")
        e("s_and_b32 s54, s49, 0xffff")
    if i < NCAP: credit_wait(i+1, 11, 14, 57)
    elif UNTH:
        e("s_cmp_lg_u32 s86, 0")
        e(f"s_cbranch_scc1 L_un{i}")
        e(f"ds_read_b32 v14, v5 offset:{L_QF}")
        e(f"s_waitcnt vmcnt({NCAP-1}) lgkmcnt(0)")
        e("v_readfirstlane_b32 s86, v14")
        lab(f"L_un{i}")
    else: e(f"s_waitcnt vmcnt({NCAP-1})")
    if CAPL and i >= CAPL: light_wait()
    if i >= VTP: e(f"s_waitcnt vmcnt({VTC-1})")
    e(f"buffer_load_dwordx4 v[{DV+4*i}:{DV+4*i+3}], v3, s[32:35], s54 offen {KVPOL}")
    if i == VSIG: e(f"ds_write_b32 v11, v12 offset:{(L_VI-L_KCR) & 0xffff}") if L_VI >= L_KCR else (e(f"v_subrev_u32 v11, {L_KCR-L_VI}, v11"), e("ds_write_b32 v11, v12"))
rpoint("v_iss")
stamp(2)
if SO:
    e("s_waitcnt vmcnt(0)"); stamp(3); stamp(4); stamp_flush(16, 5, 8, "so"); e("s_endpgm")
e(f"s_mov_b32 s45, {SPIN*8}")
lab("L_vwait")
e(f"ds_read_b128 v[12:15], v5 offset:{L_KF}")
e("s_sub_u32 s45, s45, 1")
e("s_cbranch_scc1 L_vgo")
e("s_waitcnt lgkmcnt(0)")
e("v_and_b32 v12, v12, v13")
e("v_and_b32 v14, v14, v15")
e("v_and_b32 v12, v12, v14")
e("v_cmp_eq_u32 vcc, 0, v12")
e("s_cbranch_vccnz L_vwait")
lab("L_vgo")
SC = 16
for h in range(2):
    for i in range(4): e(f"ds_read_b128 v[{SC+16*h+4*i}:{SC+16*h+4*i+3}], v10 offset:{L_SC+512*h+16*i}")
e(f"ds_read_b128 v[48:51], v1 offset:{L_XS}")
e(f"ds_read_b32 v15, v5 offset:{L_T}")
e("s_waitcnt lgkmcnt(0)")
e("v_add_f32 v49, v49, v50")
e("v_add_f32 v49, v49, v51")
e("v_fma_f32 v14, v49, v2, v48")
rpoint("v_p")
stamp(3)
for t in range(16):
    tau = (t & 1)*8 + (t >> 1)
    for h in range(2):
        for k in range(4): e(f"v_and_b32 v{48+4*h+k}, v{SC+16*h+tau}, v{6+k}")
    nop(1)
    e(f"s_waitcnt vmcnt({15-t})")
    for h in range(2):
        src = "0" if t == 0 else f"v[{56+4*h}:{59+4*h}]"
        e(f"v_mfma_f32_16x16x32_bf16 v[{56+4*h}:{59+4*h}], v[{48+4*h}:{51+4*h}], v[{DV+4*t}:{DV+4*t+3}], {src}")
nop(8)
for r in range(4): e(f"v_permlane32_swap_b32 v{56+r}, v{60+r}")
for r in range(4): e(f"v_add_f32_dpp v{56+r}, v{60+r}, v{56+r} row_ror:8 {DPP}")
e("s_mov_b64 exec, s[60:61]")
e("v_cvt_pk_bf16_f32 v12, v56, v57")
e("v_cvt_pk_bf16_f32 v13, v58, v59")
e("buffer_store_dwordx4 v[12:15], v4, s[36:39], s58 offen")
rpoint("v_pub")
stamp(4, 2)
e("v_mov_b32 v16, 1")
e("s_mov_b64 exec, 1")
e(f"ds_add_u32 v5, v16 offset:{L_VP}")
e("s_mov_b64 exec, s[60:61]")
lds_wait("vv", 17, 5, L_VD, 46, sleep=1)
e("s_cmp_eq_u32 s46, 1")
e("s_cbranch_scc1 L_Vnb")
e("buffer_store_dwordx4 v[12:15], v4, s[36:39], s58 offen sc1")
lab("L_Vnb")
rexit("v")
if PADWG >= 0:
    e(f"s_cmp_lg_u32 s2, {PADWG}")
    e("s_cbranch_scc1 L_npad")
    lab("L_padw")
    e("s_memrealtime s[66:67]"); e("s_waitcnt lgkmcnt(0)")
    e("s_sub_u32 s69, s66, s64"); e("s_cmp_lt_u32 s69, 4000"); e("s_cbranch_scc1 L_padw")
    lab("L_npad")
if STAMPS == 2:
    e("s_waitcnt vmcnt(0)"); stamp(5, 2)
    e("s_cmp_lg_u32 s3, 8"); e("s_cbranch_scc1 L_v8"); wstamp_flush([(0, 0)], "v0"); lab("L_v8"); wstamp_flush([(4, 4), (8, 5)], "v")
stamp_flush(16, 5, 8)
e("s_endpgm")

lab("L_W")
if NOW_: e("s_endpgm")
e("s_cmp_ge_u32 s29, 28")
e("s_cbranch_scc1 L_R")
e("s_lshr_b32 s47, s29, 2")
e("s_and_b32 s49, s29, 1")
e("s_bfe_u32 s46, s29, 0x10001")
e("s_lshl_b32 s85, s28, 1")
e("s_add_u32 s85, s85, s46")
e("s_lshl_b32 s51, s85, 2")
e("s_add_u32 s51, s51, s50")
e("s_lshr_b32 s55, s51, 1")
e("s_and_b32 s48, s51, 1")
e("s_mul_i32 s84, s50, 0x3000")
e(f"s_add_u32 s84, s84, {L_WW}")
e("s_mov_b64 s[32:33], s[12:13]"); e(f"s_mov_b32 s34, {4096*448*2}"); e("s_mov_b32 s35, 0x20000")
e("s_mov_b64 s[80:81], s[20:21]"); e(f"s_mov_b32 s82, {1792*448*2}"); e("s_mov_b32 s83, 0x20000")
e(f"s_mul_i32 s62, s51, {64*896}")
e(f"s_mul_i32 s63, s51, {32*896}")
e("s_lshl_b32 s57, s47, 7")
e("s_add_u32 s62, s62, s57")
e("s_add_u32 s63, s63, s57")
if TLBW:
    e("s_mov_b64 exec, 1")
    e("buffer_load_dword v121, v5, s[32:35], s62 offen")
    e("buffer_load_dword v122, v5, s[80:83], s63 offen")
    e("s_mov_b64 exec, -1")
e("v_lshrrev_b32 v6, 3, v0")
e("v_mul_u32_u24 v6, 896, v6")
e("v_and_b32 v40, 7, v0")
e("v_bfe_u32 v41, v0, 4, 1")
e("v_lshlrev_b32 v41, 1, v41")
e("v_xor_b32 v40, v40, v41")
e("v_xor_b32 v41, 4, v40")
e("v_lshl_add_u32 v40, v40, 4, v6")
e("v_lshl_add_u32 v41, v41, 4, v6")
e("v_lshlrev_b32 v10, 10, v1")
e("v_lshrrev_b32 v11, 2, v2")
e("v_lshl_add_u32 v10, v11, 7, v10")
e("v_and_b32 v11, 3, v0")
e("v_lshl_add_u32 v10, v11, 3, v10")
e("v_add_u32 v10, s84, v10")
e("v_bfe_u32 v11, v0, 3, 2")
for j in range(4):
    e(f"v_xor_b32 v12, {j}, v11")
    e(f"v_lshl_add_u32 v{6+j}, v12, 5, v10")
e("v_and_b32 v10, 1, v0")
e("v_lshlrev_b32 v10, 10, v10")
e("v_bfe_u32 v11, v0, 3, 1")
e("v_lshl_add_u32 v10, v11, 6, v10")
e("v_lshrrev_b32 v11, 1, v1")
e("v_lshl_add_u32 v10, v11, 8, v10")
e("v_and_b32 v11, 1, v1")
e("v_lshl_add_u32 v10, v11, 5, v10")
e("v_lshlrev_b32 v14, 4, v1")
e("v_bfe_u32 v11, v0, 2, 1")
e("v_lshl_add_u32 v10, v11, 4, v10")
e("v_lshl_add_u32 v14, v11, 3, v14")
e("s_lshl_b32 s53, s55, 11")
e("s_lshl_b32 s54, s48, 9")
e("s_add_u32 s53, s53, s54")
e("s_lshl_b32 s54, s49, 7")
e("s_add_u32 s53, s53, s54")
e(f"s_add_u32 s53, s53, {HBASE}")
e("s_mov_b64 s[40:41], s[18:19]"); e("s_mov_b32 s42, 3584"); e("s_mov_b32 s43, 0x20000")
e("s_lshl_b32 s54, s51, 6")
e("buffer_load_dwordx2 v[20:21], v14, s[40:43], s54 offen")
e("s_lshl_b32 s54, s51, 13")
e("s_lshl_b32 s58, s49, 12")
e("s_add_u32 s54, s54, s58")
e(f"s_add_u32 s61, s54, {OBASE}")
e("v_lshlrev_b32 v11, 4, v0")
if ATOM:
    e("s_lshl_b32 s56, s47, 1")
    e("s_add_u32 s56, s56, s49")
    e("s_lshl_b32 s88, s56, 2")
    e("s_add_u32 s88, s88, s50")
    e("s_lshl_b32 s56, s88, 9")
    e(f"s_add_u32 s56, s56, {FBASE}")
    e("s_lshl_b32 s88, s88, 7")
    e(f"s_add_u32 s88, s88, {FBASE + 0x10000}")
    e("v_lshlrev_b32 v13, 3, v0")
    e("s_lshl_b32 s58, s50, 9")
    e("v_add_u32 v12, s58, v13")
    e("v_lshrrev_b32 v113, 3, v0")
    e("s_lshl_b32 s58, s50, 3")
    e("v_add_u32 v113, s58, v113")
    e("v_mul_u32_u24 v113, 7, v113")
    e("v_and_b32 v114, 7, v0")
    e("v_add_u32 v113, v113, v114")
    e("v_cmp_gt_u32 vcc, 128, v113")
    e("v_cmp_gt_u32 s[90:91], 7, v114")
    e("v_cmp_eq_u32 s[92:93], 7, v114")
    e("s_and_b64 s[90:91], s[90:91], vcc")
    e("v_min_u32 v113, 127, v113")
    e("v_cndmask_b32 v115, 0, 1.0, s[92:93]")
    e("v_and_b32 v116, 1, v113")
    e("v_lshlrev_b32 v117, 6, v116")
    e("v_bfe_u32 v116, v113, 1, 4")
    e("v_lshl_add_u32 v117, v116, 1, v117")
    e("v_bfe_u32 v116, v113, 5, 1")
    e("v_lshl_add_u32 v117, v116, 5, v117")
    e("v_lshrrev_b32 v116, 6, v113")
    e("v_mul_u32_u24 v116, 896, v116")
    e("v_add_u32 v117, v117, v116")
    e("s_mul_i32 s89, s49, 1792")
    e("s_lshl_b32 s58, s47, 7")
    e("s_add_u32 s89, s89, s58")
    e("v_lshlrev_b32 v113, 2, v113")
    e(f"v_add_u32 v113, {L_Z}, v113")
    e("s_cmp_eq_u32 s50, 2")
    e("s_cselect_b32 s94, 0xffffff, -1")
    e("s_cselect_b32 s95, 0, -1")
else:
    e("v_lshrrev_b32 v13, 1, v1")
    e(f"v_mul_u32_u24 v13, {7*8192}, v13")
    e("v_and_b32 v12, 1, v1")
    e("v_lshl_add_u32 v13, v12, 12, v13")
    e("v_lshl_add_u32 v13, v2, 4, v13")
    e("s_mul_i32 s56, s49, 14")
    e("s_add_u32 s56, s56, s47")
    e("s_lshl_b32 s56, s56, 13")
    e("s_lshl_b32 s58, s85, 8")
    e("s_add_u32 s56, s56, s58")
    e(f"s_add_u32 s56, s56, {FBASE}")
    e("s_lshl_b32 s58, s50, 9")
    e("v_lshl_add_u32 v12, v0, 3, s58")
    for k in range(1, 4): e(f"v_xor_b32 v{112+k}, {512*k}, v12")
e("s_lshl_b32 s58, s50, 12")
e(f"s_add_u32 s58, s58, {L_OG}")
e("v_xor_b32 v4, v1, v2")
e("v_lshlrev_b32 v14, 8, v2")
e("v_add_u32 v14, s58, v14")
for t in range(2):
    for ee in range(2):
        e(f"v_xor_b32 v42, {ee*8+4*t}, v4")
        e(f"v_lshl_add_u32 v{44+2*t+ee}, v42, 4, v14")
e("s_lshl_b32 s57, s50, 2")
e("v_mov_b32 v43, s57")
e("s_add_u32 m0, s84, 8192")
if CRED:
    e("s_lshr_b32 s89, s28, 1")
    e("s_mul_i32 s88, s89, 7")
    e("s_add_u32 s88, s88, s47")
    e("s_lshl_b32 s88, s88, 1")
    e("s_and_b32 s90, s28, 1")
    e("s_add_u32 s88, s88, s90")
    e("s_lshl_b32 s88, s88, 12")
    e("s_and_b32 s91, s29, 3")
    e("s_lshl_b32 s92, s91, 6")
    e("s_add_u32 s88, s88, s92")
    e(f"s_add_u32 s88, s88, {FBASE}")
    e("s_mul_i32 s89, s89, 896")
    e("s_lshl_b32 s92, s47, 7"); e("s_add_u32 s89, s89, s92")
    e("s_lshl_b32 s92, s90, 5"); e("s_add_u32 s89, s89, s92")
    e("s_lshl_b32 s92, s91, 3"); e("s_add_u32 s89, s89, s92")
    e("v_and_b32 v117, 3, v0")
    e("v_lshrrev_b32 v116, 2, v0")
    e("v_lshlrev_b32 v116, 8, v116")
    e("v_lshl_add_u32 v116, v117, 4, v116")
    e("v_lshlrev_b32 v117, 1, v117")
    e("v_lshrrev_b32 v118, 5, v0")
    e("v_lshl_add_u32 v117, v118, 6, v117")
    e("s_mov_b64 s[40:41], s[4:5]")
    e("buffer_load_ushort v118, v117, s[40:43], s89 offen")
    e("s_waitcnt vmcnt(0)")
    e("v_lshlrev_b32 v118, 16, v118")
    e("s_mov_b64 s[40:41], s[22:23]")
if not SO: lds_wait("w", 14, 5, L_T, 44, sleep=2)
G = 16; BF = 64; ACC = 48
TB = 36 if MERGE else 6
if DRY and not SO:
    e("v_mov_b32 v119, v10")
    e("s_waitcnt vmcnt(0)")
    e("v_mov_b32 v122, v20"); e("v_mov_b32 v123, v21")
    e("s_mov_b32 s87, 1")
    e("s_branch L_ogo")
    lab("L_dryret")
    e("s_mov_b32 s87, 0")
    e("v_mov_b32 v10, v119")
    nop(4)
for j in range(4): e(f"v_mov_b32 v{ACC+4*j}, 0")
if ATOM and not SO:
    e("s_mov_b64 s[40:41], s[4:5]")
    e("s_cmp_lg_u32 s85, 0")
    e("s_cbranch_scc1 L_noini")
    e("s_cmp_eq_u32 s50, 3")
    e("s_cbranch_scc1 L_noini")
    e("buffer_load_ushort v24, v117, s[40:43], s89 offen")
    for r in range(4): e(f"v_mov_b32 v{28+r}, s44")
    e("s_waitcnt vmcnt(0)")
    e("v_lshlrev_b32 v24, 16, v24")
    e("v_cndmask_b32 v24, 0, v24, s[90:91]")
    e("v_cvt_f64_f32 v[26:27], v24")
    e("buffer_store_dwordx2 v[26:27], v13, s[36:39], s56 offen sc1")
    e("s_waitcnt vmcnt(0)")
    e("s_mov_b64 exec, 0xff")
    e("buffer_store_dwordx4 v[28:31], v11, s[36:39], s88 offen sc1")
    e("s_mov_b64 exec, -1")
    lab("L_noini")
    e("s_mov_b64 s[40:41], s[22:23]")
    if OUTW == 1: e("buffer_load_ushort v121, v117, s[40:43], s89 offen")
    if OUTW == 2:
        e("s_mov_b64 exec, 1"); e("buffer_load_ushort v121, v5, s[40:43], 0 offen"); e("s_mov_b64 exec, -1")
HEARLY = int(opts.get('hearly', 1))
if HEARLY and not SO: lds_wait("hq", 14, 5, L_QF, 52, sleep=2)
else: lds_wait("c", 14, 43, L_VI, 52, sleep=1)
if ATOM: e("buffer_load_dword v118, v5, s[36:39], s88 offen sc1")
e("buffer_load_dwordx4 v[16:19], v10, s[36:39], s53 offen sc1")
if WCONT == 1:
    e("v_lshlrev_b32 v40, 4, v0")
    e("s_mul_i32 s62, s28, 28"); e("s_add_u32 s62, s62, s29"); e("s_lshl_b32 s62, s62, 2"); e("s_add_u32 s62, s62, s50")
    e("s_lshl_b32 s63, s62, 11"); e("s_lshl_b32 s62, s62, 12")
    for i in range(2): e(f"buffer_load_dwordx4 v40, s[80:83], s63 offen offset:{i*1024} {WPOL} lds")
    for i in range(4): e(f"buffer_load_dwordx4 v40, s[32:35], s62 offen offset:{i*1024} {WPOL} lds")
elif WCONT == 2:
    e(f"s_mul_i32 s52, s49, {16*896}"); e("s_add_u32 s63, s63, s52"); e("s_add_u32 s62, s62, s52"); e("s_add_u32 s62, s62, s52")
    for i in range(2):
        if i: e(f"s_add_u32 s63, s63, {8*896-1024}")
        e(f"buffer_load_dwordx4 v{40+(i&1)}, s[80:83], s63 offen offset:{i*1024} {WPOL} lds")
    for i in range(4):
        if i: e(f"s_add_u32 s62, s62, {8*896-1024}")
        e(f"buffer_load_dwordx4 v{40+(i&1)}, s[32:35], s62 offen offset:{i*1024} {WPOL} lds")
else:
    for i in range(4):
        if i: e(f"s_add_u32 s63, s63, {8*896-1024}")
        e(f"buffer_load_dwordx4 v{40+(i&1)}, s[80:83], s63 offen offset:{i*1024} {WPOL} lds")
    e("s_mov_b32 m0, s84")
    if HEARLY and not SO: lds_wait("c", 14, 43, L_VI, 52, sleep=1)
    nop(1)
    for i in range(8):
        if i == 4: e("s_add_u32 m0, s84, 4096")
        if i: e(f"s_add_u32 s62, s62, {8*896-1024 if i != 4 else 8*896+3072}")
        if WCAP and i >= WCAP: e(f"s_waitcnt vmcnt({WCAP-1})")
        e(f"buffer_load_dwordx4 v{40+(i&1)}, s[32:35], s62 offen offset:{(i&3)*1024} {WPOL} lds")
if SO:
    e("s_waitcnt vmcnt(0)"); stamp(1); stamp(2); stamp(3); stamp_flush(24, 4, 12, "so"); e("s_endpgm")
e("s_cmp_eq_u32 s28, 7")
e("s_cbranch_scc1 L_skipm")
e("s_waitcnt vmcnt(8)")
e(f"s_mov_b32 s45, {SPIN}")
e("s_branch L_achk")
lab("L_apoll")
e("buffer_load_dwordx4 v[16:19], v10, s[36:39], s53 offen sc1")
e("s_sub_u32 s45, s45, 1")
e("s_waitcnt vmcnt(0)")
e("s_cbranch_scc1 L_ago")
lab("L_achk")
e("v_cmp_ne_u32 vcc, s44, v19")
e("s_cbranch_vccnz L_apoll")
lab("L_ago")
stamp(1)
for j in range(4):
    r = 96 + j*4
    e(f"ds_read_b64_tr_b16 v[{r}:{r+1}], v{6+j} offset:8192")
    e(f"ds_read_b64_tr_b16 v[{r+2}:{r+3}], v{6+j} offset:{8192+512}")
e("v_lshlrev_b32 v24, 16, v16"); e("v_and_b32 v25, 0xffff0000, v16")
e("v_lshlrev_b32 v26, 16, v17"); e("v_and_b32 v27, 0xffff0000, v17")
e("v_lshlrev_b32 v28, 16, v20"); e("v_and_b32 v29, 0xffff0000, v20")
e("v_lshlrev_b32 v30, 16, v21"); e("v_and_b32 v31, 0xffff0000, v21")
for r in range(4): e(f"v_add_f32_dpp v{24+r}, v{24+r}, v{24+r} quad_perm:[1,0,3,2] {DPP}")
for r in range(4): e(f"v_add_f32 v{24+r}, v{24+r}, v{28+r}")
for r in range(4): e(f"v_min_f32 v{28+r}, 0x41a00000, v{24+r}")
for r in range(4): e(f"v_mul_f32 v{28+r}, {fhex(math.log2(math.e))}, v{28+r}")
for r in range(4): e(f"v_exp_f32 v{28+r}, v{28+r}")
nop(1)
for r in range(4): e(f"v_add_f32 v{32+r}, 2.0, v{28+r}")
for r in range(4): e(f"v_mul_f32 v{28+r}, v{28+r}, v{32+r}")
for r in range(4): e(f"v_add_f32 v{32+r}, 2.0, v{28+r}")
for r in range(4): e(f"v_rcp_f32 v{32+r}, v{32+r}")
nop(1)
for r in range(4): e(f"v_mul_f32 v{28+r}, v{28+r}, v{32+r}")
for r in range(4): e(f"v_mul_f32 v{24+r}, v{24+r}, v{28+r}")
e("v_cvt_pk_bf16_f32 v32, v24, v25")
e("v_cvt_pk_bf16_f32 v33, v26, v27")
nop(2)
for bsel in range(2):
    for ee in range(2):
        for d in range(2):
            e(f"v_mov_b32_dpp v{16+2*ee+d}, v{32+d} row_newbcast:{8*bsel+4*ee} row_mask:0xf bank_mask:{0x3 << (2*bsel):#x}")
nop(1)
e("s_waitcnt lgkmcnt(0)")
for j in range(4):
    e(f"v_mfma_f32_16x16x32_bf16 v[{ACC+4*j}:{ACC+4*j+3}], v[16:19], v[{96+4*j}:{99+4*j}], 0")
lab("L_skipm")
stamp(2)
if ATOM:
    e("s_cmp_eq_u32 s50, 3")
    e("s_cbranch_scc1 L_ifok")
    e("s_waitcnt vmcnt(8)")
    e(f"s_mov_b32 s45, {SPIN}")
    lab("L_ifp")
    e("v_cmp_ne_u32 vcc, s44, v118")
    e("s_cbranch_vccz L_ifok")
    e("buffer_load_dword v118, v5, s[36:39], s88 offen sc1")
    e("s_sub_u32 s45, s45, 1")
    e("s_waitcnt vmcnt(0)")
    e("s_cbranch_scc0 L_ifp")
    lab("L_ifok")
nop(8)
for j in range(4): e(f"v_mul_f32 v{36+j}, 0.5, v{ACC+4*j}")
e("s_mov_b32 m0, s58")
e("s_mov_b32 s54, s61")
def oissue():
    for j in range(4): e(f"buffer_load_dwordx4 v11, s[36:39], s54 offen offset:{j*1024} sc1 lds")
e("v_mov_b32 v42, 1")
e("v_mov_b32 v34, s44")
e("v_mov_b32 v35, s44")
if CUT == 1: e("s_waitcnt vmcnt(0)"); e("s_endpgm")
if OEARLY == 9: lds_wait("wvp", 14, 5, L_VP, 52, need=4)
e(f"s_mov_b32 s45, {SPIN}")
if OEARLY >= 8: oissue()
for t in range(2):
    if OEARLY >= 8:
        e(f"s_waitcnt vmcnt({8 if t == 0 else 4})")
        if t == 1: rpoint("w_land"); stamp(3, 2)
    elif t == 0: e("s_waitcnt vmcnt(4)")
    elif OEARLY:
        e(f"s_waitcnt vmcnt({OEARLY})")
        oissue()
        e("s_waitcnt vmcnt(4)")
        rpoint("w_land"); stamp(3, 2)
    else:
        e("s_waitcnt vmcnt(0)")
        rpoint("w_land"); stamp(3, 2)
        oissue()
    for j in range(4):
        r = BF + (j*2+t)*4
        e(f"ds_read_b64_tr_b16 v[{r}:{r+1}], v{6+j} offset:{t*4096}")
        e(f"ds_read_b64_tr_b16 v[{r+2}:{r+3}], v{6+j} offset:{t*4096+512}")
    if t == 0 or not MERGE: e("s_waitcnt lgkmcnt(0)")
if not MERGE:
    for j in range(4): e(f"v_mov_b32 v{6+j}, v{36+j}")
stamp(4)
e("s_branch L_ochk")
lab("L_opoll")
if OSLEEP: e(f"s_sleep {OSLEEP}")
if OMASK:
    e("s_or_b32 s52, vcc_lo, vcc_hi")
    e("s_lshr_b32 s53, s52, 16")
    e("s_or_b32 s52, s52, s53")
    for j in range(4):
        e(f"s_and_b32 s53, s52, {0xF << (4*j):#x}")
        e(f"s_cbranch_scc0 L_os{j}")
        e(f"buffer_load_dwordx4 v11, s[36:39], s54 offen offset:{j*1024} sc1 lds")
        lab(f"L_os{j}")
else: oissue()
lab("L_ochk")
e("s_waitcnt vmcnt(0)")
for k in range(4): e(f"ds_read_b128 v[{G+4*k}:{G+4*k+3}], v{44+k}")
e("s_sub_u32 s45, s45, 1")
e("s_cbranch_scc1 L_ogo")
e("s_waitcnt lgkmcnt(0)")
e(f"v_bitop3_b32 v{ACC}, v{G+3}, v{G+7}, s44 bitop3:0x7e")
e(f"v_bitop3_b32 v{ACC+1}, v{G+11}, v{G+15}, s44 bitop3:0x7e")
e(f"v_or_b32 v{ACC}, v{ACC}, v{ACC+1}")
e(f"v_cmp_ne_u32 vcc, 0, v{ACC}")
e("s_cbranch_vccnz L_opoll")
lab("L_ogo")
e("s_waitcnt lgkmcnt(0)")
if CUT == 2: e("s_endpgm")
rpoint("w_ook")
stamp(5, 2)
if not ATOM:
    e("s_mov_b64 exec, 1")
    e(f"ds_add_rtn_u32 v43, v5, v42 offset:{L_OC}")
    e("s_mov_b64 exec, -1")
e(f"v_mov_b32 v{G+2}, v{G+4}")
e(f"v_mov_b32 v{G+3}, v{G+5}")
e(f"v_max_f32_dpp v14, v{G+10}, v{G+10} quad_perm:[1,0,3,2] {DPP}")
e(f"v_mov_b32 v10, v{G+10}")
e(f"v_mov_b32 v{G+10}, v{G+12}")
e(f"v_mov_b32 v{G+11}, v{G+13}")
valu = [[f"v_max_f32_dpp v14, v14, v14 quad_perm:[2,3,0,1] {DPP}"],
        [f"v_max_f32_dpp v14, v14, v14 row_half_mirror {DPP}", "v_sub_f32 v10, v10, v14", "v_exp_f32 v10, v10"],
        [f"v_mul_f32 v14, v10, v{G+6}"],
        [f"v_add_f32_dpp v14, v14, v14 quad_perm:[1,0,3,2] {DPP}"],
        [f"v_add_f32_dpp v14, v14, v14 quad_perm:[2,3,0,1] {DPP}"],
        [f"v_add_f32_dpp v14, v14, v14 row_half_mirror {DPP}", "v_rcp_f32 v14, v14"],
        ["v_mul_f32 v10, v10, v14", "v_mov_b32 v14, v10"],
        ["v_mov_b32_dpp v14, v10 row_ror:12 row_mask:0x2 bank_mask:0xf",
         "v_mov_b32_dpp v14, v10 row_ror:8 row_mask:0x4 bank_mask:0xf",
         "v_mov_b32_dpp v14, v10 row_ror:4 row_mask:0x8 bank_mask:0xf"]]
k = 0
for t in range(2):
    for j in range(4):
        r = BF + (j*2+t)*4
        src = "0" if t == 0 else f"v[{ACC+4*j}:{ACC+4*j+3}]"
        e(f"v_mfma_f32_16x16x32_bf16 v[{ACC+4*j}:{ACC+4*j+3}], v[{G+8*t}:{G+8*t+3}], v[{r}:{r+3}], {src}")
        nop(1)
        for x in valu[k]: e(x)
        k += 1
if ATOM:
    nop(2)
    for r in range(4):
        for j in range(4): e(f"v_fmac_f32_dpp v{TB+j}, v14, v{ACC+4*j+r} row_newbcast:{r} {DPP}")
    e("s_cmp_eq_u32 s50, 3")
    e(f"v_permlane16_swap_b32 v{TB}, v{TB+1}")
    e(f"v_permlane16_swap_b32 v{TB+2}, v{TB+3}")
    e(f"v_add_f32 v32, v{TB}, v{TB+1}")
    e(f"v_add_f32 v33, v{TB+2}, v{TB+3}")
    if DRY:
        e("s_cmp_eq_u32 s87, 1")
        e("s_cbranch_scc1 L_dryret")
        e("s_cmp_eq_u32 s50, 3")
    e(f"ds_write_b64 v12, v[32:33] offset:{L_Z}")
    e("s_mov_b64 exec, 1")
    e(f"ds_add_u32 v5, v42 offset:{L_ZC}")
    e("s_cbranch_scc1 L_wfin")
    e("s_mov_b64 exec, s[94:95]")
    lab("L_zre")
    e(f"ds_read_b32 v43, v5 offset:{L_ZC}")
    e("ds_read2st64_b32 v[24:25], v113 offset0:0 offset1:2")
    e("ds_read2st64_b32 v[26:27], v113 offset0:4 offset1:6")
    e("s_waitcnt lgkmcnt(0)")
    e("v_cmp_gt_u32 vcc, 4, v43")
    e("s_cbranch_vccnz L_zre")
    e("v_add_f32 v24, v24, v25")
    e("v_add_f32 v26, v26, v27")
    e("v_add_f32 v24, v24, v26")
    e("v_cndmask_b32 v24, v115, v24, s[90:91]")
    e("v_cvt_f64_f32 v[26:27], v24")
    if CUT == 3: e("s_endpgm")
    e("buffer_atomic_add_f64 v[26:27], v13, s[36:39], s56 offen sc0")
    stamp(6, 2)
    e("v_cvt_f64_f32 v[28:29], v24")
    e("s_mov_b32 s46, 0x402e0000")
    e("s_waitcnt vmcnt(0)")
    e("v_mov_b32_dpp v30, v27 row_newbcast:7 row_mask:0xf bank_mask:0x3")
    e("v_mov_b32_dpp v30, v27 row_newbcast:15 row_mask:0xf bank_mask:0xc")
    e("v_add_f64 v[26:27], v[26:27], v[28:29]")
    e("v_cmp_eq_u32 vcc, s46, v30")
    e("v_cvt_f32_f64 v26, v[26:27]")
    if CUT == 4: e("s_endpgm")
    e("s_and_b64 exec, vcc, s[90:91]")
    e("s_cbranch_execz L_wfin2")
    e("v_cvt_pk_bf16_f32 v26, v26, v26")
    e(f"buffer_store_short v26, v117, s[40:43], s89 offen {OUTPOL}")
    e(f"s_cmp_lg_u32 s56, {FBASE + 2048}")
    e("s_cbranch_scc1 L_wfin2")
    e("s_and_b64 exec, exec, 1")
    e("s_cbranch_execz L_wfin2")
    e("buffer_store_dword v34, v5, s[36:39], 0 offen")
    lab("L_wfin2")
    if STAMPS == 2:
        stamp(7, 2)
        wstamp_flush([(12, 3), (16, 5), (20, 6), (24, 7)], "wa")
    e("s_endpgm")
else:
    e("s_waitcnt lgkmcnt(0)")
    e("v_readfirstlane_b32 s46, v43")
    def zreads():
        e(f"ds_read_b32 v43, v5 offset:{L_ZC}")
        for k in range(3): e(f"ds_read_b64 v[{24+2*k}:{25+2*k}], v{113+k} offset:{L_Z}")
    zreads()
    for r in range(4):
        for j in range(4): e(f"v_fmac_f32_dpp v{6+j}, v14, v{ACC+4*j+r} row_newbcast:{r} {DPP}")
    e("s_cmp_eq_u32 s46, 3")
    e("v_permlane16_swap_b32 v6, v7")
    e("v_permlane16_swap_b32 v8, v9")
    e("v_add_f32 v32, v6, v7")
    e("v_add_f32 v33, v8, v9")
    e("s_cbranch_scc1 L_coll")
    e(f"ds_write_b64 v12, v[32:33] offset:{L_Z}")
    e("s_mov_b64 exec, 1")
    e(f"ds_add_u32 v5, v42 offset:{L_ZC}")
    e("s_branch L_wfin")
    lab("L_zre")
    zreads()
    lab("L_coll")
    e("s_waitcnt lgkmcnt(0)")
    e("v_cmp_gt_u32 vcc, 3, v43")
    e("s_cbranch_vccnz L_zre")
    e("v_add_f32 v26, v26, v28"); e("v_add_f32 v27, v27, v29")
    e("v_add_f32 v32, v32, v24"); e("v_add_f32 v33, v33, v25")
    e("v_add_f32 v32, v32, v26"); e("v_add_f32 v33, v33, v27")
    e("buffer_store_dwordx4 v[32:35], v13, s[36:39], s56 offen sc1")
    if CRED:
        stamp(6, 2)
        e(f"s_mov_b32 s45, {SPIN*4}")
        lab("L_cpoll")
        if FSLEEP: e(f"s_sleep {FSLEEP}")
        e("buffer_load_dwordx4 v[16:19], v116, s[36:39], s88 offen sc1")
        e("s_sub_u32 s45, s45, 1")
        e("s_waitcnt vmcnt(0)")
        e("s_cbranch_scc1 L_cgo")
        e("v_cmpx_ne_u32 vcc, s44, v19")
        e("s_cbranch_execnz L_cpoll")
        lab("L_cgo")
        e("s_mov_b64 exec, -1")
        nop(4)
        e("v_permlane32_swap_b32 v16, v17")
        e("v_add_f32 v16, v16, v17")
        e("v_mov_b32 v17, v16"); nop(2)
        e("v_permlane16_swap_b32 v16, v17")
        e("v_add_f32 v16, v16, v17"); nop(2)
        e(f"v_add_f32_dpp v16, v16, v16 row_ror:8 {DPP}"); nop(2)
        e(f"v_add_f32_dpp v16, v16, v16 row_ror:4 {DPP}")
        e("v_add_f32 v16, v16, v118")
        e("v_cvt_pk_bf16_f32 v16, v16, v16")
        e("s_mov_b32 exec_lo, 15")
        e("s_mov_b32 exec_hi, 15")
        e("buffer_store_short v16, v117, s[40:43], s89 offen")
        stamp(2, 2)
        e(f"s_cmp_lg_u32 s89, {3*896}")
        e("s_cbranch_scc1 L_cne")
        e("s_mov_b64 exec, 1")
        e("buffer_store_dword v34, v5, s[36:39], 0 offen")
        lab("L_cne")
        if STAMPS == 2:
            e("s_and_b32 s3, s3, 12")
            wstamp_flush([(1, 2), (2, 6)], "c")
            e("s_endpgm")
lab("L_wfin")
rpoint("w_pub")
rexit("w")
stamp(6, 2)
if STAMPS == 2:
    e("s_waitcnt vmcnt(0)"); stamp(7, 2)
    e(f"s_sub_u32 s66, {SPIN}, s45"); e("s_mul_i32 s66, s66, 100"); e("s_add_u32 s66, s66, s64"); e("s_mov_b32 s67, s65")
    wstamp_flush([(12, 3), (16, 5), (20, 6), (24, 7), (28, 1)], "w")
stamp_flush(24, 7, 12)
e("s_endpgm")
lab("L_R")
if SO or CRED or ATOM: e("s_endpgm")
e("s_lshl_b32 s46, s28, 2")
e("s_add_u32 s46, s46, s29")
e("s_sub_u32 s46, s46, 28")
e("s_cmp_ge_u32 s46, 28")
e("s_cbranch_scc1 L_end")
e("s_lshr_b32 s47, s46, 2")
e("s_and_b32 s48, s46, 1")
e("s_bfe_u32 s49, s46, 0x10001")
e("s_mul_i32 s59, s50, 896")
e("s_lshl_b32 s58, s47, 7"); e("s_add_u32 s59, s59, s58")
e("s_lshl_b32 s58, s49, 5"); e("s_add_u32 s59, s59, s58")
e("s_lshl_b32 s58, s48, 4"); e("s_add_u32 s59, s59, s58")
e("v_and_b32 v14, 7, v0")
e("v_lshlrev_b32 v15, 1, v14")
e("v_lshrrev_b32 v11, 5, v0")
e("v_lshl_add_u32 v15, v11, 6, v15")
e("s_mov_b64 s[40:41], s[4:5]"); e("s_mov_b32 s42, 3584"); e("s_mov_b32 s43, 0x20000")
e("buffer_load_ushort v3, v15, s[40:43], s59 offen")
e("s_mov_b64 s[32:33], s[22:23]"); e("s_mov_b32 s34, 3584"); e("s_mov_b32 s35, 0x20000")
if OUTW: e("buffer_load_ushort v121, v15, s[32:35], s59 offen")
e("s_mul_i32 s52, s50, 7")
e("s_add_u32 s52, s52, s47")
e("s_lshl_b32 s52, s52, 1")
e("s_add_u32 s52, s52, s49")
e("s_lshl_b32 s52, s52, 12")
e("s_lshl_b32 s58, s48, 7")
e("s_add_u32 s52, s52, s58")
e(f"s_add_u32 s52, s52, {FBASE}")
e("v_lshrrev_b32 v12, 3, v0")
e("v_lshlrev_b32 v12, 8, v12")
e("v_lshl_add_u32 v12, v14, 4, v12")
MK = 80
R = 16
for i in range(2): e(f"s_mov_b64 s[{MK+2*i}:{MK+2*i+1}], -1")
for i in range(2): e(f"v_mov_b32 v{R+4*i+3}, 0")
lds_wait("rt", 7, 5, L_T, 44, sleep=2)
e("s_waitcnt vmcnt(0)")
e("v_lshlrev_b32 v8, 16, v3")
lds_wait("rv", 14, 5, L_VP, 56, need=4, sleep=2)
e(f"s_mov_b32 s45, {SPIN*4}")
lab("L_fpoll")
if FSLEEP: e(f"s_sleep {FSLEEP}")
for i in range(2):
    e(f"s_mov_b64 exec, s[{MK+2*i}:{MK+2*i+1}]")
    e(f"s_cbranch_execz L_fs{i}")
    e(f"buffer_load_dwordx4 v[{R+4*i}:{R+4*i+3}], v12, s[36:39], s52 offen offset:{i*2048} sc1")
    lab(f"L_fs{i}")
e("s_mov_b64 exec, -1")
e("s_sub_u32 s45, s45, 1")
e(f"s_waitcnt vmcnt({FDEP})")
e("s_cbranch_scc1 L_fgo")
for i in range(2): e(f"v_cmp_ne_u32 s[{MK+2*i}:{MK+2*i+1}], s44, v{R+4*i+3}")
e(f"s_or_b64 s[56:57], s[{MK}:{MK+1}], s[{MK+2}:{MK+3}]")
e("s_cbranch_scc1 L_fpoll")
lab("L_fgo")
e("s_waitcnt vmcnt(0)")
e(f"v_add_f32 v{R}, v{R}, v{R+4}");  e(f"v_add_f32 v{R+1}, v{R+1}, v{R+5}")
nop(2)
e(f"v_permlane32_swap_b32 v{R}, v{R+1}")
e(f"v_add_f32 v{R}, v{R}, v{R+1}")
e(f"v_mov_b32 v{R+1}, v{R}"); nop(2)
e(f"v_permlane16_swap_b32 v{R}, v{R+1}")
e(f"v_add_f32 v{R}, v{R}, v{R+1}"); nop(2)
e(f"v_add_f32_dpp v{R}, v{R}, v{R} row_ror:8 {DPP}")
e(f"v_add_f32 v8, v8, v{R}")
e("v_cvt_pk_bf16_f32 v8, v8, v8")
e("s_mov_b32 exec_lo, 0xff")
e("s_mov_b32 exec_hi, 0xff")
e(f"buffer_store_short v8, v15, s[32:35], s59 offen {OUTPOL}")
stamp(7, 2)
if STAMPS == 2:
    e("v_mov_b32 v20, v5")
    e(f"s_sub_u32 s66, {SPIN*4}, s45"); e("s_mul_i32 s66, s66, 100"); e("s_add_u32 s66, s66, s64"); e("s_mov_b32 s67, s65")
    wstamp_flush([(20, 7), (28, 1)], "r")
    e("v_mov_b32 v5, 0")
if PADTO:
    e("s_memrealtime s[66:67]"); e("s_waitcnt lgkmcnt(0)")
    e("s_sub_u32 s68, s66, s64"); e(f"s_mul_i32 s68, s68, {REPORT}"); e(f"s_add_u32 s68, s68, {PADTO}")
    lab("L_pad")
    e("s_memrealtime s[66:67]"); e("s_waitcnt lgkmcnt(0)")
    e("s_sub_u32 s69, s66, s64"); e("s_cmp_lt_u32 s69, s68"); e("s_cbranch_scc1 L_pad")
e(f"s_cmp_lg_u32 s59, {3*896}")
e("s_cbranch_scc1 L_wend")
e("s_mov_b64 exec, 1")
e("buffer_store_dword v7, v5, s[36:39], 0 offen")
lab("L_wend")
if STAMPS == 1:
    e("s_mov_b64 s[64:65], s[78:79]")
stamp_flush(31, 1, 12, "r")
lab("L_end")
e("s_endpgm")

ref = open('parallel_sum__sliding_block_cached__dense_activation_mish__decode.s.ref').read().split('\n')
hdr = [l for l in ref if l.startswith(';') and '@launch' not in l]
print("\n".join(hdr))
print(f"; @launch grid=(256,1,1) block=(1024,1,1) lds={LDS_BYTES}")
print(f""".amdgcn_target "amdgcn-amd-amdhsa--gfx950"
.text
.globl {NAME}
.p2align {ALIGN}
.p2align 8
.type {NAME},@function
{NAME}:""")
print("\n".join(L))
print(f""".section .rodata,"a"
.p2align 6
.amdhsa_kernel {NAME}
  .amdhsa_next_free_vgpr 128
  .amdhsa_next_free_sgpr 100
  .amdhsa_accum_offset 128
  .amdhsa_group_segment_fixed_size 0
  .amdhsa_kernarg_size 96
  .amdhsa_user_sgpr_count 2
  .amdhsa_user_sgpr_kernarg_segment_ptr 1
  .amdhsa_system_sgpr_workgroup_id_x 1
.end_amdhsa_kernel""")
```

```python
import sys, math, struct
NAME = "parallel_sum__sliding_block_cached__dense_activation_mish__decode_kernel"
opts = dict(a.split('=') for a in sys.argv[1:] if '=' in a)
NCAP = int(opts.get('ncap', 6))
KPRE = int(opts.get('kpre', 3))
REMAP = int(opts.get('remap', 1))
QPREW = int(opts.get('qprew', 1))
PFN = int(opts.get('pfn', 6))
SPIN = 40000
BTO = 48
def fhex(x): return "%#x" % struct.unpack('<I', struct.pack('<f', x))[0]
L = []
def e(s, c=None): L.append("    " + s + (("    ; " + c) if c else ""))
def cm(s): L.append("    ; " + s)
def lab(s): L.append(s + ":")
def nop(n): e(f"s_nop {n-1}")
DPP = "row_mask:0xf bank_mask:0xf"
QBASE, HBASE, XBASE, FBASE, OBASE, WSN = 0x1000, 0x21000, 0x30000, 0x40000, 0x180000, 0x200000
L_T, L_QF, L_XF, L_KF, L_VI, L_KCR, L_PL, L_ST, L_VP, L_VD, L_ZC, L_XS, L_MB = 0, 4, 12, 16, 32, 48, 64, 80, 116, 120, 124, 128, 192
L_SC, L_ONES, L_QS, L_X, L_PW, L_WW, L_OG = 0x100, 0x500, 0x900, 0x1400, 0x2400, 0x9400, 0x15400
L_Z = L_X
LDS_BYTES = 0x19400
DV = 64

def ws_srd():
    e("s_mov_b64 s[36:37], s[26:27]"); e(f"s_mov_b32 s38, {WSN}"); e("s_mov_b32 s39, 0x20000")
def lds_wait(tag, vt, vz, off, sdst, need=1, sleep=0, bound=None):
    e(f"s_mov_b32 s45, {bound if bound else SPIN*8}")
    lab(f"L_lw{tag}")
    if sleep: e(f"s_sleep {sleep}")
    e(f"ds_read_b32 v{vt}, v{vz} offset:{off}")
    e("s_sub_u32 s45, s45, 1")
    e("s_cbranch_scc1 L_lwd" + tag)
    e("s_waitcnt lgkmcnt(0)")
    e(f"v_readfirstlane_b32 s{sdst}, v{vt}")
    e(f"s_cmp_lt_u32 s{sdst}, {need}")
    e(f"s_cbranch_scc1 L_lw{tag}")
    lab(f"L_lwd{tag}")
def lds_wait4(tag, vt, off):
    e(f"s_mov_b32 s45, {SPIN*8}")
    lab(f"L_l4{tag}")
    e(f"ds_read_b128 v[{vt}:{vt+3}], v5 offset:{off}")
    e("s_sub_u32 s45, s45, 1")
    e(f"s_cbranch_scc1 L_l4d{tag}")
    e("s_waitcnt lgkmcnt(0)")
    e(f"v_and_b32 v{vt}, v{vt}, v{vt+1}")
    e(f"v_and_b32 v{vt+2}, v{vt+2}, v{vt+3}")
    e(f"v_and_b32 v{vt}, v{vt}, v{vt+2}")
    e(f"v_cmp_eq_u32 vcc, 0, v{vt}")
    e(f"s_cbranch_vccnz L_l4{tag}")
    lab(f"L_l4d{tag}")
def unit_params():
    cm("projection unit of this workgroup: s51 = 0 none / 1 wq / 2 w1, s52 = 64-column block, s53 = k half")
    if REMAP:
        e("s_lshr_b32 s51, 0x300000c0, s29")
        e("s_and_b32 s51, s51, 1")
        e("s_mul_i32 s51, s51, 26")
        e("s_xor_b32 s59, s29, s51")
        e("s_mul_i32 s52, s28, 5")
        e("s_add_u32 s52, s52, s59")
        e("s_sub_u32 s52, s52, 25")
        e("s_mul_i32 s53, s52, 43")
        e("s_lshr_b32 s53, s53, 8")
        e("s_lshl_b32 s53, s53, 1")
        e("s_add_u32 s52, s52, s53")
        e("s_lshl_b32 s53, s28, 3")
        e("s_add_u32 s53, s53, s59")
        e("s_sub_u32 s53, s53, 24")
        e("s_cmp_lt_u32 s53, 56")
        e("s_cselect_b32 s53, s53, s52")
        e("s_cmp_ge_u32 s59, 30")
        e("s_cselect_b32 s52, s53, s52")
        e("s_lshl_b32 s53, s28, 4")
        e("s_add_u32 s53, s53, s59")
        e("s_cmp_ge_u32 s59, 25")
        e("s_cselect_b32 s51, 2, 0")
        e("s_cmp_lt_u32 s59, 16")
        e("s_cselect_b32 s51, 1, s51")
        e("s_cselect_b32 s52, s53, s52")
        e("s_and_b32 s53, s52, 1")
        e("s_lshr_b32 s52, s52, 1")
        return
    e("s_mul_i32 s52, s28, 7")
    e("s_add_u32 s52, s52, s29")
    e("s_sub_u32 s52, s52, 25")
    e("s_lshl_b32 s53, s28, 4")
    e("s_add_u32 s53, s53, s29")
    e("s_cmp_ge_u32 s29, 25")
    e("s_cselect_b32 s51, 2, 0")
    e("s_cmp_lt_u32 s29, 16")
    e("s_cselect_b32 s51, 1, s51")
    e("s_cselect_b32 s52, s53, s52")
    e("s_and_b32 s53, s52, 1")
    e("s_lshr_b32 s52, s52, 1")
def kv_base():
    e("s_lshl_b32 s46, s30, 3")
    e("s_add_u32 s46, s46, s28")
    e("s_lshl_b32 s47, s46, 21")
    e("s_add_u32 s47, s47, 0x180000", "byte offset of the 1024-key window of (b, kvh)")
    e("s_and_b32 s49, s28, 1")
    e("s_lshl_b32 s49, s49, 3", "first 32 KiB block")
def allreduce_rows(op, v, tmp):
    for sw in ("32", "16"):
        e(f"v_mov_b32 v{tmp}, v{v}"); nop(2)
        e(f"v_permlane{sw}_swap_b32 v{v}, v{tmp}")
        e(f"{op} v{v}, v{v}, v{tmp}")

e("s_cmp_ge_u32 s2, 256")
e("s_cbranch_scc1 L_end")
e("s_load_dwordx16 s[4:19], s[0:1], 0", "x K V wq wo Bx w1 b1")
e("s_load_dwordx8 s[20:27], s[0:1], 64", "w2 out dbg ws")
e("v_lshrrev_b32 v1, 6, v0")
e("v_and_b32 v0, 63, v0", "lane")
e("s_and_b32 s28, s2, 7", "kvh")
e("v_readfirstlane_b32 s3, v1", "wave")
e("s_lshr_b32 s29, s2, 3", "u")
e("s_and_b32 s50, s3, 3", "index within the role")
e("s_sub_u32 s46, s3, 4")
e("s_cmp_ge_u32 s46, 4")
e("s_cbranch_scc1 L_notK")
cm("---- K waves: projection-weight burst (LDS DMA), K stream, q.K, softmax numerators")
e("s_lshl_b32 s57, s50, 10")
e(f"s_add_u32 m0, s57, {L_PW}")
e("s_mov_b32 s43, 0x20000")
e("s_sub_u32 s55, s29, 16")
e("s_cmp_lt_u32 s55, 9")
e("s_cbranch_scc1 L_Knou")
unit_params()
e("s_cmp_lg_u32 s51, 2")
e("s_cselect_b32 s54, 16, 7")
e("s_lshl_b32 s54, s54, 9", "row pitch 8192 / 3584")
e("v_lshrrev_b32 v3, 3, v0")
e("v_mul_u32_u24 v3, s54, v3")
e("v_and_b32 v4, 7, v0")
e("v_bfe_u32 v6, v0, 4, 1")
e("v_lshlrev_b32 v6, 1, v6")
e("v_xor_b32 v4, v4, v6")
e("s_and_b32 s55, s50, 1")
e("s_lshl_b32 s55, s55, 2")
e("v_xor_b32 v4, s55, v4", "bank swizzle of the 16-byte chunk")
e("v_lshl_add_u32 v4, v4, 4, v3")
e("s_mul_i32 s55, s53, 224")
e("s_lshl_b32 s56, s50, 3")
e("s_add_u32 s55, s55, s56")
e("s_mul_i32 s55, s55, s54")
e("s_lshl_b32 s56, s52, 7")
e("s_add_u32 s55, s55, s56")
e("s_lshl_b32 s56, s54, 5")
e("s_mul_i32 s42, s54, 448")
e("s_cmp_lg_u32 s51, 2")
e("s_branch L_Kiss")
lab("L_Knou")
cm("no unit: pull the last rows of each k half of this group's wq columns into L2 for the unit owners")
e("s_lshl_b32 s55, s55, 2")
e("s_add_u32 s55, s55, s50")
e(f"s_mul_i32 s56, s55, {PFN}")
e("s_cmp_ge_u32 s55, 18")
e(f"s_cselect_b32 s57, {224-18*PFN}, 0")
e(f"s_add_u32 s57, s57, {224-18*PFN}")
e("s_add_u32 s56, s56, s57")
e("s_lshl_b32 s55, s56, 13")
e(f"s_add_u32 s42, s55, {PFN*8192}", "later rows fall outside the descriptor: no traffic")
e("s_lshl_b32 s57, s28, 10")
e("s_add_u32 s55, s55, s57")
e("s_mov_b32 s56, 8192")
e("v_lshlrev_b32 v4, 4, v0")
e("s_cmp_eq_u32 s56, s56")
lab("L_Kiss")
e("s_waitcnt lgkmcnt(0)")
e("s_cselect_b64 s[40:41], s[10:11], s[16:17]")
for t in range(7):
    if t:
        e("s_add_u32 m0, m0, 4096")
        e("s_add_u32 s55, s55, s56")
    e("buffer_load_dwordx4 v4, s[40:43], s55 offen nt lds")
e("s_lshr_b32 s30, s29, 3", "b")
e("s_and_b32 s31, s29, 7", "s")
kv_base()
e("s_lshr_b32 s57, s50, 1")
e("s_add_u32 s49, s49, s57")
e("s_add_u32 s48, s49, s31")
e("s_lshl_b32 s48, s48, 12")
e("s_lshl_b32 s49, s49, 15")
e("s_and_b32 s57, s50, 1")
e("s_lshl_b32 s57, s57, 11")
e("s_add_u32 s47, s47, s57")
e("s_add_u32 s32, s6, s47")
e("s_addc_u32 s33, s7, 0")
e(f"s_mov_b32 s34, {0x80000 - 2048}")
e("s_mov_b32 s35, 0x20000")
e("v_lshrrev_b32 v1, 4, v0")
e("v_bfe_u32 v3, v0, 2, 2")
e("v_lshlrev_b32 v3, 9, v3")
e("v_lshl_add_u32 v3, v1, 6, v3")
e("v_and_b32 v6, 3, v0")
e("v_lshl_add_u32 v3, v6, 4, v3", "4 keys x 256 B per load; also the q fragment offset in LDS")
for i in range(16):
    j, lo = i >> 1, i & 1
    if lo == 0:
        if j: e("s_add_u32 s49, s49, 65536"); e("s_add_u32 s48, s48, 8192")
        e("s_and_b32 s54, s49, 0x7ffff")
        e("s_and_b32 s46, s48, 0x7fff")
        e("s_or_b32 s54, s54, s46")
    if i == KPRE:
        e("s_lshl_b32 s58, s50, 2")
        e("v_mov_b32 v9, s58")
        e("v_mov_b32 v8, 1")
        e("v_mov_b32 v5, 0")
        e("s_barrier", "LDS flags are zeroed")
    if i >= KPRE: e(f"s_waitcnt vmcnt({NCAP-1})")
    if i == NCAP - 1: e(f"ds_write_b32 v9, v8 offset:{L_PL}", "own share of the weight burst has landed")
    e(f"buffer_load_dwordx4 v[{DV+4*i}:{DV+4*i+3}], v3, s[32:35], s54 offen offset:{lo*256} nt")
cm("hand the in-flight budget over to the V wave of the same index")
for k in range(NCAP):
    e(f"v_mov_b32 v8, {k+1}")
    e(f"s_waitcnt vmcnt({NCAP-1-k})")
    e(f"ds_write_b32 v9, v8 offset:{L_KCR}")
e("v_bfe_u32 v18, v0, 2, 1", "head")
e("v_lshlrev_b32 v7, 9, v18")
e("v_lshl_add_u32 v7, v1, 6, v7")
e("s_lshr_b32 s56, s50, 1")
e("s_lshl_b32 s58, s56, 5")
e("s_and_b32 s57, s50, 1")
e("s_lshl_b32 s57, s57, 8")
e("s_add_u32 s57, s58, s57")
e("v_add_u32 v7, s57, v7")
e("v_mov_b32 v16, v9")
e("v_mov_b32 v17, 1")
e("v_lshlrev_b32 v18, 5, v18")
e("s_lshl_b32 s57, s50, 3")
e("v_add_u32 v19, s57, v18")
e("v_add_u32 v6, v9, v18")
e(f"s_mov_b32 s59, {fhex(math.log2(math.e)/16)}", "log2(e) / sqrt(Dh)")
lds_wait("k", 8, 5, L_QF, 44, sleep=1)
e(f"ds_read_b128 v[8:11], v3 offset:{L_QS}")
e(f"ds_read_b128 v[12:15], v3 offset:{L_QS+256}")
e("s_waitcnt lgkmcnt(0)")
AC = 24
chains = {j: [f"v_mov_b32_dpp v{56+j}, v{AC+4*j} quad_perm:[0,0,0,0] {DPP}"] +
             [f"v_add_f32_dpp v{56+j}, v{AC+4*j+r}, v{56+j} quad_perm:[{r},{r},{r},{r}] {DPP}" for r in (1, 2, 3)] +
             [f"v_add_f32_dpp v{56+j}, v{56+j}, v{56+j} row_ror:8 {DPP}"] for j in range(8)}
ready = {j: 10**9 for j in range(8)}
pos = [0]
def em(x): e(x); pos[0] += 1
def fill(n):
    for _ in range(n):
        cand = [j for j in range(8) if chains[j] and ready[j] <= pos[0]]
        if not cand: em("s_nop 0"); continue
        j = cand[0]; em(chains[j].pop(0)); ready[j] = pos[0] + 2
for j in range(8):
    em(f"v_mfma_f32_16x16x32_bf16 v[{AC+4*j}:{AC+4*j+3}], v[{DV+8*j}:{DV+8*j+3}], v[8:11], 0")
    fill(2)
    em(f"v_mfma_f32_16x16x32_bf16 v[{AC+4*j}:{AC+4*j+3}], v[{DV+8*j+4}:{DV+8*j+7}], v[12:15], v[{AC+4*j}:{AC+4*j+3}]")
    ready[j] = pos[0] + 8
    fill(2)
while any(chains.values()): fill(1)
cm("true max over the workgroup's 128 keys")
e("v_max3_f32 v12, v56, v57, v58")
e("v_max3_f32 v12, v12, v59, v60")
e("v_max3_f32 v12, v12, v61, v62")
e("v_max_f32 v12, v12, v63")
allreduce_rows("v_max_f32", 12, 14)
e("v_mov_b32 v13, 1")
e(f"ds_write_b64 v19, v[12:13] offset:{L_MB}")
e(f"s_mov_b32 s45, {SPIN*8}")
lab("L_kx")
e(f"ds_read_b128 v[20:23], v18 offset:{L_MB}")
e(f"ds_read_b128 v[24:27], v18 offset:{L_MB+16}")
e("s_sub_u32 s45, s45, 1")
e("s_cbranch_scc1 L_kxd")
e("s_waitcnt lgkmcnt(0)")
e("v_and_b32 v14, v21, v23")
e("v_and_b32 v15, v25, v27")
e("v_and_b32 v14, v14, v15")
e("v_cmp_eq_u32 vcc, 0, v14")
e("s_cbranch_vccnz L_kx")
lab("L_kxd")
e("v_max3_f32 v12, v20, v22, v24")
e("v_max_f32 v12, v12, v26")
e("v_mul_f32 v12, s59, v12")
for i in range(8): e(f"v_fma_f32 v{56+i}, v{56+i}, s59, -v12")
for i in range(8): e(f"v_exp_f32 v{56+i}, v{56+i}")
nop(1)
e("v_add_f32 v13, v56, v57")
for i in range(2, 8): e(f"v_add_f32 v13, v13, v{56+i}")
for i in range(8): e(f"v_cvt_pk_bf16_f32 v{56+i}, v{56+i}, v{56+i}")
allreduce_rows("v_add_f32", 13, 15)
e("s_mov_b32 exec_lo, 0x00110011")
e("s_mov_b32 exec_hi, 0x00110011")
e(f"ds_write_b128 v7, v[56:59] offset:{L_SC}")
e(f"ds_write_b128 v7, v[60:63] offset:{L_SC+16}")
e(f"ds_write_b32 v6, v12 offset:{L_XS}")
e(f"ds_write_b32 v6, v13 offset:{L_XS+16}")
e("s_mov_b64 exec, 1")
e("s_waitcnt lgkmcnt(0)")
e(f"ds_write_b32 v16, v17 offset:{L_KF}")
e("s_endpgm")
KEND = len(L)

EARLY = []
Lsave = L; L = EARLY
lab("L_notK")
e("s_lshr_b32 s30, s29, 3", "b")
e("s_and_b32 s31, s29, 7", "s")
e("v_lshrrev_b32 v1, 4, v0")
e("v_and_b32 v2, 15, v0")
e("v_mov_b32 v5, 0")
e("s_cmp_lt_u32 s3, 8")
e("s_cbranch_scc1 L_lt4")
cm("waves 8..15: zero the LDS flags; light workgroups pull the code into L2")
e("s_getpc_b64 s[40:41]")
lab("L_pc")
e("v_lshlrev_b32 v3, 2, v0")
e("ds_write_b32 v3, v5")
e("s_cmp_lt_u32 s29, 28")
e("s_cbranch_scc1 L_nocpf")
e("s_mul_i32 s46, s3, 1280")
e(f"s_sub_u32 s46, s46, {8*1280-512}")
e("v_lshl_add_u32 v3, v0, 7, s46")
e("v_min_u32 v3, L_end-L_pc, v3")
e("s_mov_b64 exec, 0x3ff")
e("global_load_dword v120, v3, s[40:41]")
e("s_mov_b64 exec, -1")
lab("L_nocpf")
e("s_waitcnt lgkmcnt(0)")
e("s_barrier")
e("s_branch L_VW")
lab("L_lt4")
e("v_lshlrev_b32 v13, 4, v0")
e("s_mov_b32 s42, 3584"); e("s_mov_b32 s43, 0x20000")
e(f"s_mov_b32 m0, {L_X}")
e("s_waitcnt lgkmcnt(0)")
e("s_mov_b64 s[40:41], s[4:5]")
e("s_cmp_eq_u32 s3, 3")
e("s_cbranch_scc0 L_Pn3")
for i in range(4): e(f"buffer_load_dwordx4 v13, s[40:43], 0 offen offset:{i*1024} lds")
lab("L_Pn3")
e("s_load_dword s44, s[26:27], 0", "epoch left by the previous launch (only tells launches apart)")
e("s_barrier")
e("s_branch L_P")
L = Lsave

lab("L_P")
cm("---- waves 0..3: tag, layernorm statistics, one 16-column tile of the projection unit each")
unit_params()
ws_srd()
e("s_waitcnt lgkmcnt(0)")
e("s_cmp_eq_u32 s3, 1")
e("s_cbranch_scc0 L_Pm1")
e("s_mul_i32 s44, s44, 0x9E3779B5")
e("s_add_u32 s44, s44, 0x7F4A7C15")
e("s_cmp_eq_u32 s44, 0")
e("s_cselect_b32 s44, 0x7F4A7C15, s44", "tag of this launch (non-zero, differs from the epoch)")
e("v_mov_b32 v24, s44")
e(f"ds_write_b32 v5, v24 offset:{L_T}")
e("s_getreg_b32 s46, hwreg(HW_REG_XCC_ID)")
e("s_and_b32 s46, s46, 15")
e("s_lshl_b32 s47, s28, 12")
e("s_lshl_b32 s48, s29, 7")
e("s_add_u32 s48, s48, s47")
e(f"s_add_u32 s48, s48, {XBASE}")
e("v_mov_b32 v8, s46"); e("v_mov_b32 v9, s44"); e("v_mov_b32 v10, s46"); e("v_mov_b32 v11, s44")
e("s_mov_b64 exec, 0xff")
e("buffer_store_dwordx4 v[8:11], v13, s[36:39], s48 offen sc1", "publish own die id")
e("s_mov_b64 exec, -1")
lab("L_Pm1")
e("s_cmp_eq_u32 s51, 0")
e("s_cbranch_scc1 L_Pdone")
e("s_cmp_eq_u32 s3, 3")
e("s_cbranch_scc0 L_Pm3")
e("v_mov_b32 v16, 0x3f803f80"); e("v_mov_b32 v17, v16"); e("v_mov_b32 v18, v16"); e("v_mov_b32 v19, v16")
e(f"ds_write_b128 v13, v[16:19] offset:{L_ONES}")
e("v_and_b32 v15, 3, v0")
e("v_mul_u32_u24 v12, 896, v15")
e("v_lshrrev_b32 v14, 2, v0")
e("v_lshl_add_u32 v12, v14, 6, v12")
e("v_cmp_gt_u32 vcc, 14, v14")
e("v_mov_b32 v14, 3584")
e("v_lshlrev_b32 v15, 3, v15")
e("v_cndmask_b32 v12, v14, v12, vcc")
e("v_mov_b32 v36, 0"); e("v_mov_b32 v37, 0")
e("s_waitcnt vmcnt(0)")
for i in range(4): e(f"ds_read_b128 v[{20+4*i}:{23+4*i}], v12 offset:{L_X+16*i}")
e("s_waitcnt lgkmcnt(0)")
for i in range(16):
    e(f"v_dot2c_f32_bf16 v36, v{20+i}, v16")
    e(f"v_dot2c_f32_bf16 v37, v{20+i}, v{20+i}")
nop(4)
for sh in (4, 8):
    e(f"v_add_f32_dpp v36, v36, v36 row_ror:{sh} {DPP}")
    e(f"v_add_f32_dpp v37, v37, v37 row_ror:{sh} {DPP}")
    nop(2)
for sw in ("16", "32"):
    e("v_mov_b32 v38, v36"); e("v_mov_b32 v39, v37"); nop(2)
    e(f"v_permlane{sw}_swap_b32 v36, v38")
    e(f"v_permlane{sw}_swap_b32 v37, v39")
    e("v_add_f32 v36, v36, v38"); e("v_add_f32 v37, v37, v39")
e(f"v_mul_f32 v36, {fhex(1.0/448)}, v36", "mean")
e(f"v_mul_f32 v37, {fhex(1.0/448)}, v37")
e("v_fma_f32 v37, -v36, v36, v37", "variance")
e("v_max_f32 v37, 0, v37")
e(f"v_add_f32 v37, {fhex(1e-5)}, v37")
e("v_rsq_f32 v37, v37")
e("v_sub_f32 v36, 0, v36")
e("v_mov_b32 v40, 1")
e(f"ds_write_b64 v15, v[36:37] offset:{L_ST}")
e("s_waitcnt lgkmcnt(0)")
e(f"ds_write_b32 v5, v40 offset:{L_XF}")
lab("L_Pm3")
e("v_lshlrev_b32 v10, 10, v1")
e("v_lshrrev_b32 v11, 2, v2")
e("v_lshl_add_u32 v10, v11, 7, v10")
e("v_and_b32 v11, 3, v0")
e("v_lshl_add_u32 v10, v11, 3, v10")
e("v_lshlrev_b32 v12, 3, v11")
e("v_bfe_u32 v11, v0, 3, 2")
e("v_xor_b32 v11, s3, v11")
e("v_lshl_add_u32 v6, v11, 5, v10", "transposing-read address of this wave's tile")
e("v_mul_u32_u24 v14, 896, v2")
e("s_mul_i32 s54, s53, 448")
e(f"s_add_u32 s54, s54, {L_X}")
e("v_add_u32 v14, s54, v14")
e("v_cmp_gt_u32 vcc, 4, v2")
e(f"v_mov_b32 v15, {L_ONES}"); nop(1)
e("v_cndmask_b32 v14, v15, v14, vcc")
e("v_lshl_add_u32 v14, v1, 4, v14", "columns 0..3 = x rows, the others = ones (column sums of W)")
e("v_and_b32 v10, 3, v0")
e("v_lshlrev_b32 v10, 6, v10")
e("v_and_b32 v11, 12, v0")
e("v_add_u32 v10, v10, v11")
e("s_and_b32 s54, s52, 7")
e("s_lshl_b32 s54, s54, 8")
e("s_lshl_b32 s55, s53, 11")
e("s_add_u32 s54, s54, s55")
e("s_lshl_b32 s55, s3, 6")
e("s_add_u32 s54, s54, s55")
e("s_lshl_b32 s55, s28, 14")
e("s_add_u32 s54, s54, s55")
e(f"s_add_u32 s54, s54, {QBASE}")
e("s_lshl_b32 s55, s52, 11")
e("s_lshl_b32 s56, s53, 10")
e("s_add_u32 s55, s55, s56")
e(f"s_add_u32 s55, s55, {HBASE}")
e("s_lshl_b32 s56, s3, 8")
e("s_add_u32 s55, s55, s56")
e("s_cmp_eq_u32 s51, 1")
e("s_cselect_b32 s54, s54, s55")
e("s_cselect_b32 s56, 12, 6")
e("v_lshrrev_b32 v11, 2, v2")
e("v_lshlrev_b32 v11, s56, v11")
e("v_and_b32 v13, 3, v0")
e("v_lshl_add_u32 v13, v13, 4, v11")
if QPREW:
    for r in range(4): e(f"v_mov_b32 v{28+r}, 0")
    e("s_cbranch_scc0 L_npw")
    e("s_mov_b64 exec, 0xffff")
    e("buffer_store_dwordx4 v[28:31], v13, s[36:39], s54 offen")
    e("s_mov_b64 exec, -1")
    lab("L_npw")
lds_wait("p", 27, 5, L_T, 44)
lds_wait("x", 26, 5, L_XF, 46)
XF = 96
for t in range(7): e(f"ds_read_b128 v[{XF+4*t}:{XF+4*t+3}], v14 offset:{64*t}")
e(f"ds_read_b64 v[36:37], v12 offset:{L_ST}")
e("v_mov_b32 v26, v27")
lds_wait4("pl", 16, L_PL)
for t in range(7):
    r = 64 + 4*t
    e(f"ds_read_b64_tr_b16 v[{r}:{r+1}], v6 offset:{L_PW + t*4096}")
    e(f"ds_read_b64_tr_b16 v[{r+2}:{r+3}], v6 offset:{L_PW + t*4096 + 512}")
for t in range(7):
    r = 64 + 4*t
    e(f"s_waitcnt lgkmcnt({12-2*t})")
    e(f"v_mfma_f32_16x16x32_bf16 v[16:19], v[{r}:{r+3}], v[{XF+4*t}:{XF+4*t+3}], {'0' if t == 0 else 'v[16:19]'}")
nop(8)
cm("LN(x) @ W = rstd * (x @ W - mean * colsum(W))")
for r in range(4): e(f"v_mov_b32 v{20+r}, v{16+r}")
for r in range(4): e(f"v_fmac_f32_dpp v{20+r}, v{16+r}, v36 row_shl:4 {DPP}")
for r in range(4): e(f"v_mul_f32 v{20+r}, v{20+r}, v37")
e("v_cvt_pk_bf16_f32 v20, v20, v21")
e("v_cvt_pk_bf16_f32 v21, v22, v23")
e("ds_bpermute_b32 v24, v10, v20")
e("ds_bpermute_b32 v25, v10, v21")
e("s_waitcnt lgkmcnt(0)")
e("s_mov_b64 exec, 0xffff")
e("s_cmp_eq_u32 s51, 1")
e("s_cbranch_scc0 L_Pb")
e("buffer_store_dwordx4 v[24:27], v13, s[36:39], s54 offen", "q: seen through L2 by same-die readers")
for r in range(4): e(f"v_mov_b32 v{32+r}, v{24+r}")
e("s_mov_b32 s59, s54")
e("s_branch L_Pnb")
lab("L_Pb")
e("buffer_store_dwordx4 v[24:27], v13, s[36:39], s54 offen sc1")
lab("L_Pnb")
e("s_mov_b64 exec, -1")
lab("L_Pdone")
e("v_mov_b32 v36, v13")
def g_bstore(sfx):
    e("s_cmp_eq_u32 s46, 2")
    e(f"s_cbranch_scc0 L_qnb{sfx}")
    e("s_cmp_eq_u32 s51, 1")
    e(f"s_cbranch_scc0 L_qnb{sfx}")
    e("s_mov_b64 exec, 0xffff")
    e("buffer_store_dwordx4 v[32:35], v36, s[36:39], s59 offen sc1", "group spans dies: write through")
    e("s_mov_b64 exec, -1")
    e("s_mov_b32 s51, 0")
    lab(f"L_qnb{sfx}")
e("s_cmp_eq_u32 s3, 1")
e("s_cbranch_scc1 L_G")
e("s_cmp_eq_u32 s3, 0")
e("s_cbranch_scc0 L_Pw")
cm("wave 0: are all 32 workgroups of this kv head on one die?  1 = yes, 2 = no")
e("s_getreg_b32 s48, hwreg(HW_REG_XCC_ID)")
e("s_and_b32 s48, s48, 15")
e("s_lshl_b32 s47, s28, 12")
e(f"s_add_u32 s47, s47, {XBASE}")
e("v_lshlrev_b32 v6, 7, v0")
lds_wait("xt", 9, 5, L_T, 44, sleep=1)
lds_wait("xq", 10, 5, L_QF, 49, sleep=2, bound=BTO)
e("s_mov_b32 exec_lo, -1"); e("s_mov_b32 exec_hi, 0")
e(f"s_mov_b32 s45, {SPIN}")
e("s_mov_b32 s49, 2")
e("s_waitcnt lgkmcnt(0)")
lab("L_xpoll")
e("buffer_load_dwordx2 v[10:11], v6, s[36:39], s47 offen sc1")
e("s_sub_u32 s45, s45, 1")
e("s_waitcnt vmcnt(0)")
e("s_cbranch_scc1 L_xdone")
e("v_cmp_ne_u32 vcc, s44, v11")
e("s_cbranch_vccnz L_xpoll")
e("v_cmp_ne_u32 vcc, s48, v10")
e("s_cbranch_vccnz L_xdone")
e("s_mov_b32 s49, 1")
lab("L_xdone")
e("v_mov_b32 v8, s49")
e(f"ds_write_b32 v5, v8 offset:{L_VD}")
lab("L_Pw")
e("s_cmp_eq_u32 s51, 1")
e("s_cbranch_scc0 L_end")
lds_wait("pb", 28, 5, L_VD, 46, sleep=2)
g_bstore("c")
e("s_endpgm")
lab("L_G")
cm("wave 1: gather the two partial q vectors of (b, kvh) into LDS")
e("v_lshlrev_b32 v6, 4, v0")
e("v_lshlrev_b32 v7, 3, v0")
e("s_lshl_b32 s55, s28, 14")
e("s_lshl_b32 s56, s30, 12")
e("s_add_u32 s55, s55, s56")
e(f"s_add_u32 s55, s55, {QBASE}")
e("v_mov_b32 v24, s44")
for i in range(4): e(f"s_mov_b64 s[{80+2*i}:{81+2*i}], -1")
lds_wait("gp", 25, 5, L_PL, 46, sleep=1)
e(f"s_mov_b32 s45, {SPIN}")
lab("L_qpoll")
e(f"ds_read_b32 v25, v5 offset:{L_VD}")
for i in range(4):
    e(f"s_or_b64 exec, s[{80+2*i}:{81+2*i}], 1")
    e(f"buffer_load_dwordx4 v[{64+4*i}:{67+4*i}], v6, s[36:39], s55 offen offset:{i*1024} sc1")
e("s_waitcnt vmcnt(0)")
for i in range(4):
    e(f"s_mov_b64 exec, s[{80+2*i}:{81+2*i}]")
    e(f"v_cmpx_eq_u32 vcc, s44, v{67+4*i}")
    e(f"ds_write_b64 v7, v[{64+4*i}:{65+4*i}] offset:{L_QS+i*512}")
    e(f"s_andn2_b64 s[{80+2*i}:{81+2*i}], s[{80+2*i}:{81+2*i}], exec")
e("s_mov_b64 exec, -1")
e("s_or_b64 s[48:49], s[80:81], s[82:83]")
e("s_or_b64 s[48:49], s[48:49], s[84:85]")
e("s_or_b64 s[48:49], s[48:49], s[86:87]")
e("s_cbranch_scc0 L_qgo")
e("s_waitcnt lgkmcnt(0)")
e("v_readfirstlane_b32 s46, v25")
g_bstore("a")
e("s_sub_u32 s45, s45, 1")
e("s_cbranch_scc0 L_qpoll")
lab("L_qgo")
e("s_waitcnt lgkmcnt(0)")
e(f"ds_write_b32 v5, v24 offset:{L_QF}")
lds_wait("gv", 25, 5, L_VD, 46, sleep=2)
g_bstore("b")
e("s_endpgm")

lab("L_VW")
ws_srd()
e("s_cmp_ge_u32 s3, 12")
e("s_cbranch_scc1 L_W")
cm("---- V waves: one 64-dim quarter of V for all 128 keys, P.V with a one-hot A operand")
kv_base()
e("s_add_u32 s48, s49, s31")
e("s_lshl_b32 s48, s48, 12")
e("s_lshl_b32 s49, s49, 15")
e("s_lshl_b32 s52, s50, 7")
e("v_lshrrev_b32 v10, 3, v0")
e("v_lshlrev_b32 v3, 9, v10")
e("v_and_b32 v11, 7, v0")
e("v_lshl_add_u32 v3, v11, 4, v3")
e("v_add_u32 v3, s52, v3")
e("s_add_u32 s32, s8, s47")
e("s_addc_u32 s33, s9, 0")
e("s_mov_b32 s34, 0x80000")
e("s_mov_b32 s35, 0x20000")
e("s_mov_b64 exec, 1")
e("buffer_load_dword v121, v5, s[32:35], 0 offen", "address-translation warm-up")
e("s_mov_b64 exec, -1")
e("v_lshlrev_b32 v10, 6, v10")
e("v_and_b32 v12, 1, v0")
e("v_cmp_eq_u32 vcc, 1, v12")
e("v_mov_b32 v13, 0xffff")
e("v_mov_b32 v12, 0xffff0000")
e("v_cndmask_b32 v13, v13, v12, vcc")
e("v_bfe_u32 v12, v0, 1, 2")
for j in range(4):
    e(f"v_cmp_eq_u32 vcc, {j}, v12")
    nop(2)
    e(f"v_cndmask_b32 v{6+j}, 0, v13, vcc")
e("s_and_b32 s59, s29, 15")
e("v_and_b32 v12, 1, v1")
e("v_cvt_f32_u32 v2, v12")
e("v_lshl_add_u32 v12, v12, 3, v11")
e("v_xor_b32 v12, s59, v12")
e("v_lshrrev_b32 v4, 1, v1")
e("v_lshlrev_b32 v4, 15, v4")
e("v_lshl_add_u32 v4, v12, 4, v4")
e("v_lshlrev_b32 v1, 4, v1")
e("s_lshl_b32 s58, s28, 16")
e("s_lshl_b32 s59, s50, 13")
e("s_add_u32 s58, s58, s59")
e("s_lshl_b32 s59, s29, 8")
e("s_add_u32 s58, s58, s59")
e(f"s_add_u32 s58, s58, {OBASE}")
e("s_lshl_b32 s57, s50, 2")
e("v_mov_b32 v11, s57")
e("v_mov_b32 v12, 1")
e("s_mov_b32 s57, 0")
e("s_mov_b32 s86, 0")
e("s_mov_b32 s60, 0x00ff00ff")
e("s_mov_b32 s61, 0x00ff00ff")
for r in range(4): e(f"v_mov_b32 v{16+r}, 0")
e("s_mov_b64 exec, s[60:61]")
e("buffer_store_dwordx4 v[16:19], v4, s[36:39], s58 offen", "own slot becomes L2 resident (tag 0 = empty)")
e("s_mov_b64 exec, -1")
for i in range(16):
    if i: e("s_add_u32 s49, s49, 32768"); e("s_add_u32 s48, s48, 4096")
    e("s_and_b32 s54, s49, 0x7ffff")
    e("s_and_b32 s46, s48, 0x7fff")
    e("s_or_b32 s54, s54, s46")
    if i < NCAP:
        lab(f"L_cw{i}")
        e(f"s_cmp_ge_u32 s57, {i+1}")
        e(f"s_cbranch_scc1 L_cwd{i}")
        if i == 0: e("s_sleep 1")
        e(f"ds_read_b32 v14, v11 offset:{L_KCR}")
        e("s_waitcnt lgkmcnt(0)")
        e("v_readfirstlane_b32 s57, v14")
        e(f"s_branch L_cw{i}")
        lab(f"L_cwd{i}")
    else:
        e("s_cmp_lg_u32 s86, 0")
        e(f"s_cbranch_scc1 L_un{i}")
        e(f"ds_read_b32 v14, v5 offset:{L_QF}")
        e(f"s_waitcnt vmcnt({NCAP-1}) lgkmcnt(0)")
        e("v_readfirstlane_b32 s86, v14")
        lab(f"L_un{i}")
    e(f"buffer_load_dwordx4 v[{DV+4*i}:{DV+4*i+3}], v3, s[32:35], s54 offen nt")
e(f"ds_write_b32 v11, v12 offset:{L_VI}")
lds_wait4("v", 12, L_KF)
SC = 16
for h in range(2):
    for i in range(4): e(f"ds_read_b128 v[{SC+16*h+4*i}:{SC+16*h+4*i+3}], v10 offset:{L_SC+512*h+16*i}")
e(f"ds_read_b128 v[48:51], v1 offset:{L_XS}")
e(f"ds_read_b32 v15, v5 offset:{L_T}")
e("s_waitcnt lgkmcnt(0)")
e("v_add_f32 v49, v49, v50")
e("v_add_f32 v49, v49, v51")
e("v_fma_f32 v14, v49, v2, v48", "max (even rows) / sum (odd rows)")
for t in range(16):
    tau = (t & 1)*8 + (t >> 1)
    for h in range(2):
        for k in range(4): e(f"v_and_b32 v{48+4*h+k}, v{SC+16*h+tau}, v{6+k}")
    nop(1)
    e(f"s_waitcnt vmcnt({15-t})")
    for h in range(2):
        src = "0" if t == 0 else f"v[{56+4*h}:{59+4*h}]"
        e(f"v_mfma_f32_16x16x32_bf16 v[{56+4*h}:{59+4*h}], v[{48+4*h}:{51+4*h}], v[{DV+4*t}:{DV+4*t+3}], {src}")
e("v_mov_b32 v16, 1")
nop(7)
for r in range(4): e(f"v_permlane32_swap_b32 v{56+r}, v{60+r}")
for r in range(4): e(f"v_add_f32_dpp v{56+r}, v{60+r}, v{56+r} row_ror:8 {DPP}")
e("s_mov_b64 exec, s[60:61]")
e("v_cvt_pk_bf16_f32 v12, v56, v57")
e("v_cvt_pk_bf16_f32 v13, v58, v59")
e("buffer_store_dwordx4 v[12:15], v4, s[36:39], s58 offen")
e("s_mov_b64 exec, 1")
e(f"ds_add_u32 v5, v16 offset:{L_VP}")
e("s_mov_b64 exec, s[60:61]")
lds_wait("vv", 17, 5, L_VD, 46, sleep=1)
e("s_cmp_eq_u32 s46, 1")
e("s_cbranch_scc1 L_end")
e("buffer_store_dwordx4 v[12:15], v4, s[36:39], s58 offen sc1", "group spans dies: write through")
e("s_endpgm")

lab("L_W")
cm("---- W waves: 64 rows of wo (32 of w2) x 64 columns for a batch pair, split combine, final sum")
e("s_cmp_ge_u32 s29, 28")
e("s_cbranch_scc1 L_end")
e("s_lshr_b32 s47, s29, 2", "column block c")
e("s_and_b32 s49, s29, 1", "batch pair")
e("s_bfe_u32 s46, s29, 0x10001", "head within the kv head")
e("s_lshl_b32 s85, s28, 1")
e("s_add_u32 s85, s85, s46")
e("s_lshl_b32 s51, s85, 2")
e("s_add_u32 s51, s51, s50", "row chunk")
e("s_lshr_b32 s55, s51, 1")
e("s_and_b32 s48, s51, 1")
e("s_mul_i32 s84, s50, 0x3000")
e(f"s_add_u32 s84, s84, {L_WW}")
e("s_mov_b64 s[32:33], s[12:13]"); e(f"s_mov_b32 s34, {4096*448*2}"); e("s_mov_b32 s35, 0x20000")
e("s_mov_b64 s[80:81], s[20:21]"); e(f"s_mov_b32 s82, {1792*448*2}"); e("s_mov_b32 s83, 0x20000")
e(f"s_mul_i32 s62, s51, {64*896}")
e(f"s_mul_i32 s63, s51, {32*896}")
e("s_lshl_b32 s57, s47, 7")
e("s_add_u32 s62, s62, s57")
e("s_add_u32 s63, s63, s57")
e("s_mov_b64 exec, 1")
e("buffer_load_dword v121, v5, s[32:35], s62 offen", "address-translation warm-up")
e("buffer_load_dword v122, v5, s[80:83], s63 offen")
e("s_mov_b64 exec, -1")
e("v_lshrrev_b32 v6, 3, v0")
e("v_mul_u32_u24 v6, 896, v6")
e("v_and_b32 v40, 7, v0")
e("v_bfe_u32 v41, v0, 4, 1")
e("v_lshlrev_b32 v41, 1, v41")
e("v_xor_b32 v40, v40, v41")
e("v_xor_b32 v41, 4, v40")
e("v_lshl_add_u32 v40, v40, 4, v6")
e("v_lshl_add_u32 v41, v41, 4, v6")
e("v_lshlrev_b32 v10, 10, v1")
e("v_lshrrev_b32 v11, 2, v2")
e("v_lshl_add_u32 v10, v11, 7, v10")
e("v_and_b32 v11, 3, v0")
e("v_lshl_add_u32 v10, v11, 3, v10")
e("v_add_u32 v10, s84, v10")
e("v_bfe_u32 v11, v0, 3, 2")
for j in range(4):
    e(f"v_xor_b32 v12, {j}, v11")
    e(f"v_lshl_add_u32 v{6+j}, v12, 5, v10")
e("v_and_b32 v10, 1, v0")
e("v_lshlrev_b32 v10, 10, v10")
e("v_bfe_u32 v11, v0, 3, 1")
e("v_lshl_add_u32 v10, v11, 6, v10")
e("v_lshrrev_b32 v11, 1, v1")
e("v_lshl_add_u32 v10, v11, 8, v10")
e("v_and_b32 v11, 1, v1")
e("v_lshl_add_u32 v10, v11, 5, v10")
e("v_lshlrev_b32 v14, 4, v1")
e("v_bfe_u32 v11, v0, 2, 1")
e("v_lshl_add_u32 v10, v11, 4, v10")
e("v_lshl_add_u32 v14, v11, 3, v14")
e("s_lshl_b32 s53, s55, 11")
e("s_lshl_b32 s54, s48, 9")
e("s_add_u32 s53, s53, s54")
e("s_lshl_b32 s54, s49, 7")
e("s_add_u32 s53, s53, s54")
e(f"s_add_u32 s53, s53, {HBASE}")
e("s_mov_b64 s[40:41], s[18:19]"); e("s_mov_b32 s42, 3584"); e("s_mov_b32 s43, 0x20000")
e("s_lshl_b32 s54, s51, 6")
e("buffer_load_dwordx2 v[20:21], v14, s[40:43], s54 offen", "b1")
e("s_lshl_b32 s54, s51, 13")
e("s_lshl_b32 s58, s49, 12")
e("s_add_u32 s54, s54, s58")
e(f"s_add_u32 s54, s54, {OBASE}")
e("v_lshlrev_b32 v11, 4, v0")
cm("accumulator block: 64-byte segments of 7 doubles + an arrival count")
e("s_lshl_b32 s56, s47, 1")
e("s_add_u32 s56, s56, s49")
e("s_lshl_b32 s88, s56, 2")
e("s_add_u32 s88, s88, s50")
e("s_lshl_b32 s56, s88, 9")
e(f"s_add_u32 s56, s56, {FBASE}")
e("s_lshl_b32 s88, s88, 7")
e(f"s_add_u32 s88, s88, {FBASE + 0x10000}")
e("v_lshlrev_b32 v13, 3, v0")
e("s_lshl_b32 s58, s50, 9")
e("v_add_u32 v12, s58, v13")
e("v_lshrrev_b32 v113, 3, v0")
e("s_lshl_b32 s58, s50, 3")
e("v_add_u32 v113, s58, v113")
e("v_mul_u32_u24 v113, 7, v113")
e("v_and_b32 v114, 7, v0")
e("v_add_u32 v113, v113, v114")
e("v_cmp_gt_u32 vcc, 128, v113")
e("v_cmp_gt_u32 s[90:91], 7, v114")
e("v_cmp_eq_u32 s[92:93], 7, v114")
e("s_and_b64 s[90:91], s[90:91], vcc")
e("v_min_u32 v113, 127, v113")
e("v_cndmask_b32 v115, 0, 1.0, s[92:93]")
e("v_and_b32 v116, 1, v113")
e("v_lshlrev_b32 v117, 6, v116")
e("v_bfe_u32 v116, v113, 1, 4")
e("v_lshl_add_u32 v117, v116, 1, v117")
e("v_bfe_u32 v116, v113, 5, 1")
e("v_lshl_add_u32 v117, v116, 5, v117")
e("v_lshrrev_b32 v116, 6, v113")
e("v_mul_u32_u24 v116, 896, v116")
e("v_add_u32 v117, v117, v116")
e("s_mul_i32 s89, s49, 1792")
e("s_lshl_b32 s58, s47, 7")
e("s_add_u32 s89, s89, s58")
e("v_lshlrev_b32 v113, 2, v113")
e(f"v_add_u32 v113, {L_Z}, v113")
e("s_cmp_eq_u32 s50, 2")
e("s_cselect_b32 s94, 0xffffff, -1")
e("s_cselect_b32 s95, 0, -1")
e("s_lshl_b32 s58, s50, 12")
e(f"s_add_u32 s58, s58, {L_OG}")
e("v_xor_b32 v4, v1, v2")
e("v_lshlrev_b32 v14, 8, v2")
e("v_add_u32 v14, s58, v14")
for t in range(2):
    for ee in range(2):
        e(f"v_xor_b32 v42, {ee*8+4*t}, v4")
        e(f"v_lshl_add_u32 v{44+2*t+ee}, v42, 4, v14")
e("s_lshl_b32 s57, s50, 2")
e("v_mov_b32 v43, s57")
e("s_add_u32 m0, s84, 8192")
lds_wait("w", 14, 5, L_T, 44, sleep=2)
G = 16; BF = 64; ACC = 48; TB = 36
for j in range(4): e(f"v_mov_b32 v{ACC+4*j}, 0")
e("s_mov_b64 s[40:41], s[4:5]")
e("s_cmp_lg_u32 s85, 0")
e("s_cbranch_scc1 L_noini")
e("s_cmp_eq_u32 s50, 3")
e("s_cbranch_scc1 L_noini")
cm("head 0 units start the accumulators at the residual x, then raise a flag")
e("buffer_load_ushort v24, v117, s[40:43], s89 offen")
for r in range(4): e(f"v_mov_b32 v{28+r}, s44")
e("s_waitcnt vmcnt(0)")
e("v_lshlrev_b32 v24, 16, v24")
e("v_cndmask_b32 v24, 0, v24, s[90:91]")
e("v_cvt_f64_f32 v[26:27], v24")
e("buffer_store_dwordx2 v[26:27], v13, s[36:39], s56 offen sc1")
e("s_waitcnt vmcnt(0)")
e("s_mov_b64 exec, 0xff")
e("buffer_store_dwordx4 v[28:31], v11, s[36:39], s88 offen sc1")
e("s_mov_b64 exec, -1")
lab("L_noini")
e("s_mov_b64 s[40:41], s[22:23]")
lds_wait("hq", 14, 5, L_QF, 52, sleep=2)
e("buffer_load_dword v118, v5, s[36:39], s88 offen sc1")
e("buffer_load_dwordx4 v[16:19], v10, s[36:39], s53 offen sc1")
for i in range(4):
    if i: e(f"s_add_u32 s63, s63, {8*896-1024}")
    e(f"buffer_load_dwordx4 v{40+(i&1)}, s[80:83], s63 offen offset:{i*1024} lds")
e("s_mov_b32 m0, s84")
lds_wait("c", 14, 43, L_VI, 52, sleep=1)
for i in range(8):
    if i == 4: e("s_add_u32 m0, s84, 4096")
    if i: e(f"s_add_u32 s62, s62, {8*896-1024 if i != 4 else 8*896+3072}")
    e(f"buffer_load_dwordx4 v{40+(i&1)}, s[32:35], s62 offen offset:{(i&3)*1024} lds")
e("s_waitcnt vmcnt(8)")
e("s_cmp_eq_u32 s28, 7")
e("s_cbranch_scc1 L_skipm")
e(f"s_mov_b32 s45, {SPIN}")
e("s_branch L_achk")
lab("L_apoll")
e("buffer_load_dwordx4 v[16:19], v10, s[36:39], s53 offen sc1")
e("s_sub_u32 s45, s45, 1")
e("s_waitcnt vmcnt(0)")
e("s_cbranch_scc1 L_ago")
lab("L_achk")
e("v_cmp_ne_u32 vcc, s44, v19")
e("s_cbranch_vccnz L_apoll")
lab("L_ago")
for j in range(4):
    r = 96 + j*4
    e(f"ds_read_b64_tr_b16 v[{r}:{r+1}], v{6+j} offset:8192")
    e(f"ds_read_b64_tr_b16 v[{r+2}:{r+3}], v{6+j} offset:{8192+512}")
cm("h = both k halves + b1;  mish(h) = h * n / (n + 2),  n = e^h (e^h + 2)  (tanh(softplus) exactly; 1.0 in fp32 past h = 20)")
e("v_lshlrev_b32 v24, 16, v16"); e("v_and_b32 v25, 0xffff0000, v16")
e("v_lshlrev_b32 v26, 16, v17"); e("v_and_b32 v27, 0xffff0000, v17")
e("v_lshlrev_b32 v28, 16, v20"); e("v_and_b32 v29, 0xffff0000, v20")
e("v_lshlrev_b32 v30, 16, v21"); e("v_and_b32 v31, 0xffff0000, v21")
for r in range(4): e(f"v_add_f32_dpp v{24+r}, v{24+r}, v{24+r} quad_perm:[1,0,3,2] {DPP}")
for r in range(4): e(f"v_add_f32 v{24+r}, v{24+r}, v{28+r}")
for r in range(4): e(f"v_min_f32 v{28+r}, 0x41a00000, v{24+r}")
for r in range(4): e(f"v_mul_f32 v{28+r}, {fhex(math.log2(math.e))}, v{28+r}")
for r in range(4): e(f"v_exp_f32 v{28+r}, v{28+r}")
nop(1)
for r in range(4): e(f"v_add_f32 v{32+r}, 2.0, v{28+r}")
for r in range(4): e(f"v_mul_f32 v{28+r}, v{28+r}, v{32+r}")
for r in range(4): e(f"v_add_f32 v{32+r}, 2.0, v{28+r}")
for r in range(4): e(f"v_rcp_f32 v{32+r}, v{32+r}")
nop(1)
for r in range(4): e(f"v_mul_f32 v{28+r}, v{28+r}, v{32+r}")
for r in range(4): e(f"v_mul_f32 v{24+r}, v{24+r}, v{28+r}")
e("v_cvt_pk_bf16_f32 v32, v24, v25")
e("v_cvt_pk_bf16_f32 v33, v26, v27")
nop(2)
for bsel in range(2):
    for ee in range(2):
        for d in range(2):
            e(f"v_mov_b32_dpp v{16+2*ee+d}, v{32+d} row_newbcast:{8*bsel+4*ee} row_mask:0xf bank_mask:{0x3 << (2*bsel):#x}")
nop(1)
e("s_waitcnt lgkmcnt(0)")
for j in range(4): e(f"v_mfma_f32_16x16x32_bf16 v[{ACC+4*j}:{ACC+4*j+3}], v[16:19], v[{96+4*j}:{99+4*j}], 0")
lab("L_skipm")
e("s_cmp_eq_u32 s50, 3")
e("s_cbranch_scc1 L_ifok")
e(f"s_mov_b32 s45, {SPIN}")
lab("L_ifp")
e("v_cmp_ne_u32 vcc, s44, v118")
e("s_cbranch_vccz L_ifok")
e("buffer_load_dword v118, v5, s[36:39], s88 offen sc1")
e("s_sub_u32 s45, s45, 1")
e("s_waitcnt vmcnt(0)")
e("s_cbranch_scc0 L_ifp")
lab("L_ifok")
nop(8)
for j in range(4): e(f"v_mul_f32 v{TB+j}, 0.5, v{ACC+4*j}")
e("s_mov_b32 m0, s58")
e("v_mov_b32 v42, 1")
e("v_mov_b32 v34, s44")
lds_wait("wvp", 14, 5, L_VP, 52, need=4)
e(f"s_mov_b32 s45, {SPIN}")
for j in range(4): e(f"buffer_load_dwordx4 v11, s[36:39], s54 offen offset:{j*1024} sc1 lds")
for t in range(2):
    e(f"s_waitcnt vmcnt({8 if t == 0 else 4})")
    for j in range(4):
        r = BF + (j*2+t)*4
        e(f"ds_read_b64_tr_b16 v[{r}:{r+1}], v{6+j} offset:{t*4096}")
        e(f"ds_read_b64_tr_b16 v[{r+2}:{r+3}], v{6+j} offset:{t*4096+512}")
    if t == 0: e("s_waitcnt lgkmcnt(0)")
e("s_branch L_ochk")
lab("L_opoll")
e("s_or_b32 s52, vcc_lo, vcc_hi")
e("s_lshr_b32 s53, s52, 16")
e("s_or_b32 s52, s52, s53")
for j in range(4):
    e(f"s_and_b32 s53, s52, {0xF << (4*j):#x}")
    e(f"s_cbranch_scc0 L_os{j}")
    e(f"buffer_load_dwordx4 v11, s[36:39], s54 offen offset:{j*1024} sc1 lds")
    lab(f"L_os{j}")
lab("L_ochk")
e("s_waitcnt vmcnt(0)")
for k in range(4): e(f"ds_read_b128 v[{G+4*k}:{G+4*k+3}], v{44+k}")
e("s_sub_u32 s45, s45, 1")
e("s_waitcnt lgkmcnt(0)")
e("s_cbranch_scc1 L_ogo")
e(f"v_bitop3_b32 v{ACC}, v{G+3}, v{G+7}, s44 bitop3:0x7e")
e(f"v_bitop3_b32 v{ACC+1}, v{G+11}, v{G+15}, s44 bitop3:0x7e")
e(f"v_or_b32 v{ACC}, v{ACC}, v{ACC+1}")
e(f"v_cmp_ne_u32 vcc, 0, v{ACC}")
e("s_cbranch_vccnz L_opoll")
lab("L_ogo")
cm("rows of A = the 8 key splits of two batches; split weights exp(m_s - m) / l applied to the products")
e(f"v_mov_b32 v{G+2}, v{G+4}")
e(f"v_mov_b32 v{G+3}, v{G+5}")
e(f"v_max_f32_dpp v14, v{G+10}, v{G+10} quad_perm:[1,0,3,2] {DPP}")
e(f"v_mov_b32 v10, v{G+10}")
e(f"v_mov_b32 v{G+10}, v{G+12}")
e(f"v_mov_b32 v{G+11}, v{G+13}")
valu = [[f"v_max_f32_dpp v14, v14, v14 quad_perm:[2,3,0,1] {DPP}"],
        [f"v_max_f32_dpp v14, v14, v14 row_half_mirror {DPP}", "v_sub_f32 v10, v10, v14", "v_exp_f32 v10, v10"],
        [f"v_mul_f32 v14, v10, v{G+6}"],
        [f"v_add_f32_dpp v14, v14, v14 quad_perm:[1,0,3,2] {DPP}"],
        [f"v_add_f32_dpp v14, v14, v14 quad_perm:[2,3,0,1] {DPP}"],
        [f"v_add_f32_dpp v14, v14, v14 row_half_mirror {DPP}", "v_rcp_f32 v14, v14"],
        ["v_mul_f32 v10, v10, v14", "v_mov_b32 v14, v10"],
        ["v_mov_b32_dpp v14, v10 row_ror:12 row_mask:0x2 bank_mask:0xf",
         "v_mov_b32_dpp v14, v10 row_ror:8 row_mask:0x4 bank_mask:0xf",
         "v_mov_b32_dpp v14, v10 row_ror:4 row_mask:0x8 bank_mask:0xf"]]
k = 0
for t in range(2):
    for j in range(4):
        r = BF + (j*2+t)*4
        src = "0" if t == 0 else f"v[{ACC+4*j}:{ACC+4*j+3}]"
        e(f"v_mfma_f32_16x16x32_bf16 v[{ACC+4*j}:{ACC+4*j+3}], v[{G+8*t}:{G+8*t+3}], v[{r}:{r+3}], {src}")
        if k not in (0, 2, 6): nop(1)
        for x in valu[k]: e(x)
        k += 1
nop(2)
for r in range(4):
    for j in range(4): e(f"v_fmac_f32_dpp v{TB+j}, v14, v{ACC+4*j+r} row_newbcast:{r} {DPP}")
e("s_cmp_eq_u32 s50, 3")
e(f"v_permlane16_swap_b32 v{TB}, v{TB+1}")
e(f"v_permlane16_swap_b32 v{TB+2}, v{TB+3}")
e(f"v_add_f32 v32, v{TB}, v{TB+1}")
e(f"v_add_f32 v33, v{TB+2}, v{TB+3}")
e(f"ds_write_b64 v12, v[32:33] offset:{L_Z}")
e("s_mov_b64 exec, 1")
e(f"ds_add_u32 v5, v42 offset:{L_ZC}")
e("s_cbranch_scc1 L_end")
e("s_mov_b64 exec, s[94:95]")
lab("L_zre")
e(f"ds_read_b32 v43, v5 offset:{L_ZC}")
e("ds_read2st64_b32 v[24:25], v113 offset0:0 offset1:2")
e("ds_read2st64_b32 v[26:27], v113 offset0:4 offset1:6")
e("s_waitcnt lgkmcnt(0)")
e("v_cmp_gt_u32 vcc, 4, v43")
e("s_cbranch_vccnz L_zre")
e("v_add_f32 v24, v24, v25")
e("v_add_f32 v26, v26, v27")
e("v_add_f32 v24, v24, v26")
e("v_cndmask_b32 v24, v115, v24, s[90:91]")
e("v_cvt_f64_f32 v[26:27], v24")
e("buffer_atomic_add_f64 v[26:27], v13, s[36:39], s56 offen sc0")
e("v_cvt_f64_f32 v[28:29], v24")
e("s_mov_b32 s46, 0x402e0000", "high word of 15.0: the 16th arrival owns the segment")
e("s_waitcnt vmcnt(0)")
e("v_mov_b32_dpp v30, v27 row_newbcast:7 row_mask:0xf bank_mask:0x3")
e("v_mov_b32_dpp v30, v27 row_newbcast:15 row_mask:0xf bank_mask:0xc")
e("v_add_f64 v[26:27], v[26:27], v[28:29]")
e("v_cmp_eq_u32 vcc, s46, v30")
e("v_cvt_f32_f64 v26, v[26:27]")
e("s_and_b64 exec, vcc, s[90:91]")
e("s_cbranch_execz L_end")
e("v_cvt_pk_bf16_f32 v26, v26, v26")
e("buffer_store_short v26, v117, s[40:43], s89 offen")
e(f"s_cmp_lg_u32 s56, {FBASE + 2048}")
e("s_cbranch_scc1 L_end")
e("s_and_b64 exec, exec, 1")
e("s_cbranch_execz L_end")
e("buffer_store_dword v34, v5, s[36:39], 0 offen", "new epoch (every workgroup has read the old one by now)")
lab("L_end")
e("s_endpgm")

pos_k = next(i for i, l in enumerate(L) if l.startswith("    ; ---- K waves"))
body = L[:KEND] + EARLY + L[KEND:]
if int(opts.get('early_first', 1)):
    pro = L[:pos_k]
    pro[-1] = "    s_cbranch_scc0 L_K"
    body = pro + EARLY[1:] + ["L_K:"] + L[pos_k:]

ref = open('parallel_sum__sliding_block_cached__dense_activation_mish__decode.s.ref').read().split('\n')
hdr = [l for l in ref if l.startswith(';') and '@launch' not in l]
print("\n".join(hdr))
print(f"; @launch grid=(256,1,1) block=(1024,1,1) lds={LDS_BYTES}")
print("""; One launch, one 16-wave workgroup per CU, workgroup w = (kvh = w & 7, b = w >> 6, key split s = (w >> 3) & 7).
; Hand-offs between workgroups are 16-byte granules {data, data, aux, tag} in d_ws, tagged per launch.""")
print(f""".amdgcn_target "amdgcn-amd-amdhsa--gfx950"
.text
.globl {NAME}
.p2align 12
.p2align 8
.type {NAME},@function
{NAME}:""")
print("\n".join(body))
print(f""".section .rodata,"a"
.p2align 6
.amdhsa_kernel {NAME}
  .amdhsa_next_free_vgpr 128
  .amdhsa_next_free_sgpr 100
  .amdhsa_accum_offset 128
  .amdhsa_group_segment_fixed_size 0
  .amdhsa_kernarg_size 96
  .amdhsa_user_sgpr_count 2
  .amdhsa_user_sgpr_kernarg_segment_ptr 1
  .amdhsa_system_sgpr_workgroup_id_x 1
.end_amdhsa_kernel""")
```

```python
import sys, math, struct
NAME = "parallel_sum__sliding_block_cached__dense_activation_mish__decode_kernel"
opts = dict(a.split('=') for a in sys.argv[1:] if '=' in a)
STAMPS = int(opts.get('stamps', 0))
ROT = int(opts.get('rot', 2))
PPOL = opts.get('ppol', 'nt').replace('_', ' ')
WPOL = opts.get('wpol', '').replace('_', ' ')
KVPOL = opts.get('kvpol', 'nt').replace('_', ' ')
SPIN = int(opts.get('spin', 40000))
NCAP = int(opts.get('ncap', 6))
WPRE = int(opts.get('wpre', 0))
WPOS = int(opts.get('wpos', 10))
DUAL = int(opts.get('dual', 1))
PREW = int(opts.get('prew', 1))
SO = int(opts.get('so', 0))
UNTH = int(opts.get('unth', 1))
TLBW = int(opts.get('tlbw', 1))
ALIGN = int(opts.get('align', 12))
PADTO = int(opts.get('padto', 0))
REPORT = int(opts.get('report', 0))
PADWG = int(opts.get('padwg', -1))
REP = opts.get('rep', '')
def rpoint(name):
    if REP == name:
        e("s_memrealtime s[66:67]"); e("s_waitcnt lgkmcnt(0)")
def rexit(role):
    if REP.startswith(role + "_"):
        e("s_sub_u32 s68, s66, s64"); e("s_mul_i32 s68, s68, 10"); e("s_add_u32 s68, s68, 2000")
        lab("L_rx")
        e("s_memrealtime s[66:67]"); e("s_waitcnt lgkmcnt(0)")
        e("s_sub_u32 s69, s66, s64"); e("s_cmp_lt_u32 s69, s68"); e("s_cbranch_scc1 L_rx")
def fhex(x): return "%#x" % struct.unpack('<I', struct.pack('<f', x))[0]
L = []
def e(s): L.append("    " + s)
def lab(s): L.append(s + ":")
def nop(n):
    if n > 0: e(f"s_nop {n-1}")
DPP = "row_mask:0xf bank_mask:0xf"
QBASE, HBASE, FBASE, OBASE, ALT, WSN = 0x1000, 0x21000, 0x40000, 0x180000, 0, 0x200000
VSIG = int(opts.get('vsig', 15))
L_T, L_QF, L_EF, L_XF, L_KF, L_VI, L_KCR, L_PL, L_ST, L_XS, L_MB = 0, 4, 8, 12, 16, 32, 48, 64, 80, 128, 192
L_OC, L_VP, L_ZC = 112, 116, 124
L_Z = 0x1400
LATEB = int(opts.get('lateb', 1))
FDEP = int(opts.get('fdep', 0))
L_VD = 120
XBASE = 0x30000
BTO = int(opts.get('bto', 48))
QDEP = int(opts.get('qdep', 1))
CBX = int(opts.get('cbx', 0))
KPRE2 = int(opts.get('kpre2', 0))
DRY = int(opts.get('dry', 0))
MERGE = int(opts.get('merge', 1))
CUT = int(opts.get('cut', 0))
CPF = int(opts.get('cpf', 1))
NOX = int(opts.get('nox', 0))
REMAP = int(opts.get('remap', 1))
ATOM = int(opts.get('atom', 1))
VTP = int(opts.get('vtp', 99))
VTC = int(opts.get('vtc', 5))
WCAP = int(opts.get('wcap', 0))
KUN = int(opts.get('kun', 0))
LAT = int(opts.get('lat', 1))
C3 = int(opts.get('c3', 0))
LROT = opts.get('lrot', 'o8')
PPF = int(opts.get('ppf', 6))
PFPOL = opts.get('pfpol', '').replace('_', ' ')
NOUSIG = int(opts.get('nousig', 6))
OEARLY = int(opts.get('oearly', 9))
FSLEEP = int(opts.get('fsleep', 1))
OMASK = int(opts.get('omask', 1))
NOP_ = int(opts.get('nop', 0))
NOW_ = int(opts.get('now', 0))
KPRE = int(opts.get('kpre', 3))
OUTW = int(opts.get('outw', 1))
OUTPOL = opts.get('outpol', '').replace('_', ' ')
PCONT = int(opts.get('pcont', 0))
WCONT = int(opts.get('wcont', 0))
OSLEEP = int(opts.get('osleep', 0))
NOTAB = int(opts.get('notab', 0))
CRED = int(opts.get('cred', 0))
CAPL = int(opts.get('capl', 0))
L_SC, L_ONES, L_QS, L_X, L_PW, L_WW, L_OG = 0x100, 0x500, 0x900, 0x1400, 0x2400, 0x9400, 0x15400
LDS_BYTES = 0x19400
def stamp(slot, lvl=1):
    if STAMPS == 1 or (STAMPS == 2 and lvl == 2):
        e(f"s_memrealtime s[{64+2*slot}:{65+2*slot}]")
        e("s_waitcnt lgkmcnt(0)")
def stamp_flush(base, n, cond_wave, sfx=""):
    if STAMPS != 1: return
    lbl = f"L_sf{base}{sfx}"
    e(f"s_cmp_lg_u32 s3, {cond_wave}")
    e(f"s_cbranch_scc1 {lbl}")
    e("s_lshl_b32 s60, s2, 8")
    e(f"s_add_u32 s60, s60, {0x8000000 + base*8}")
    e("s_add_u32 s62, s26, s60")
    e("s_addc_u32 s63, s27, 0")
    e("s_mov_b64 exec, 1")
    e("v_mov_b32 v2, 0")
    for i in range(n):
        e(f"v_mov_b32 v4, s{64+2*i}")
        e(f"v_mov_b32 v5, s{65+2*i}")
        e(f"global_store_dwordx2 v2, v[4:5], s[62:63] offset:{8*i}")
        nop(1)
    lab(lbl)
def wstamp_flush(pairs, sfx):
    e("s_lshl_b32 s60, s2, 8")
    e("s_and_b32 s61, s3, 3"); e("s_lshl_b32 s61, s61, 3"); e("s_add_u32 s60, s60, s61")
    e(f"s_add_u32 s60, s60, {0x8000000}")
    e("s_add_u32 s62, s26, s60")
    e("s_addc_u32 s63, s27, 0")
    e("s_mov_b64 exec, 1")
    e("v_mov_b32 v2, 0")
    for base, i in pairs:
        e(f"v_mov_b32 v4, s{64+2*i}")
        e(f"v_mov_b32 v5, s{65+2*i}")
        e(f"global_store_dwordx2 v2, v[4:5], s[62:63] offset:{8*base}")
        nop(1)
def ws_srd():
    e("s_mov_b64 s[36:37], s[26:27]"); e(f"s_mov_b32 s38, {WSN}"); e("s_mov_b32 s39, 0x20000")
def lds_wait(tag, vt, vz, off, sdst, need=1, sleep=0, bound=None):
    e(f"s_mov_b32 s45, {bound if bound else SPIN*8}")
    lab(f"L_lw{tag}")
    if sleep: e(f"s_sleep {sleep}")
    e(f"ds_read_b32 v{vt}, v{vz} offset:{off}")
    e("s_sub_u32 s45, s45, 1")
    e("s_cbranch_scc1 L_lwd" + tag)
    e("s_waitcnt lgkmcnt(0)")
    e(f"v_readfirstlane_b32 s{sdst}, v{vt}")
    e(f"s_cmp_lt_u32 s{sdst}, {need}")
    e(f"s_cbranch_scc1 L_lw{tag}")
    lab(f"L_lwd{tag}")
cw_n = [0]
def credit_wait(need, vaddr, vt, sc):
    cw_n[0] += 1; n = cw_n[0]
    lab(f"L_cw{n}")
    e(f"s_cmp_ge_u32 s{sc}, {need}")
    e(f"s_cbranch_scc1 L_cwd{n}")
    if need == 1: e("s_sleep 1")
    e(f"ds_read_b32 v{vt}, v{vaddr}")
    e("s_waitcnt lgkmcnt(0)")
    e(f"v_readfirstlane_b32 s{sc}, v{vt}")
    e(f"s_branch L_cw{n}")
    lab(f"L_cwd{n}")
lc_n = [0]
def light_flag():
    if not CAPL: return
    e("s_sub_u32 s87, s29, 25")
    e("s_cmp_lt_u32 s87, 3")
    e("s_cselect_b64 vcc, -1, 0")
    e("s_cmp_lt_u32 s29, 16")
    e("s_cselect_b64 vcc, -1, vcc")
def light_wait():
    if not CAPL: return
    lc_n[0] += 1
    e(f"s_cbranch_vccnz L_lc{lc_n[0]}")
    e(f"s_waitcnt vmcnt({CAPL-1})")
    lab(f"L_lc{lc_n[0]}")
def kv_base():
    if LAT:
        e("s_lshl_b32 s46, s30, 3")
        e("s_add_u32 s46, s46, s28")
        e("s_lshl_b32 s47, s46, 21")
        e("s_add_u32 s47, s47, 0x180000")
        if LROT == 'b4': e("s_lshl_b32 s49, s30, 2")
        elif LROT == '0': e("s_mov_b32 s49, 0")
        elif LROT == 'bk': e("s_lshl_b32 s49, s30, 2"); e("s_add_u32 s49, s49, s28")
        elif LROT == 'k2': e("s_lshl_b32 s49, s28, 1")
        elif LROT == 'o2': e("s_and_b32 s49, s28, 1"); e("s_lshl_b32 s49, s49, 1")
        elif LROT == 'o8': e("s_and_b32 s49, s28, 1"); e("s_lshl_b32 s49, s49, 3")
        elif LROT == 'b1': e("s_mov_b32 s49, s30")
        elif LROT == 'k1': e("s_mov_b32 s49, s28")
        return
    e("s_lshl_b32 s46, s30, 3")
    e("s_add_u32 s46, s46, s28")
    e("s_lshl_b32 s47, s46, 21")
    e("s_lshl_b32 s48, s31, 16")
    e("s_add_u32 s47, s47, s48")
    e("s_add_u32 s47, s47, 0x180000")
    if ROT == 0: e("s_mov_b32 s49, 0")
    elif ROT == 1: e("s_mul_i32 s49, s2, 37")
    elif ROT == 2: e("s_mov_b32 s49, s29")
    elif ROT == 3: e("s_mul_i32 s49, s2, 5"); e("s_add_u32 s49, s49, s29")
    elif ROT == 4: e("s_mov_b32 s49, s31")
    elif ROT == 5: e("s_mul_i32 s49, s30, 3"); e("s_add_u32 s49, s49, s31"); e("s_add_u32 s49, s49, s28")
    e("s_lshl_b32 s49, s49, 12")
def unit_params():
    if REMAP:
        e("s_lshr_b32 s51, 0x300000c0, s29")
        e("s_and_b32 s51, s51, 1")
        e("s_mul_i32 s51, s51, 26")
        e("s_xor_b32 s59, s29, s51")
        e("s_mul_i32 s52, s28, 5")
        e("s_add_u32 s52, s52, s59")
        e("s_sub_u32 s52, s52, 25")
        e("s_mul_i32 s53, s52, 43")
        e("s_lshr_b32 s53, s53, 8")
        e("s_lshl_b32 s53, s53, 1")
        e("s_add_u32 s52, s52, s53")
        e("s_lshl_b32 s53, s28, 3")
        e("s_add_u32 s53, s53, s59")
        e("s_sub_u32 s53, s53, 24")
        e("s_cmp_lt_u32 s53, 56")
        e("s_cselect_b32 s53, s53, s52")
        e("s_cmp_ge_u32 s59, 30")
        e("s_cselect_b32 s52, s53, s52")
        e("s_lshl_b32 s53, s28, 4")
        e("s_add_u32 s53, s53, s59")
        e("s_cmp_ge_u32 s59, 25")
        e("s_cselect_b32 s51, 2, 0")
        e("s_cmp_lt_u32 s59, 16")
        e("s_cselect_b32 s51, 1, s51")
        e("s_cselect_b32 s52, s53, s52")
        e("s_and_b32 s53, s52, 1")
        e("s_lshr_b32 s52, s52, 1")
        return
    e("s_mul_i32 s52, s28, 7")
    e("s_add_u32 s52, s52, s29")
    e("s_sub_u32 s52, s52, 25")
    e("s_lshl_b32 s53, s28, 4")
    e("s_add_u32 s53, s53, s29")
    if CBX: e(f"s_xor_b32 s53, s53, {CBX*2}")
    e("s_cmp_ge_u32 s29, 25")
    e("s_cselect_b32 s51, 2, 0")
    e("s_cmp_lt_u32 s29, 16")
    e("s_cselect_b32 s51, 1, s51")
    e("s_cselect_b32 s52, s53, s52")
    e("s_and_b32 s53, s52, 1")
    e("s_lshr_b32 s52, s52, 1")

if STAMPS or PADTO or PADWG >= 0 or REP: e("s_memrealtime s[64:65]")
e("s_cmp_ge_u32 s2, 256")
e("s_cbranch_scc1 L_end")
e("s_load_dwordx16 s[4:19], s[0:1], 0")
e("s_load_dwordx8 s[20:27], s[0:1], 64")
e("v_lshrrev_b32 v1, 6, v0")
e("v_and_b32 v0, 63, v0")
e("s_and_b32 s28, s2, 7")
e("v_readfirstlane_b32 s3, v1")
e("s_lshr_b32 s29, s2, 3")
e("s_lshr_b32 s30, s29, 3")
e("s_and_b32 s31, s29, 7")
e("v_lshrrev_b32 v1, 4, v0")
e("v_and_b32 v2, 15, v0")
e("s_and_b32 s50, s3, 3")
e("v_mov_b32 v5, 0")
e("s_cmp_lt_u32 s3, 8")
e("s_cbranch_scc1 L_lt8")
e("s_getpc_b64 s[40:41]")
lab("L_pc")
e("v_lshlrev_b32 v3, 2, v0")
e("ds_write_b32 v3, v5")
e("s_mul_i32 s46, s3, 1280")
e(f"s_sub_u32 s46, s46, {8*1280-1024}")
e("v_lshl_add_u32 v3, v0, 7, s46")
e("v_min_u32 v3, L_end-L_pc, v3")
if CPF == 2:
    e("s_cmp_lt_u32 s29, 28")
    e("s_cbranch_scc1 L_nocpf")
if CPF:
    e("s_mov_b64 exec, 0x3ff")
    e("global_load_dword v120, v3, s[40:41]")
    e("s_mov_b64 exec, -1")
lab("L_nocpf")
e("s_waitcnt lgkmcnt(0)")
e("s_barrier")
e("s_branch L_VW")
lab("L_lt8")
e("s_cmp_ge_u32 s3, 4")
e("s_cbranch_scc1 L_K")
e("v_lshlrev_b32 v13, 4, v0")
e("s_mov_b32 s42, 3584"); e("s_mov_b32 s43, 0x20000")
e(f"s_mov_b32 m0, {L_X}")
e("s_waitcnt lgkmcnt(0)")
e("s_mov_b64 s[40:41], s[4:5]")
e("s_cmp_eq_u32 s3, 3")
e("s_cbranch_scc0 L_Pn3")
for i in range(4):
    if not NOX: e(f"buffer_load_dwordx4 v13, s[40:43], 0 offen offset:{i*1024} lds")
lab("L_Pn3")
e("s_load_dword s44, s[26:27], 0")
e("s_barrier")
e("s_branch L_P")
lab("L_K")
unit_params()
e("s_cmp_lg_u32 s51, 2")
e("s_cselect_b32 s54, 16, 7")
e("s_lshl_b32 s54, s54, 9")
e("v_lshrrev_b32 v3, 3, v0")
e("v_mul_u32_u24 v3, s54, v3")
e("v_and_b32 v4, 7, v0")
e("v_bfe_u32 v6, v0, 4, 1")
e("v_lshlrev_b32 v6, 1, v6")
e("v_xor_b32 v4, v4, v6")
e("s_and_b32 s55, s50, 1")
e("s_lshl_b32 s55, s55, 2")
e("v_xor_b32 v4, s55, v4")
e("v_lshl_add_u32 v4, v4, 4, v3")
e("s_mul_i32 s55, s53, 224")
e("s_lshl_b32 s56, s50, 3")
e("s_add_u32 s55, s55, s56")
e("s_mul_i32 s55, s55, s54")
e("s_lshl_b32 s56, s52, 7")
e("s_add_u32 s55, s55, s56")
e("s_lshl_b32 s56, s54, 5")
if PCONT:
    e("v_lshlrev_b32 v4, 4, v0")
    e("s_lshl_b32 s55, s52, 1"); e("s_add_u32 s55, s55, s53"); e("s_mul_i32 s55, s55, 28672")
    e("s_lshl_b32 s56, s50, 10"); e("s_add_u32 s55, s55, s56"); e("s_mov_b32 s56, 4096")
e("s_mul_i32 s42, s54, 448")
e("s_mov_b32 s43, 0x20000")
e("s_lshl_b32 s57, s50, 10")
e(f"s_add_u32 m0, s57, {L_PW}")
kv_base()
if LAT:
    e("s_lshr_b32 s57, s50, 1")
    e("s_add_u32 s49, s49, s57")
    e("s_add_u32 s48, s49, s31")
    e("s_lshl_b32 s48, s48, 12")
    e("s_lshl_b32 s49, s49, 15")
    e("s_and_b32 s57, s50, 1")
    e("s_lshl_b32 s57, s57, 11")
    e("s_add_u32 s47, s47, s57")
else:
    e("s_lshl_b32 s57, s50, 11")
    e("s_add_u32 s49, s49, s57")
e("v_lshrrev_b32 v3, 2, v2")
e("v_lshlrev_b32 v3, 9, v3")
e("v_lshl_add_u32 v3, v1, 6, v3")
e("v_and_b32 v6, 3, v0")
e("v_lshl_add_u32 v3, v6, 4, v3")
e(f"s_mov_b32 s34, {0x80000 if LAT else 0x10000}")
e("s_mov_b32 s35, 0x20000")
e("s_lshl_b32 s58, s50, 2")
e("v_mov_b32 v9, s58")
e("v_mov_b32 v8, 1")
if STAMPS == 3: e("s_memrealtime s[66:67]")
e("s_cmp_lg_u32 s51, 2")
e("s_waitcnt lgkmcnt(0)")
if STAMPS == 3: e("s_memrealtime s[68:69]")
if REP == "k_arg": e("s_memrealtime s[66:67]")
if REP == "k_zero": e("s_mov_b64 s[66:67], s[64:65]")
e("s_cselect_b64 s[40:41], s[10:11], s[16:17]")
e("s_add_u32 s32, s6, s47")
e("s_addc_u32 s33, s7, 0")
DV = 64
def kload(i):
    j, lo = i >> 1, i & 1
    if lo == 0 and LAT:
        if j: e("s_add_u32 s49, s49, 65536"); e("s_add_u32 s48, s48, 8192")
        e("s_and_b32 s54, s49, 0x7ffff")
        e("s_and_b32 s46, s48, 0x7fff")
        e("s_or_b32 s54, s54, s46")
    elif lo == 0:
        if j: e(f"s_add_u32 s49, s49, 8192")
        e("s_and_b32 s54, s49, 0xffff")
    return f"buffer_load_dwordx4 v[{DV+4*i}:{DV+4*i+3}], v3, s[32:35], s54 offen offset:{lo*256} {KVPOL}"
light_flag()
if NOP_: e("s_mov_b32 s51, 0")
e("s_cmp_eq_u32 s51, 0")
e("s_cbranch_scc1 L_Knou")
if C3:
    e("s_sub_u32 s58, s29, 8")
    e("s_cmp_lt_u32 s58, 8")
    e("s_cbranch_scc0 L_noc3")
    e("s_lshl_b32 s58, s58, 2")
    e("s_add_u32 s58, s58, s50")
    e("s_and_b32 s59, s58, 15")
    e("s_lshl_b32 s59, s59, 3")
    e("s_lshr_b32 s58, s58, 4")
    e("s_mul_i32 s58, s58, 224")
    e("s_add_u32 s58, s58, s59")
    e("s_lshl_b32 s58, s58, 13")
    e("s_lshl_b32 s59, s28, 10")
    e("s_add_u32 s58, s58, s59")
    e(f"buffer_load_dwordx4 v[{DV}:{DV+3}], v4, s[40:43], s58 offen offset:384")
    lab("L_noc3")
for t in range(7):
    if t:
        e("s_add_u32 m0, m0, 4096")
        e("s_add_u32 s55, s55, s56")
    e(f"buffer_load_dwordx4 v4, s[40:43], s55 offen {PPOL} lds")
    if t == 6 and not KPRE: e("s_barrier")
for i in range(NCAP):
    ld = kload(i)
    if KPRE and i == KPRE:
        if STAMPS == 3: e("s_memrealtime s[70:71]")
        e("s_barrier")
        if STAMPS == 3: e("s_memrealtime s[72:73]"); e("s_waitcnt vmcnt(9)"); e("s_memrealtime s[74:75]")
    if 7 + i >= NCAP and i >= KPRE: e(f"s_waitcnt vmcnt({NCAP-1})")
    if i == NCAP - 1: e(f"ds_write_b32 v9, v8 offset:{L_PL}")
    e(ld)
e("s_branch L_Kc")
lab("L_Knou")
if PPF:
    e("s_sub_u32 s55, s29, 16")
    e("s_lshl_b32 s55, s55, 2")
    e("s_add_u32 s55, s55, s50")
    e(f"s_mul_i32 s56, s55, {PPF}")
    e("s_cmp_ge_u32 s55, 18")
    e(f"s_cselect_b32 s57, {224 - 18*PPF}, 0")
    e("s_add_u32 s56, s56, s57")
    e(f"s_add_u32 s56, s56, {224 - 18*PPF}")
    e("s_lshl_b32 s56, s56, 13")
    e("s_lshl_b32 s57, s28, 10")
    e("s_add_u32 s56, s56, s57")
    e("v_lshlrev_b32 v4, 4, v0")
    for j in range(PPF):
        if j: e("s_add_u32 s56, s56, 8192")
        e(f"buffer_load_dwordx4 v[{DV+4*j}:{DV+4*j+3}], v4, s[40:43], s56 offen {PFPOL}")
    for i in range(NCAP):
        ld = kload(i)
        if i == KPRE2: e("s_barrier")
        if PPF + i >= NCAP and i >= KPRE2: e(f"s_waitcnt vmcnt({NCAP-1})")
        e(ld)
else:
    for i in range(NCAP): e(kload(i))
    e("s_barrier")
lab("L_Kc")
rpoint("k_6")
stamp(1)
for i in range(NCAP, 16):
    ld = kload(i)
    e(f"s_waitcnt vmcnt({NCAP-1})")
    light_wait()
    if i == NOUSIG: e(f"ds_write_b32 v9, v8 offset:{L_PL}")
    e(ld)
stamp(2)
for k in range(NCAP):
    e(f"v_mov_b32 v8, {k+1}")
    e(f"s_waitcnt vmcnt({NCAP-1-k})")
    e(f"ds_write_b32 v9, v8 offset:{L_KCR}")
rpoint("k_land")
if SO:
    stamp(3); stamp(4); stamp_flush(8, 5, 4, "so"); e("s_endpgm")
e("v_bfe_u32 v18, v0, 2, 1")
e("v_lshlrev_b32 v7, 9, v18")
e("v_lshl_add_u32 v7, v1, 6, v7")
e("s_lshr_b32 s56, s50, 1")
e("s_lshl_b32 s58, s56, 5")
e("s_and_b32 s57, s50, 1")
e("s_lshl_b32 s57, s57, 8")
e("s_add_u32 s57, s58, s57")
e("v_add_u32 v7, s57, v7")
e("v_mov_b32 v16, v9")
e("v_mov_b32 v17, 1")
e("v_lshlrev_b32 v18, 5, v18")
e("s_lshl_b32 s57, s50, 3")
e("v_add_u32 v19, s57, v18")
e("v_add_u32 v6, v9, v18")
e(f"s_mov_b32 s59, {fhex(math.log2(math.e)/16)}")
lds_wait("k", 8, 5, L_QF, 44, sleep=1)
e(f"ds_read_b128 v[8:11], v3 offset:{L_QS}")
e(f"ds_read_b128 v[12:15], v3 offset:{L_QS+256}")
e("s_waitcnt lgkmcnt(0)")
rpoint("k_q")
stamp(3)
AC = 24
def extr(j):
    return [f"v_mov_b32_dpp v{56+j}, v{AC+4*j} quad_perm:[0,0,0,0] {DPP}"] + \
           [f"v_add_f32_dpp v{56+j}, v{AC+4*j+r}, v{56+j} quad_perm:[{r},{r},{r},{r}] {DPP}" for r in (1, 2, 3)]
chains = {j: extr(j) + [f"v_add_f32_dpp v{56+j}, v{56+j}, v{56+j} row_ror:8 {DPP}"] for j in range(8)}
ready = {j: 10**9 for j in range(8)}
pos = [0]
def em(x): e(x); pos[0] += 1
def fill(n, force=False):
    for _ in range(n):
        cand = [j for j in range(8) if chains[j] and ready[j] <= pos[0]]
        if not cand:
            if force: em("s_nop 0")
            continue
        j = cand[0]; em(chains[j].pop(0)); ready[j] = pos[0] + 2
for j in range(8):
    em(f"v_mfma_f32_16x16x32_bf16 v[{AC+4*j}:{AC+4*j+3}], v[{DV+8*j}:{DV+8*j+3}], v[8:11], 0")
    fill(2, True)
    em(f"v_mfma_f32_16x16x32_bf16 v[{AC+4*j}:{AC+4*j+3}], v[{DV+8*j+4}:{DV+8*j+7}], v[12:15], v[{AC+4*j}:{AC+4*j+3}]")
    ready[j] = pos[0] + 8
    fill(2, True)
while any(chains.values()): fill(1, True)
e("v_max3_f32 v12, v56, v57, v58")
e("v_max3_f32 v12, v12, v59, v60")
e("v_max3_f32 v12, v12, v61, v62")
e("v_max_f32 v12, v12, v63")
e("v_mov_b32 v14, v12"); nop(2)
e("v_permlane32_swap_b32 v12, v14")
e("v_max_f32 v12, v12, v14")
e("v_mov_b32 v14, v12"); nop(2)
e("v_permlane16_swap_b32 v12, v14")
e("v_max_f32 v12, v12, v14")
e("v_mov_b32 v13, 1")
e(f"ds_write_b64 v19, v[12:13] offset:{L_MB}")
e(f"s_mov_b32 s45, {SPIN*8}")
lab("L_kx")
e(f"ds_read_b128 v[20:23], v18 offset:{L_MB}")
e(f"ds_read_b128 v[24:27], v18 offset:{L_MB+16}")
e("s_sub_u32 s45, s45, 1")
e("s_cbranch_scc1 L_kxd")
e("s_waitcnt lgkmcnt(0)")
e("v_and_b32 v14, v21, v23")
e("v_and_b32 v15, v25, v27")
e("v_and_b32 v14, v14, v15")
e("v_cmp_eq_u32 vcc, 0, v14")
e("s_cbranch_vccnz L_kx")
lab("L_kxd")
e("v_max3_f32 v12, v20, v22, v24")
e("v_max_f32 v12, v12, v26")
e("v_mul_f32 v12, s59, v12")
for i in range(8): e(f"v_fma_f32 v{56+i}, v{56+i}, s59, -v12")
for i in range(8): e(f"v_exp_f32 v{56+i}, v{56+i}")
nop(1)
e("v_add_f32 v13, v56, v57")
for i in range(2, 8): e(f"v_add_f32 v13, v13, v{56+i}")
for i in range(8): e(f"v_cvt_pk_bf16_f32 v{56+i}, v{56+i}, v{56+i}")
e("v_mov_b32 v15, v13"); nop(2)
e("v_permlane32_swap_b32 v13, v15")
e("v_add_f32 v13, v13, v15")
e("v_mov_b32 v15, v13"); nop(2)
e("v_permlane16_swap_b32 v13, v15")
e("v_add_f32 v13, v13, v15")
e("s_mov_b32 exec_lo, 0x00110011")
e("s_mov_b32 exec_hi, 0x00110011")
e(f"ds_write_b128 v7, v[56:59] offset:{L_SC}")
e(f"ds_write_b128 v7, v[60:63] offset:{L_SC+16}")
e(f"ds_write_b32 v6, v12 offset:{L_XS}")
e(f"ds_write_b32 v6, v13 offset:{L_XS+16}")
e("s_mov_b64 exec, 1")
e("s_waitcnt lgkmcnt(0)")
e(f"ds_write_b32 v16, v17 offset:{L_KF}")
if STAMPS == 3:
    STAMPS = 1; stamp_flush(0, 6, 4, "k3"); STAMPS = 3
rpoint("k_done")
rexit("k")
stamp(4)
stamp_flush(8, 5, 4)
e("s_endpgm")

lab("L_P")
if SO:
    if SO == 2:
        e("v_mov_b32 v24, 1"); e(f"ds_write_b32 v5, v24 offset:{L_QF}")
    stamp_flush(0, 1, 0, "so"); e("s_endpgm")
unit_params()
ws_srd()
e("s_waitcnt lgkmcnt(0)")
e("s_cmp_eq_u32 s3, 1")
e("s_cbranch_scc0 L_Pm1")
e("s_mul_i32 s44, s44, 0x9E3779B5")
e("s_add_u32 s44, s44, 0x7F4A7C15")
e("s_cmp_eq_u32 s44, 0")
e("s_cselect_b32 s44, 0x7F4A7C15, s44")
e("v_mov_b32 v24, s44")
e(f"ds_write_b32 v5, v24 offset:{L_T}")
e("s_getreg_b32 s46, hwreg(HW_REG_XCC_ID)")
e("s_and_b32 s46, s46, 15")
e("s_lshl_b32 s47, s28, 12")
e("s_lshl_b32 s48, s29, 7")
e("s_add_u32 s48, s48, s47")
e(f"s_add_u32 s48, s48, {XBASE}")
e("v_mov_b32 v8, s46"); e("v_mov_b32 v9, s44"); e("v_mov_b32 v10, s46"); e("v_mov_b32 v11, s44")
e("s_mov_b64 exec, 0xff")
if not NOTAB: e("buffer_store_dwordx4 v[8:11], v13, s[36:39], s48 offen sc1")
e("s_mov_b64 exec, -1")
lab("L_Pm1")
e("s_cmp_eq_u32 s51, 0")
e("s_cbranch_scc1 L_Pdone")
e("s_cmp_eq_u32 s3, 3")
e("s_cbranch_scc0 L_Pm3")
e("v_mov_b32 v16, 0x3f803f80"); e("v_mov_b32 v17, v16"); e("v_mov_b32 v18, v16"); e("v_mov_b32 v19, v16")
e(f"ds_write_b128 v13, v[16:19] offset:{L_ONES}")
e("v_and_b32 v15, 3, v0")
e("v_mul_u32_u24 v12, 896, v15")
e("v_lshrrev_b32 v14, 2, v0")
e("v_lshl_add_u32 v12, v14, 6, v12")
e("v_cmp_gt_u32 vcc, 14, v14")
e("v_mov_b32 v14, 3584")
e("v_lshlrev_b32 v15, 3, v15")
e("v_cndmask_b32 v12, v14, v12, vcc")
e("v_mov_b32 v36, 0"); e("v_mov_b32 v37, 0")
e("s_waitcnt vmcnt(0)")
for i in range(4): e(f"ds_read_b128 v[{20+4*i}:{23+4*i}], v12 offset:{L_X+16*i}")
e("s_waitcnt lgkmcnt(0)")
for i in range(16):
    e(f"v_dot2c_f32_bf16 v36, v{20+i}, v16")
    e(f"v_dot2c_f32_bf16 v37, v{20+i}, v{20+i}")
nop(4)
for sh in (4, 8):
    e(f"v_add_f32_dpp v36, v36, v36 row_ror:{sh} {DPP}")
    e(f"v_add_f32_dpp v37, v37, v37 row_ror:{sh} {DPP}")
    nop(2)
for sw in ("16", "32"):
    e("v_mov_b32 v38, v36"); e("v_mov_b32 v39, v37"); nop(2)
    e(f"v_permlane{sw}_swap_b32 v36, v38")
    e(f"v_permlane{sw}_swap_b32 v37, v39")
    e("v_add_f32 v36, v36, v38"); e("v_add_f32 v37, v37, v39")
e(f"v_mul_f32 v36, {fhex(1.0/448)}, v36")
e(f"v_mul_f32 v37, {fhex(1.0/448)}, v37")
e("v_fma_f32 v37, -v36, v36, v37")
e("v_max_f32 v37, 0, v37")
e(f"v_add_f32 v37, {fhex(1e-5)}, v37")
e("v_rsq_f32 v37, v37")
e("v_sub_f32 v36, 0, v36")
e("v_mov_b32 v40, 1")
e(f"ds_write_b64 v15, v[36:37] offset:{L_ST}")
e("s_waitcnt lgkmcnt(0)")
e(f"ds_write_b32 v5, v40 offset:{L_XF}")
lab("L_Pm3")
stamp(1)
e("v_lshlrev_b32 v10, 10, v1")
e("v_lshrrev_b32 v11, 2, v2")
e("v_lshl_add_u32 v10, v11, 7, v10")
e("v_and_b32 v11, 3, v0")
e("v_lshl_add_u32 v10, v11, 3, v10")
e("v_lshlrev_b32 v12, 3, v11")
e("v_bfe_u32 v11, v0, 3, 2")
e("v_xor_b32 v11, s3, v11")
e("v_lshl_add_u32 v6, v11, 5, v10")
e("v_mul_u32_u24 v14, 896, v2")
e("s_mul_i32 s54, s53, 448")
e(f"s_add_u32 s54, s54, {L_X}")
e("v_add_u32 v14, s54, v14")
e("v_cmp_gt_u32 vcc, 4, v2")
e(f"v_mov_b32 v15, {L_ONES}"); nop(1)
e("v_cndmask_b32 v14, v15, v14, vcc")
e("v_lshl_add_u32 v14, v1, 4, v14")
e("v_and_b32 v10, 3, v0")
e("v_lshlrev_b32 v10, 6, v10")
e("v_and_b32 v11, 12, v0")
e("v_add_u32 v10, v10, v11")
e("s_and_b32 s54, s52, 7")
e("s_lshl_b32 s54, s54, 8")
e("s_lshl_b32 s55, s53, 11")
e("s_add_u32 s54, s54, s55")
e("s_lshl_b32 s55, s3, 6")
e("s_add_u32 s54, s54, s55")
e("s_lshl_b32 s55, s28, 14")
e("s_add_u32 s54, s54, s55")
e(f"s_add_u32 s54, s54, {QBASE}")
e("s_lshl_b32 s55, s52, 11")
e("s_lshl_b32 s56, s53, 10")
e("s_add_u32 s55, s55, s56")
e(f"s_add_u32 s55, s55, {HBASE}")
e("s_lshl_b32 s56, s3, 8")
e("s_add_u32 s55, s55, s56")
e("s_cmp_eq_u32 s51, 1")
e("s_cselect_b32 s54, s54, s55")
e("s_cselect_b32 s56, 12, 6")
e("v_lshrrev_b32 v11, 2, v2")
e("v_lshlrev_b32 v11, s56, v11")
e("v_and_b32 v13, 3, v0")
e("v_lshl_add_u32 v13, v13, 4, v11")
e(f"s_add_u32 s55, s54, {ALT}")
if PREW:
    for r in range(4): e(f"v_mov_b32 v{28+r}, 0")
    e("s_cmp_eq_u32 s51, 1")
    e("s_cbranch_scc0 L_npw")
    e("s_mov_b64 exec, 0xffff")
    e("buffer_store_dwordx4 v[28:31], v13, s[36:39], s55 offen")
    e("s_mov_b64 exec, -1")
    lab("L_npw")
lds_wait("p", 27, 5, L_T, 44)
lds_wait("x", 26, 5, L_XF, 46)
XF = 96
for t in range(7): e(f"ds_read_b128 v[{XF+4*t}:{XF+4*t+3}], v14 offset:{64*t}")
e(f"ds_read_b64 v[36:37], v12 offset:{L_ST}")
e("v_mov_b32 v26, v27")
e(f"s_mov_b32 s45, {SPIN*8}")
lab("L_pl")
e(f"ds_read_b128 v[16:19], v5 offset:{L_PL}")
e("s_sub_u32 s45, s45, 1")
e("s_cbranch_scc1 L_pld")
e("s_waitcnt lgkmcnt(0)")
e("v_and_b32 v16, v16, v17")
e("v_and_b32 v18, v18, v19")
e("v_and_b32 v16, v16, v18")
e("v_cmp_eq_u32 vcc, 0, v16")
e("s_cbranch_vccnz L_pl")
lab("L_pld")
stamp(2)
for t in range(7):
    r = 64 + 4*t
    e(f"ds_read_b64_tr_b16 v[{r}:{r+1}], v6 offset:{L_PW + t*4096}")
    e(f"ds_read_b64_tr_b16 v[{r+2}:{r+3}], v6 offset:{L_PW + t*4096 + 512}")
for t in range(7):
    r = 64 + 4*t
    e(f"s_waitcnt lgkmcnt({12-2*t})")
    src = "0" if t == 0 else "v[16:19]"
    e(f"v_mfma_f32_16x16x32_bf16 v[16:19], v[{r}:{r+3}], v[{XF+4*t}:{XF+4*t+3}], {src}")
nop(8)
for r in range(4): e(f"v_mov_b32 v{20+r}, v{16+r}")
for r in range(4): e(f"v_fmac_f32_dpp v{20+r}, v{16+r}, v36 row_shl:4 {DPP}")
for r in range(4): e(f"v_mul_f32 v{20+r}, v{20+r}, v37")
e("v_cvt_pk_bf16_f32 v20, v20, v21")
e("v_cvt_pk_bf16_f32 v21, v22, v23")
e("ds_bpermute_b32 v24, v10, v20")
e("ds_bpermute_b32 v25, v10, v21")
e("s_waitcnt lgkmcnt(0)")
e("s_mov_b64 exec, 0xffff")
e("s_cmp_eq_u32 s51, 1")
e("s_cbranch_scc0 L_Pb")
e("buffer_store_dwordx4 v[24:27], v13, s[36:39], s54 offen")
for r in range(4): e(f"v_mov_b32 v{32+r}, v{24+r}")
e("s_mov_b32 s59, s54")
e("s_branch L_Pnb")
lab("L_Pb")
e("buffer_store_dwordx4 v[24:27], v13, s[36:39], s54 offen sc1")
lab("L_Pnb")
e("s_mov_b64 exec, -1")
stamp(3)
stamp_flush(0, 4, 0)
lab("L_Pdone")
e("v_mov_b32 v36, v13")
def g_bstore(sfx):
    e("s_cmp_eq_u32 s46, 2")
    e(f"s_cbranch_scc0 L_qnb{sfx}")
    e("s_cmp_eq_u32 s51, 1")
    e(f"s_cbranch_scc0 L_qnb{sfx}")
    e("s_mov_b64 exec, 0xffff")
    e("buffer_store_dwordx4 v[32:35], v36, s[36:39], s59 offen sc1")
    e("s_mov_b64 exec, -1")
    e("s_mov_b32 s51, 0")
    lab(f"L_qnb{sfx}")
e("s_cmp_eq_u32 s3, 1")
e("s_cbranch_scc1 L_G")
e("s_cmp_eq_u32 s3, 0")
e("s_cbranch_scc0 L_Pw")
e("s_mov_b64 exec, -1")
e("v_mov_b32 v5, 0")
e("s_getreg_b32 s48, hwreg(HW_REG_XCC_ID)")
e("s_and_b32 s48, s48, 15")
e("s_lshl_b32 s47, s28, 12")
e(f"s_add_u32 s47, s47, {XBASE}")
e("v_lshlrev_b32 v6, 7, v0")
lds_wait("xt", 9, 5, L_T, 44, sleep=1)
lds_wait("xq", 10, 5, L_QF, 49, sleep=2, bound=BTO)
e("s_mov_b32 exec_lo, -1"); e("s_mov_b32 exec_hi, 0")
e(f"s_mov_b32 s45, {SPIN}")
e("s_mov_b32 s49, 2")
if NOTAB: e("s_mov_b32 s49, 1"); e("s_branch L_xdone")
lab("L_xpoll")
e("buffer_load_dwordx2 v[10:11], v6, s[36:39], s47 offen sc1")
e("s_sub_u32 s45, s45, 1")
e("s_waitcnt vmcnt(0) lgkmcnt(0)")
e("s_cbranch_scc1 L_xdone")
e("v_cmp_ne_u32 vcc, s44, v11")
e("s_cbranch_vccnz L_xpoll")
e("v_cmp_ne_u32 vcc, s48, v10")
e("s_cbranch_vccnz L_xdone")
e("s_mov_b32 s49, 1")
lab("L_xdone")
e("v_mov_b32 v8, s49")
e(f"ds_write_b32 v5, v8 offset:{L_VD}")
lab("L_Pw")
e("s_cmp_eq_u32 s51, 1")
e("s_cbranch_scc0 L_end")
lds_wait("pb", 28, 5, L_VD, 46, sleep=2)
g_bstore("c")
e("s_endpgm")
lab("L_G")
e("v_lshlrev_b32 v6, 4, v0")
e("v_lshlrev_b32 v7, 3, v0")
e("s_lshl_b32 s55, s28, 14")
e("s_lshl_b32 s56, s30, 12")
e("s_add_u32 s55, s55, s56")
e(f"s_add_u32 s55, s55, {QBASE}")
e("v_mov_b32 v24, s44")
rpoint("g_start")
stamp(1)
e(f"s_mov_b32 s45, {SPIN}")
for i in range(4): e(f"s_mov_b64 s[{80+2*i}:{81+2*i}], -1")
lds_wait("gp", 25, 5, L_PL, 46, sleep=1)
e(f"s_mov_b32 s45, {SPIN}")
QD = max(1, QDEP)
def qissue(k):
    for i in range(4):
        e(f"s_or_b64 exec, s[{80+2*i}:{81+2*i}], 1")
        r = 64 + 16*k + 4*i
        e(f"buffer_load_dwordx4 v[{r}:{r+3}], v6, s[36:39], s55 offen offset:{i*1024} sc1")
        e(f"s_mov_b64 s[{64+16+0}:{64+16+1}], s[80:81]") if False else None
def qcheck(k):
    for i in range(4):
        r = 64 + 16*k + 4*i
        e(f"s_mov_b64 exec, s[{80+2*i}:{81+2*i}]")
        e(f"v_cmpx_eq_u32 vcc, s44, v{r+3}")
        e(f"ds_write_b64 v7, v[{r}:{r+1}] offset:{L_QS+i*512}")
        e(f"s_andn2_b64 s[{80+2*i}:{81+2*i}], s[{80+2*i}:{81+2*i}], exec")
    e("s_or_b64 s[48:49], s[80:81], s[82:83]")
    e("s_or_b64 s[48:49], s[48:49], s[84:85]")
    e("s_or_b64 s[48:49], s[48:49], s[86:87]")
    e("s_cbranch_scc0 L_qgo")
for k in range(QD):
    for i in range(4): e(f"v_mov_b32 v{64+16*k+4*i+3}, 0")
qissue(0)
e("s_waitcnt vmcnt(0)")
qcheck(0)
for k in range(QD-1):
    qissue(k)
    e(f"s_sleep {int(opts.get('qgap', 8))}")
lab("L_qpoll")
for k in range(QD):
    qissue((k + QD - 1) % QD)
    e(f"s_waitcnt vmcnt({4*(QD-1)})")
    qcheck(k)
e("s_mov_b64 exec, -1")
e(f"ds_read_b32 v25, v5 offset:{L_VD}")
e("s_waitcnt lgkmcnt(0)")
e("v_readfirstlane_b32 s46, v25")
g_bstore("a")
e("s_sub_u32 s45, s45, 1")
e("s_cbranch_scc0 L_qpoll")
lab("L_qgo")
e("s_mov_b64 exec, -1")
e("s_waitcnt lgkmcnt(0)")
e(f"ds_write_b32 v5, v24 offset:{L_QF}")
rpoint("g_q")
if STAMPS == 1: e("s_mov_b32 s47, s45")
stamp(2)
lds_wait("gv", 25, 5, L_VD, 46, sleep=2)
g_bstore("b")
rexit("g")
if STAMPS == 1: e("s_mov_b32 s45, s47")
if STAMPS == 1:
    e(f"s_sub_u32 s70, {SPIN}, s45"); e("s_mul_i32 s70, s70, 100"); e("s_add_u32 s70, s70, s64"); e("s_mov_b32 s71, s65")
stamp_flush(4, 4, 1)
e("s_endpgm")

lab("L_VW")
ws_srd()
e("s_cmp_ge_u32 s3, 12")
e("s_cbranch_scc1 L_W")
kv_base()
if LAT:
    e("s_add_u32 s48, s49, s31")
    e("s_lshl_b32 s48, s48, 12")
    e("s_lshl_b32 s49, s49, 15")
e("s_lshl_b32 s52, s50, 7")
e("v_lshrrev_b32 v10, 3, v0")
e("v_lshlrev_b32 v3, 9, v10")
e("v_and_b32 v11, 7, v0")
e("v_lshl_add_u32 v3, v11, 4, v3")
e("v_add_u32 v3, s52, v3")
e("s_add_u32 s32, s8, s47")
e("s_addc_u32 s33, s9, 0")
e(f"s_mov_b32 s34, {0x80000 if LAT else 0x10000}")
e("s_mov_b32 s35, 0x20000")
if TLBW:
    e("s_mov_b64 exec, 1")
    e("buffer_load_dword v121, v5, s[32:35], 0 offen")
    e("s_mov_b64 exec, -1")
e("v_lshlrev_b32 v10, 6, v10")
e("v_and_b32 v12, 1, v0")
e("v_cmp_eq_u32 vcc, 1, v12")
e("v_mov_b32 v13, 0xffff")
e("v_mov_b32 v12, 0xffff0000")
e("v_cndmask_b32 v13, v13, v12, vcc")
e("v_bfe_u32 v12, v0, 1, 2")
for j in range(4):
    e(f"v_cmp_eq_u32 vcc, {j}, v12")
    nop(2)
    e(f"v_cndmask_b32 v{6+j}, 0, v13, vcc")
e("s_and_b32 s59, s29, 15")
e("v_and_b32 v12, 1, v1")
e("v_cvt_f32_u32 v2, v12")
e("v_lshl_add_u32 v12, v12, 3, v11")
e("v_xor_b32 v12, s59, v12")
e("v_lshrrev_b32 v4, 1, v1")
e("v_lshlrev_b32 v4, 15, v4")
e("v_lshl_add_u32 v4, v12, 4, v4")
e("v_lshlrev_b32 v1, 4, v1")
e("s_lshl_b32 s58, s28, 16")
e("s_lshl_b32 s59, s50, 13")
e("s_add_u32 s58, s58, s59")
e("s_lshl_b32 s59, s29, 8")
e("s_add_u32 s58, s58, s59")
e(f"s_add_u32 s58, s58, {OBASE}")
e(f"s_add_u32 s59, s58, {ALT}")
e("s_lshl_b32 s57, s50, 2")
e(f"s_add_u32 s57, s57, {L_KCR}")
e("v_mov_b32 v11, s57")
e("v_mov_b32 v12, 1")
e("s_mov_b32 s57, 0")
e("s_mov_b32 s86, 0")
e("s_mov_b32 s60, 0x00ff00ff")
e("s_mov_b32 s61, 0x00ff00ff")
if PREW:
    for r in range(4): e(f"v_mov_b32 v{16+r}, 0")
    e("s_mov_b64 exec, s[60:61]")
    e("buffer_store_dwordx4 v[16:19], v4, s[36:39], s59 offen" + {1:"", 2:" sc1", 3:" nt", 4:" sc0"}[PREW])
    e("s_mov_b64 exec, -1")
stamp(1)
light_flag()
for i in range(16):
    if LAT:
        if i: e("s_add_u32 s49, s49, 32768"); e("s_add_u32 s48, s48, 4096")
        e("s_and_b32 s54, s49, 0x7ffff")
        e("s_and_b32 s46, s48, 0x7fff")
        e("s_or_b32 s54, s54, s46")
    else:
        if i: e("s_add_u32 s49, s49, 4096")
        e("s_and_b32 s54, s49, 0xffff")
    if i < NCAP: credit_wait(i+1, 11, 14, 57)
    elif UNTH:
        e("s_cmp_lg_u32 s86, 0")
        e(f"s_cbranch_scc1 L_un{i}")
        e(f"ds_read_b32 v14, v5 offset:{L_QF}")
        e(f"s_waitcnt vmcnt({NCAP-1}) lgkmcnt(0)")
        e("v_readfirstlane_b32 s86, v14")
        lab(f"L_un{i}")
    else: e(f"s_waitcnt vmcnt({NCAP-1})")
    if CAPL and i >= CAPL: light_wait()
    if i >= VTP: e(f"s_waitcnt vmcnt({VTC-1})")
    e(f"buffer_load_dwordx4 v[{DV+4*i}:{DV+4*i+3}], v3, s[32:35], s54 offen {KVPOL}")
    if i == VSIG: e(f"ds_write_b32 v11, v12 offset:{(L_VI-L_KCR) & 0xffff}") if L_VI >= L_KCR else (e(f"v_subrev_u32 v11, {L_KCR-L_VI}, v11"), e("ds_write_b32 v11, v12"))
rpoint("v_iss")
stamp(2)
if SO:
    e("s_waitcnt vmcnt(0)"); stamp(3); stamp(4); stamp_flush(16, 5, 8, "so"); e("s_endpgm")
e(f"s_mov_b32 s45, {SPIN*8}")
lab("L_vwait")
e(f"ds_read_b128 v[12:15], v5 offset:{L_KF}")
e("s_sub_u32 s45, s45, 1")
e("s_cbranch_scc1 L_vgo")
e("s_waitcnt lgkmcnt(0)")
e("v_and_b32 v12, v12, v13")
e("v_and_b32 v14, v14, v15")
e("v_and_b32 v12, v12, v14")
e("v_cmp_eq_u32 vcc, 0, v12")
e("s_cbranch_vccnz L_vwait")
lab("L_vgo")
SC = 16
for h in range(2):
    for i in range(4): e(f"ds_read_b128 v[{SC+16*h+4*i}:{SC+16*h+4*i+3}], v10 offset:{L_SC+512*h+16*i}")
e(f"ds_read_b128 v[48:51], v1 offset:{L_XS}")
e(f"ds_read_b32 v15, v5 offset:{L_T}")
e("s_waitcnt lgkmcnt(0)")
e("v_add_f32 v49, v49, v50")
e("v_add_f32 v49, v49, v51")
e("v_fma_f32 v14, v49, v2, v48")
rpoint("v_p")
stamp(3)
for t in range(16):
    tau = (t & 1)*8 + (t >> 1)
    for h in range(2):
        for k in range(4): e(f"v_and_b32 v{48+4*h+k}, v{SC+16*h+tau}, v{6+k}")
    nop(1)
    e(f"s_waitcnt vmcnt({15-t})")
    for h in range(2):
        src = "0" if t == 0 else f"v[{56+4*h}:{59+4*h}]"
        e(f"v_mfma_f32_16x16x32_bf16 v[{56+4*h}:{59+4*h}], v[{48+4*h}:{51+4*h}], v[{DV+4*t}:{DV+4*t+3}], {src}")
nop(8)
for r in range(4): e(f"v_permlane32_swap_b32 v{56+r}, v{60+r}")
for r in range(4): e(f"v_add_f32_dpp v{56+r}, v{60+r}, v{56+r} row_ror:8 {DPP}")
e("s_mov_b64 exec, s[60:61]")
e("v_cvt_pk_bf16_f32 v12, v56, v57")
e("v_cvt_pk_bf16_f32 v13, v58, v59")
e("buffer_store_dwordx4 v[12:15], v4, s[36:39], s58 offen")
rpoint("v_pub")
stamp(4, 2)
e("v_mov_b32 v16, 1")
e("s_mov_b64 exec, 1")
e(f"ds_add_u32 v5, v16 offset:{L_VP}")
e("s_mov_b64 exec, s[60:61]")
lds_wait("vv", 17, 5, L_VD, 46, sleep=1)
e("s_cmp_eq_u32 s46, 1")
e("s_cbranch_scc1 L_Vnb")
e("buffer_store_dwordx4 v[12:15], v4, s[36:39], s58 offen sc1")
lab("L_Vnb")
rexit("v")
if PADWG >= 0:
    e(f"s_cmp_lg_u32 s2, {PADWG}")
    e("s_cbranch_scc1 L_npad")
    lab("L_padw")
    e("s_memrealtime s[66:67]"); e("s_waitcnt lgkmcnt(0)")
    e("s_sub_u32 s69, s66, s64"); e("s_cmp_lt_u32 s69, 4000"); e("s_cbranch_scc1 L_padw")
    lab("L_npad")
if STAMPS == 2:
    e("s_waitcnt vmcnt(0)"); stamp(5, 2)
    e("s_cmp_lg_u32 s3, 8"); e("s_cbranch_scc1 L_v8"); wstamp_flush([(0, 0)], "v0"); lab("L_v8"); wstamp_flush([(4, 4), (8, 5)], "v")
stamp_flush(16, 5, 8)
e("s_endpgm")

lab("L_W")
if NOW_: e("s_endpgm")
e("s_cmp_ge_u32 s29, 28")
e("s_cbranch_scc1 L_R")
e("s_lshr_b32 s47, s29, 2")
e("s_and_b32 s49, s29, 1")
e("s_bfe_u32 s46, s29, 0x10001")
e("s_lshl_b32 s85, s28, 1")
e("s_add_u32 s85, s85, s46")
e("s_lshl_b32 s51, s85, 2")
e("s_add_u32 s51, s51, s50")
e("s_lshr_b32 s55, s51, 1")
e("s_and_b32 s48, s51, 1")
e("s_mul_i32 s84, s50, 0x3000")
e(f"s_add_u32 s84, s84, {L_WW}")
e("s_mov_b64 s[32:33], s[12:13]"); e(f"s_mov_b32 s34, {4096*448*2}"); e("s_mov_b32 s35, 0x20000")
e("s_mov_b64 s[80:81], s[20:21]"); e(f"s_mov_b32 s82, {1792*448*2}"); e("s_mov_b32 s83, 0x20000")
e(f"s_mul_i32 s62, s51, {64*896}")
e(f"s_mul_i32 s63, s51, {32*896}")
e("s_lshl_b32 s57, s47, 7")
e("s_add_u32 s62, s62, s57")
e("s_add_u32 s63, s63, s57")
if TLBW:
    e("s_mov_b64 exec, 1")
    e("buffer_load_dword v121, v5, s[32:35], s62 offen")
    e("buffer_load_dword v122, v5, s[80:83], s63 offen")
    e("s_mov_b64 exec, -1")
e("v_lshrrev_b32 v6, 3, v0")
e("v_mul_u32_u24 v6, 896, v6")
e("v_and_b32 v40, 7, v0")
e("v_bfe_u32 v41, v0, 4, 1")
e("v_lshlrev_b32 v41, 1, v41")
e("v_xor_b32 v40, v40, v41")
e("v_xor_b32 v41, 4, v40")
e("v_lshl_add_u32 v40, v40, 4, v6")
e("v_lshl_add_u32 v41, v41, 4, v6")
e("v_lshlrev_b32 v10, 10, v1")
e("v_lshrrev_b32 v11, 2, v2")
e("v_lshl_add_u32 v10, v11, 7, v10")
e("v_and_b32 v11, 3, v0")
e("v_lshl_add_u32 v10, v11, 3, v10")
e("v_add_u32 v10, s84, v10")
e("v_bfe_u32 v11, v0, 3, 2")
for j in range(4):
    e(f"v_xor_b32 v12, {j}, v11")
    e(f"v_lshl_add_u32 v{6+j}, v12, 5, v10")
e("v_and_b32 v10, 1, v0")
e("v_lshlrev_b32 v10, 10, v10")
e("v_bfe_u32 v11, v0, 3, 1")
e("v_lshl_add_u32 v10, v11, 6, v10")
e("v_lshrrev_b32 v11, 1, v1")
e("v_lshl_add_u32 v10, v11, 8, v10")
e("v_and_b32 v11, 1, v1")
e("v_lshl_add_u32 v10, v11, 5, v10")
e("v_lshlrev_b32 v14, 4, v1")
e("v_bfe_u32 v11, v0, 2, 1")
e("v_lshl_add_u32 v10, v11, 4, v10")
e("v_lshl_add_u32 v14, v11, 3, v14")
e("s_lshl_b32 s53, s55, 11")
e("s_lshl_b32 s54, s48, 9")
e("s_add_u32 s53, s53, s54")
e("s_lshl_b32 s54, s49, 7")
e("s_add_u32 s53, s53, s54")
e(f"s_add_u32 s53, s53, {HBASE}")
e("s_mov_b64 s[40:41], s[18:19]"); e("s_mov_b32 s42, 3584"); e("s_mov_b32 s43, 0x20000")
e("s_lshl_b32 s54, s51, 6")
e("buffer_load_dwordx2 v[20:21], v14, s[40:43], s54 offen")
e("s_lshl_b32 s54, s51, 13")
e("s_lshl_b32 s58, s49, 12")
e("s_add_u32 s54, s54, s58")
e(f"s_add_u32 s61, s54, {OBASE}")
e("v_lshlrev_b32 v11, 4, v0")
if ATOM:
    e("s_lshl_b32 s56, s47, 1")
    e("s_add_u32 s56, s56, s49")
    e("s_lshl_b32 s88, s56, 2")
    e("s_add_u32 s88, s88, s50")
    e("s_lshl_b32 s56, s88, 9")
    e(f"s_add_u32 s56, s56, {FBASE}")
    e("s_lshl_b32 s88, s88, 7")
    e(f"s_add_u32 s88, s88, {FBASE + 0x10000}")
    e("v_lshlrev_b32 v13, 3, v0")
    e("s_lshl_b32 s58, s50, 9")
    e("v_add_u32 v12, s58, v13")
    e("v_lshrrev_b32 v113, 3, v0")
    e("s_lshl_b32 s58, s50, 3")
    e("v_add_u32 v113, s58, v113")
    e("v_mul_u32_u24 v113, 7, v113")
    e("v_and_b32 v114, 7, v0")
    e("v_add_u32 v113, v113, v114")
    e("v_cmp_gt_u32 vcc, 128, v113")
    e("v_cmp_gt_u32 s[90:91], 7, v114")
    e("v_cmp_eq_u32 s[92:93], 7, v114")
    e("s_and_b64 s[90:91], s[90:91], vcc")
    e("v_min_u32 v113, 127, v113")
    e("v_cndmask_b32 v115, 0, 1.0, s[92:93]")
    e("v_and_b32 v116, 1, v113")
    e("v_lshlrev_b32 v117, 6, v116")
    e("v_bfe_u32 v116, v113, 1, 4")
    e("v_lshl_add_u32 v117, v116, 1, v117")
    e("v_bfe_u32 v116, v113, 5, 1")
    e("v_lshl_add_u32 v117, v116, 5, v117")
    e("v_lshrrev_b32 v116, 6, v113")
    e("v_mul_u32_u24 v116, 896, v116")
    e("v_add_u32 v117, v117, v116")
    e("s_mul_i32 s89, s49, 1792")
    e("s_lshl_b32 s58, s47, 7")
    e("s_add_u32 s89, s89, s58")
    e("v_lshlrev_b32 v113, 2, v113")
    e(f"v_add_u32 v113, {L_Z}, v113")
    e("s_cmp_eq_u32 s50, 2")
    e("s_cselect_b32 s94, 0xffffff, -1")
    e("s_cselect_b32 s95, 0, -1")
else:
    e("v_lshrrev_b32 v13, 1, v1")
    e(f"v_mul_u32_u24 v13, {7*8192}, v13")
    e("v_and_b32 v12, 1, v1")
    e("v_lshl_add_u32 v13, v12, 12, v13")
    e("v_lshl_add_u32 v13, v2, 4, v13")
    e("s_mul_i32 s56, s49, 14")
    e("s_add_u32 s56, s56, s47")
    e("s_lshl_b32 s56, s56, 13")
    e("s_lshl_b32 s58, s85, 8")
    e("s_add_u32 s56, s56, s58")
    e(f"s_add_u32 s56, s56, {FBASE}")
    e("s_lshl_b32 s58, s50, 9")
    e("v_lshl_add_u32 v12, v0, 3, s58")
    for k in range(1, 4): e(f"v_xor_b32 v{112+k}, {512*k}, v12")
e("s_lshl_b32 s58, s50, 12")
e(f"s_add_u32 s58, s58, {L_OG}")
e("v_xor_b32 v4, v1, v2")
e("v_lshlrev_b32 v14, 8, v2")
e("v_add_u32 v14, s58, v14")
for t in range(2):
    for ee in range(2):
        e(f"v_xor_b32 v42, {ee*8+4*t}, v4")
        e(f"v_lshl_add_u32 v{44+2*t+ee}, v42, 4, v14")
e("s_lshl_b32 s57, s50, 2")
e("v_mov_b32 v43, s57")
e("s_add_u32 m0, s84, 8192")
if CRED:
    e("s_lshr_b32 s89, s28, 1")
    e("s_mul_i32 s88, s89, 7")
    e("s_add_u32 s88, s88, s47")
    e("s_lshl_b32 s88, s88, 1")
    e("s_and_b32 s90, s28, 1")
    e("s_add_u32 s88, s88, s90")
    e("s_lshl_b32 s88, s88, 12")
    e("s_and_b32 s91, s29, 3")
    e("s_lshl_b32 s92, s91, 6")
    e("s_add_u32 s88, s88, s92")
    e(f"s_add_u32 s88, s88, {FBASE}")
    e("s_mul_i32 s89, s89, 896")
    e("s_lshl_b32 s92, s47, 7"); e("s_add_u32 s89, s89, s92")
    e("s_lshl_b32 s92, s90, 5"); e("s_add_u32 s89, s89, s92")
    e("s_lshl_b32 s92, s91, 3"); e("s_add_u32 s89, s89, s92")
    e("v_and_b32 v117, 3, v0")
    e("v_lshrrev_b32 v116, 2, v0")
    e("v_lshlrev_b32 v116, 8, v116")
    e("v_lshl_add_u32 v116, v117, 4, v116")
    e("v_lshlrev_b32 v117, 1, v117")
    e("v_lshrrev_b32 v118, 5, v0")
    e("v_lshl_add_u32 v117, v118, 6, v117")
    e("s_mov_b64 s[40:41], s[4:5]")
    e("buffer_load_ushort v118, v117, s[40:43], s89 offen")
    e("s_waitcnt vmcnt(0)")
    e("v_lshlrev_b32 v118, 16, v118")
    e("s_mov_b64 s[40:41], s[22:23]")
if not SO: lds_wait("w", 14, 5, L_T, 44, sleep=2)
G = 16; BF = 64; ACC = 48
TB = 36 if MERGE else 6
if DRY and not SO:
    e("v_mov_b32 v119, v10")
    e("s_waitcnt vmcnt(0)")
    e("v_mov_b32 v122, v20"); e("v_mov_b32 v123, v21")
    e("s_mov_b32 s87, 1")
    e("s_branch L_ogo")
    lab("L_dryret")
    e("s_mov_b32 s87, 0")
    e("v_mov_b32 v10, v119")
    nop(4)
for j in range(4): e(f"v_mov_b32 v{ACC+4*j}, 0")
if ATOM and not SO:
    e("s_mov_b64 s[40:41], s[4:5]")
    e("s_cmp_lg_u32 s85, 0")
    e("s_cbranch_scc1 L_noini")
    e("s_cmp_eq_u32 s50, 3")
    e("s_cbranch_scc1 L_noini")
    e("buffer_load_ushort v24, v117, s[40:43], s89 offen")
    for r in range(4): e(f"v_mov_b32 v{28+r}, s44")
    e("s_waitcnt vmcnt(0)")
    e("v_lshlrev_b32 v24, 16, v24")
    e("v_cndmask_b32 v24, 0, v24, s[90:91]")
    e("v_cvt_f64_f32 v[26:27], v24")
    e("buffer_store_dwordx2 v[26:27], v13, s[36:39], s56 offen sc1")
    e("s_waitcnt vmcnt(0)")
    e("s_mov_b64 exec, 0xff")
    e("buffer_store_dwordx4 v[28:31], v11, s[36:39], s88 offen sc1")
    e("s_mov_b64 exec, -1")
    lab("L_noini")
    e("s_mov_b64 s[40:41], s[22:23]")
    if OUTW == 1: e("buffer_load_ushort v121, v117, s[40:43], s89 offen")
    if OUTW == 2:
        e("s_mov_b64 exec, 1"); e("buffer_load_ushort v121, v5, s[40:43], 0 offen"); e("s_mov_b64 exec, -1")
HEARLY = int(opts.get('hearly', 1))
if HEARLY and not SO: lds_wait("hq", 14, 5, L_QF, 52, sleep=2)
else: lds_wait("c", 14, 43, L_VI, 52, sleep=1)
if ATOM: e("buffer_load_dword v118, v5, s[36:39], s88 offen sc1")
e("buffer_load_dwordx4 v[16:19], v10, s[36:39], s53 offen sc1")
if WCONT == 1:
    e("v_lshlrev_b32 v40, 4, v0")
    e("s_mul_i32 s62, s28, 28"); e("s_add_u32 s62, s62, s29"); e("s_lshl_b32 s62, s62, 2"); e("s_add_u32 s62, s62, s50")
    e("s_lshl_b32 s63, s62, 11"); e("s_lshl_b32 s62, s62, 12")
    for i in range(2): e(f"buffer_load_dwordx4 v40, s[80:83], s63 offen offset:{i*1024} {WPOL} lds")
    for i in range(4): e(f"buffer_load_dwordx4 v40, s[32:35], s62 offen offset:{i*1024} {WPOL} lds")
elif WCONT == 2:
    e(f"s_mul_i32 s52, s49, {16*896}"); e("s_add_u32 s63, s63, s52"); e("s_add_u32 s62, s62, s52"); e("s_add_u32 s62, s62, s52")
    for i in range(2):
        if i: e(f"s_add_u32 s63, s63, {8*896-1024}")
        e(f"buffer_load_dwordx4 v{40+(i&1)}, s[80:83], s63 offen offset:{i*1024} {WPOL} lds")
    for i in range(4):
        if i: e(f"s_add_u32 s62, s62, {8*896-1024}")
        e(f"buffer_load_dwordx4 v{40+(i&1)}, s[32:35], s62 offen offset:{i*1024} {WPOL} lds")
else:
    for i in range(4):
        if i: e(f"s_add_u32 s63, s63, {8*896-1024}")
        e(f"buffer_load_dwordx4 v{40+(i&1)}, s[80:83], s63 offen offset:{i*1024} {WPOL} lds")
    e("s_mov_b32 m0, s84")
    if HEARLY and not SO: lds_wait("c", 14, 43, L_VI, 52, sleep=1)
    nop(1)
    for i in range(8):
        if i == 4: e("s_add_u32 m0, s84, 4096")
        if i: e(f"s_add_u32 s62, s62, {8*896-1024 if i != 4 else 8*896+3072}")
        if WCAP and i >= WCAP: e(f"s_waitcnt vmcnt({WCAP-1})")
        e(f"buffer_load_dwordx4 v{40+(i&1)}, s[32:35], s62 offen offset:{(i&3)*1024} {WPOL} lds")
if SO:
    e("s_waitcnt vmcnt(0)"); stamp(1); stamp(2); stamp(3); stamp_flush(24, 4, 12, "so"); e("s_endpgm")
e("s_cmp_eq_u32 s28, 7")
e("s_cbranch_scc1 L_skipm")
e("s_waitcnt vmcnt(8)")
e(f"s_mov_b32 s45, {SPIN}")
e("s_branch L_achk")
lab("L_apoll")
e("buffer_load_dwordx4 v[16:19], v10, s[36:39], s53 offen sc1")
e("s_sub_u32 s45, s45, 1")
e("s_waitcnt vmcnt(0)")
e("s_cbranch_scc1 L_ago")
lab("L_achk")
e("v_cmp_ne_u32 vcc, s44, v19")
e("s_cbranch_vccnz L_apoll")
lab("L_ago")
stamp(1)
for j in range(4):
    r = 96 + j*4
    e(f"ds_read_b64_tr_b16 v[{r}:{r+1}], v{6+j} offset:8192")
    e(f"ds_read_b64_tr_b16 v[{r+2}:{r+3}], v{6+j} offset:{8192+512}")
e("v_lshlrev_b32 v24, 16, v16"); e("v_and_b32 v25, 0xffff0000, v16")
e("v_lshlrev_b32 v26, 16, v17"); e("v_and_b32 v27, 0xffff0000, v17")
e("v_lshlrev_b32 v28, 16, v20"); e("v_and_b32 v29, 0xffff0000, v20")
e("v_lshlrev_b32 v30, 16, v21"); e("v_and_b32 v31, 0xffff0000, v21")
for r in range(4): e(f"v_add_f32_dpp v{24+r}, v{24+r}, v{24+r} quad_perm:[1,0,3,2] {DPP}")
for r in range(4): e(f"v_add_f32 v{24+r}, v{24+r}, v{28+r}")
for r in range(4): e(f"v_min_f32 v{28+r}, 0x41a00000, v{24+r}")
for r in range(4): e(f"v_mul_f32 v{28+r}, {fhex(math.log2(math.e))}, v{28+r}")
for r in range(4): e(f"v_exp_f32 v{28+r}, v{28+r}")
nop(1)
for r in range(4): e(f"v_add_f32 v{32+r}, 2.0, v{28+r}")
for r in range(4): e(f"v_mul_f32 v{28+r}, v{28+r}, v{32+r}")
for r in range(4): e(f"v_add_f32 v{32+r}, 2.0, v{28+r}")
for r in range(4): e(f"v_rcp_f32 v{32+r}, v{32+r}")
nop(1)
for r in range(4): e(f"v_mul_f32 v{28+r}, v{28+r}, v{32+r}")
for r in range(4): e(f"v_mul_f32 v{24+r}, v{24+r}, v{28+r}")
e("v_cvt_pk_bf16_f32 v32, v24, v25")
e("v_cvt_pk_bf16_f32 v33, v26, v27")
nop(2)
for bsel in range(2):
    for ee in range(2):
        for d in range(2):
            e(f"v_mov_b32_dpp v{16+2*ee+d}, v{32+d} row_newbcast:{8*bsel+4*ee} row_mask:0xf bank_mask:{0x3 << (2*bsel):#x}")
nop(1)
e("s_waitcnt lgkmcnt(0)")
for j in range(4):
    e(f"v_mfma_f32_16x16x32_bf16 v[{ACC+4*j}:{ACC+4*j+3}], v[16:19], v[{96+4*j}:{99+4*j}], 0")
lab("L_skipm")
stamp(2)
if ATOM:
    e("s_cmp_eq_u32 s50, 3")
    e("s_cbranch_scc1 L_ifok")
    e("s_waitcnt vmcnt(8)")
    e(f"s_mov_b32 s45, {SPIN}")
    lab("L_ifp")
    e("v_cmp_ne_u32 vcc, s44, v118")
    e("s_cbranch_vccz L_ifok")
    e("buffer_load_dword v118, v5, s[36:39], s88 offen sc1")
    e("s_sub_u32 s45, s45, 1")
    e("s_waitcnt vmcnt(0)")
    e("s_cbranch_scc0 L_ifp")
    lab("L_ifok")
nop(8)
for j in range(4): e(f"v_mul_f32 v{36+j}, 0.5, v{ACC+4*j}")
e("s_mov_b32 m0, s58")
e("s_mov_b32 s54, s61")
def oissue():
    for j in range(4): e(f"buffer_load_dwordx4 v11, s[36:39], s54 offen offset:{j*1024} sc1 lds")
e("v_mov_b32 v42, 1")
e("v_mov_b32 v34, s44")
e("v_mov_b32 v35, s44")
if CUT == 1: e("s_waitcnt vmcnt(0)"); e("s_endpgm")
if OEARLY == 9: lds_wait("wvp", 14, 5, L_VP, 52, need=4)
e(f"s_mov_b32 s45, {SPIN}")
if OEARLY >= 8: oissue()
for t in range(2):
    if OEARLY >= 8:
        e(f"s_waitcnt vmcnt({8 if t == 0 else 4})")
        if t == 1: rpoint("w_land"); rpoint("a_land"); stamp(3, 2)
    elif t == 0: e("s_waitcnt vmcnt(4)")
    elif OEARLY:
        e(f"s_waitcnt vmcnt({OEARLY})")
        oissue()
        e("s_waitcnt vmcnt(4)")
        rpoint("w_land"); stamp(3, 2)
    else:
        e("s_waitcnt vmcnt(0)")
        rpoint("w_land"); stamp(3, 2)
        oissue()
    for j in range(4):
        r = BF + (j*2+t)*4
        e(f"ds_read_b64_tr_b16 v[{r}:{r+1}], v{6+j} offset:{t*4096}")
        e(f"ds_read_b64_tr_b16 v[{r+2}:{r+3}], v{6+j} offset:{t*4096+512}")
    if t == 0 or not MERGE: e("s_waitcnt lgkmcnt(0)")
if not MERGE:
    for j in range(4): e(f"v_mov_b32 v{6+j}, v{36+j}")
stamp(4)
e("s_branch L_ochk")
lab("L_opoll")
if OSLEEP: e(f"s_sleep {OSLEEP}")
if OMASK:
    e("s_or_b32 s52, vcc_lo, vcc_hi")
    e("s_lshr_b32 s53, s52, 16")
    e("s_or_b32 s52, s52, s53")
    for j in range(4):
        e(f"s_and_b32 s53, s52, {0xF << (4*j):#x}")
        e(f"s_cbranch_scc0 L_os{j}")
        e(f"buffer_load_dwordx4 v11, s[36:39], s54 offen offset:{j*1024} sc1 lds")
        lab(f"L_os{j}")
else: oissue()
lab("L_ochk")
e("s_waitcnt vmcnt(0)")
for k in range(4): e(f"ds_read_b128 v[{G+4*k}:{G+4*k+3}], v{44+k}")
e("s_sub_u32 s45, s45, 1")
e("s_cbranch_scc1 L_ogo")
e("s_waitcnt lgkmcnt(0)")
e(f"v_bitop3_b32 v{ACC}, v{G+3}, v{G+7}, s44 bitop3:0x7e")
e(f"v_bitop3_b32 v{ACC+1}, v{G+11}, v{G+15}, s44 bitop3:0x7e")
e(f"v_or_b32 v{ACC}, v{ACC}, v{ACC+1}")
e(f"v_cmp_ne_u32 vcc, 0, v{ACC}")
e("s_cbranch_vccnz L_opoll")
lab("L_ogo")
e("s_waitcnt lgkmcnt(0)")
if CUT == 2: e("s_endpgm")
rpoint("w_ook"); rpoint("a_ook")
stamp(5, 2)
if not ATOM:
    e("s_mov_b64 exec, 1")
    e(f"ds_add_rtn_u32 v43, v5, v42 offset:{L_OC}")
    e("s_mov_b64 exec, -1")
e(f"v_mov_b32 v{G+2}, v{G+4}")
e(f"v_mov_b32 v{G+3}, v{G+5}")
e(f"v_max_f32_dpp v14, v{G+10}, v{G+10} quad_perm:[1,0,3,2] {DPP}")
e(f"v_mov_b32 v10, v{G+10}")
e(f"v_mov_b32 v{G+10}, v{G+12}")
e(f"v_mov_b32 v{G+11}, v{G+13}")
valu = [[f"v_max_f32_dpp v14, v14, v14 quad_perm:[2,3,0,1] {DPP}"],
        [f"v_max_f32_dpp v14, v14, v14 row_half_mirror {DPP}", "v_sub_f32 v10, v10, v14", "v_exp_f32 v10, v10"],
        [f"v_mul_f32 v14, v10, v{G+6}"],
        [f"v_add_f32_dpp v14, v14, v14 quad_perm:[1,0,3,2] {DPP}"],
        [f"v_add_f32_dpp v14, v14, v14 quad_perm:[2,3,0,1] {DPP}"],
        [f"v_add_f32_dpp v14, v14, v14 row_half_mirror {DPP}", "v_rcp_f32 v14, v14"],
        ["v_mul_f32 v10, v10, v14", "v_mov_b32 v14, v10"],
        ["v_mov_b32_dpp v14, v10 row_ror:12 row_mask:0x2 bank_mask:0xf",
         "v_mov_b32_dpp v14, v10 row_ror:8 row_mask:0x4 bank_mask:0xf",
         "v_mov_b32_dpp v14, v10 row_ror:4 row_mask:0x8 bank_mask:0xf"]]
k = 0
for t in range(2):
    for j in range(4):
        r = BF + (j*2+t)*4
        src = "0" if t == 0 else f"v[{ACC+4*j}:{ACC+4*j+3}]"
        e(f"v_mfma_f32_16x16x32_bf16 v[{ACC+4*j}:{ACC+4*j+3}], v[{G+8*t}:{G+8*t+3}], v[{r}:{r+3}], {src}")
        nop(1)
        for x in valu[k]: e(x)
        k += 1
if ATOM:
    nop(2)
    for r in range(4):
        for j in range(4): e(f"v_fmac_f32_dpp v{TB+j}, v14, v{ACC+4*j+r} row_newbcast:{r} {DPP}")
    e("s_cmp_eq_u32 s50, 3")
    e(f"v_permlane16_swap_b32 v{TB}, v{TB+1}")
    e(f"v_permlane16_swap_b32 v{TB+2}, v{TB+3}")
    e(f"v_add_f32 v32, v{TB}, v{TB+1}")
    e(f"v_add_f32 v33, v{TB+2}, v{TB+3}")
    if DRY:
        e("s_cmp_eq_u32 s87, 1")
        e("s_cbranch_scc1 L_dryret")
        e("s_cmp_eq_u32 s50, 3")
    e(f"ds_write_b64 v12, v[32:33] offset:{L_Z}")
    e("s_mov_b64 exec, 1")
    e(f"ds_add_u32 v5, v42 offset:{L_ZC}")
    e("s_cbranch_scc1 L_wfin")
    e("s_mov_b64 exec, s[94:95]")
    lab("L_zre")
    e(f"ds_read_b32 v43, v5 offset:{L_ZC}")
    e("ds_read2st64_b32 v[24:25], v113 offset0:0 offset1:2")
    e("ds_read2st64_b32 v[26:27], v113 offset0:4 offset1:6")
    e("s_waitcnt lgkmcnt(0)")
    e("v_cmp_gt_u32 vcc, 4, v43")
    e("s_cbranch_vccnz L_zre")
    e("v_add_f32 v24, v24, v25")
    e("v_add_f32 v26, v26, v27")
    e("v_add_f32 v24, v24, v26")
    e("v_cndmask_b32 v24, v115, v24, s[90:91]")
    e("v_cvt_f64_f32 v[26:27], v24")
    if CUT == 3: e("s_endpgm")
    e("buffer_atomic_add_f64 v[26:27], v13, s[36:39], s56 offen sc0")
    stamp(6, 2)
    e("v_cvt_f64_f32 v[28:29], v24")
    e("s_mov_b32 s46, 0x402e0000")
    e("s_waitcnt vmcnt(0)")
    e("v_mov_b32_dpp v30, v27 row_newbcast:7 row_mask:0xf bank_mask:0x3")
    e("v_mov_b32_dpp v30, v27 row_newbcast:15 row_mask:0xf bank_mask:0xc")
    e("v_add_f64 v[26:27], v[26:27], v[28:29]")
    e("v_cmp_eq_u32 vcc, s46, v30")
    e("v_cvt_f32_f64 v26, v[26:27]")
    if CUT == 4: e("s_endpgm")
    e("s_and_b64 exec, vcc, s[90:91]")
    e("s_cbranch_execz L_wfin2")
    e("v_cvt_pk_bf16_f32 v26, v26, v26")
    e(f"buffer_store_short v26, v117, s[40:43], s89 offen {OUTPOL}")
    e(f"s_cmp_lg_u32 s56, {FBASE + 2048}")
    e("s_cbranch_scc1 L_wfin2")
    e("s_and_b64 exec, exec, 1")
    e("s_cbranch_execz L_wfin2")
    e("buffer_store_dword v34, v5, s[36:39], 0 offen")
    lab("L_wfin2")
    rpoint("a_fin")
    rexit("a")
    if STAMPS == 2:
        stamp(7, 2)
        wstamp_flush([(12, 3), (16, 5), (20, 6), (24, 7)], "wa")
    e("s_endpgm")
else:
    e("s_waitcnt lgkmcnt(0)")
    e("v_readfirstlane_b32 s46, v43")
    def zreads():
        e(f"ds_read_b32 v43, v5 offset:{L_ZC}")
        for k in range(3): e(f"ds_read_b64 v[{24+2*k}:{25+2*k}], v{113+k} offset:{L_Z}")
    zreads()
    for r in range(4):
        for j in range(4): e(f"v_fmac_f32_dpp v{6+j}, v14, v{ACC+4*j+r} row_newbcast:{r} {DPP}")
    e("s_cmp_eq_u32 s46, 3")
    e("v_permlane16_swap_b32 v6, v7")
    e("v_permlane16_swap_b32 v8, v9")
    e("v_add_f32 v32, v6, v7")
    e("v_add_f32 v33, v8, v9")
    e("s_cbranch_scc1 L_coll")
    e(f"ds_write_b64 v12, v[32:33] offset:{L_Z}")
    e("s_mov_b64 exec, 1")
    e(f"ds_add_u32 v5, v42 offset:{L_ZC}")
    e("s_branch L_wfin")
    lab("L_zre")
    zreads()
    lab("L_coll")
    e("s_waitcnt lgkmcnt(0)")
    e("v_cmp_gt_u32 vcc, 3, v43")
    e("s_cbranch_vccnz L_zre")
    e("v_add_f32 v26, v26, v28"); e("v_add_f32 v27, v27, v29")
    e("v_add_f32 v32, v32, v24"); e("v_add_f32 v33, v33, v25")
    e("v_add_f32 v32, v32, v26"); e("v_add_f32 v33, v33, v27")
    e("buffer_store_dwordx4 v[32:35], v13, s[36:39], s56 offen sc1")
    if CRED:
        stamp(6, 2)
        e(f"s_mov_b32 s45, {SPIN*4}")
        lab("L_cpoll")
        if FSLEEP: e(f"s_sleep {FSLEEP}")
        e("buffer_load_dwordx4 v[16:19], v116, s[36:39], s88 offen sc1")
        e("s_sub_u32 s45, s45, 1")
        e("s_waitcnt vmcnt(0)")
        e("s_cbranch_scc1 L_cgo")
        e("v_cmpx_ne_u32 vcc, s44, v19")
        e("s_cbranch_execnz L_cpoll")
        lab("L_cgo")
        e("s_mov_b64 exec, -1")
        nop(4)
        e("v_permlane32_swap_b32 v16, v17")
        e("v_add_f32 v16, v16, v17")
        e("v_mov_b32 v17, v16"); nop(2)
        e("v_permlane16_swap_b32 v16, v17")
        e("v_add_f32 v16, v16, v17"); nop(2)
        e(f"v_add_f32_dpp v16, v16, v16 row_ror:8 {DPP}"); nop(2)
        e(f"v_add_f32_dpp v16, v16, v16 row_ror:4 {DPP}")
        e("v_add_f32 v16, v16, v118")
        e("v_cvt_pk_bf16_f32 v16, v16, v16")
        e("s_mov_b32 exec_lo, 15")
        e("s_mov_b32 exec_hi, 15")
        e("buffer_store_short v16, v117, s[40:43], s89 offen")
        stamp(2, 2)
        e(f"s_cmp_lg_u32 s89, {3*896}")
        e("s_cbranch_scc1 L_cne")
        e("s_mov_b64 exec, 1")
        e("buffer_store_dword v34, v5, s[36:39], 0 offen")
        lab("L_cne")
        if STAMPS == 2:
            e("s_and_b32 s3, s3, 12")
            wstamp_flush([(1, 2), (2, 6)], "c")
            e("s_endpgm")
lab("L_wfin")
rpoint("w_pub")
rexit("w")
stamp(6, 2)
if STAMPS == 2:
    e("s_waitcnt vmcnt(0)"); stamp(7, 2)
    e(f"s_sub_u32 s66, {SPIN}, s45"); e("s_mul_i32 s66, s66, 100"); e("s_add_u32 s66, s66, s64"); e("s_mov_b32 s67, s65")
    wstamp_flush([(12, 3), (16, 5), (20, 6), (24, 7), (28, 1)], "w")
stamp_flush(24, 7, 12)
e("s_endpgm")
lab("L_R")
if SO or CRED or ATOM: e("s_endpgm")
e("s_lshl_b32 s46, s28, 2")
e("s_add_u32 s46, s46, s29")
e("s_sub_u32 s46, s46, 28")
e("s_cmp_ge_u32 s46, 28")
e("s_cbranch_scc1 L_end")
e("s_lshr_b32 s47, s46, 2")
e("s_and_b32 s48, s46, 1")
e("s_bfe_u32 s49, s46, 0x10001")
e("s_mul_i32 s59, s50, 896")
e("s_lshl_b32 s58, s47, 7"); e("s_add_u32 s59, s59, s58")
e("s_lshl_b32 s58, s49, 5"); e("s_add_u32 s59, s59, s58")
e("s_lshl_b32 s58, s48, 4"); e("s_add_u32 s59, s59, s58")
e("v_and_b32 v14, 7, v0")
e("v_lshlrev_b32 v15, 1, v14")
e("v_lshrrev_b32 v11, 5, v0")
e("v_lshl_add_u32 v15, v11, 6, v15")
e("s_mov_b64 s[40:41], s[4:5]"); e("s_mov_b32 s42, 3584"); e("s_mov_b32 s43, 0x20000")
e("buffer_load_ushort v3, v15, s[40:43], s59 offen")
e("s_mov_b64 s[32:33], s[22:23]"); e("s_mov_b32 s34, 3584"); e("s_mov_b32 s35, 0x20000")
if OUTW: e("buffer_load_ushort v121, v15, s[32:35], s59 offen")
e("s_mul_i32 s52, s50, 7")
e("s_add_u32 s52, s52, s47")
e("s_lshl_b32 s52, s52, 1")
e("s_add_u32 s52, s52, s49")
e("s_lshl_b32 s52, s52, 12")
e("s_lshl_b32 s58, s48, 7")
e("s_add_u32 s52, s52, s58")
e(f"s_add_u32 s52, s52, {FBASE}")
e("v_lshrrev_b32 v12, 3, v0")
e("v_lshlrev_b32 v12, 8, v12")
e("v_lshl_add_u32 v12, v14, 4, v12")
MK = 80
R = 16
for i in range(2): e(f"s_mov_b64 s[{MK+2*i}:{MK+2*i+1}], -1")
for i in range(2): e(f"v_mov_b32 v{R+4*i+3}, 0")
lds_wait("rt", 7, 5, L_T, 44, sleep=2)
e("s_waitcnt vmcnt(0)")
e("v_lshlrev_b32 v8, 16, v3")
lds_wait("rv", 14, 5, L_VP, 56, need=4, sleep=2)
e(f"s_mov_b32 s45, {SPIN*4}")
lab("L_fpoll")
if FSLEEP: e(f"s_sleep {FSLEEP}")
for i in range(2):
    e(f"s_mov_b64 exec, s[{MK+2*i}:{MK+2*i+1}]")
    e(f"s_cbranch_execz L_fs{i}")
    e(f"buffer_load_dwordx4 v[{R+4*i}:{R+4*i+3}], v12, s[36:39], s52 offen offset:{i*2048} sc1")
    lab(f"L_fs{i}")
e("s_mov_b64 exec, -1")
e("s_sub_u32 s45, s45, 1")
e(f"s_waitcnt vmcnt({FDEP})")
e("s_cbranch_scc1 L_fgo")
for i in range(2): e(f"v_cmp_ne_u32 s[{MK+2*i}:{MK+2*i+1}], s44, v{R+4*i+3}")
e(f"s_or_b64 s[56:57], s[{MK}:{MK+1}], s[{MK+2}:{MK+3}]")
e("s_cbranch_scc1 L_fpoll")
lab("L_fgo")
e("s_waitcnt vmcnt(0)")
e(f"v_add_f32 v{R}, v{R}, v{R+4}");  e(f"v_add_f32 v{R+1}, v{R+1}, v{R+5}")
nop(2)
e(f"v_permlane32_swap_b32 v{R}, v{R+1}")
e(f"v_add_f32 v{R}, v{R}, v{R+1}")
e(f"v_mov_b32 v{R+1}, v{R}"); nop(2)
e(f"v_permlane16_swap_b32 v{R}, v{R+1}")
e(f"v_add_f32 v{R}, v{R}, v{R+1}"); nop(2)
e(f"v_add_f32_dpp v{R}, v{R}, v{R} row_ror:8 {DPP}")
e(f"v_add_f32 v8, v8, v{R}")
e("v_cvt_pk_bf16_f32 v8, v8, v8")
e("s_mov_b32 exec_lo, 0xff")
e("s_mov_b32 exec_hi, 0xff")
e(f"buffer_store_short v8, v15, s[32:35], s59 offen {OUTPOL}")
stamp(7, 2)
if STAMPS == 2:
    e("v_mov_b32 v20, v5")
    e(f"s_sub_u32 s66, {SPIN*4}, s45"); e("s_mul_i32 s66, s66, 100"); e("s_add_u32 s66, s66, s64"); e("s_mov_b32 s67, s65")
    wstamp_flush([(20, 7), (28, 1)], "r")
    e("v_mov_b32 v5, 0")
if PADTO:
    e("s_memrealtime s[66:67]"); e("s_waitcnt lgkmcnt(0)")
    e("s_sub_u32 s68, s66, s64"); e(f"s_mul_i32 s68, s68, {REPORT}"); e(f"s_add_u32 s68, s68, {PADTO}")
    lab("L_pad")
    e("s_memrealtime s[66:67]"); e("s_waitcnt lgkmcnt(0)")
    e("s_sub_u32 s69, s66, s64"); e("s_cmp_lt_u32 s69, s68"); e("s_cbranch_scc1 L_pad")
e(f"s_cmp_lg_u32 s59, {3*896}")
e("s_cbranch_scc1 L_wend")
e("s_mov_b64 exec, 1")
e("buffer_store_dword v7, v5, s[36:39], 0 offen")
lab("L_wend")
if STAMPS == 1:
    e("s_mov_b64 s[64:65], s[78:79]")
stamp_flush(31, 1, 12, "r")
lab("L_end")
e("s_endpgm")

ref = open('parallel_sum__sliding_block_cached__dense_activation_mish__decode.s.ref').read().split('\n')
hdr = [l for l in ref if l.startswith(';') and '@launch' not in l]
print("\n".join(hdr))
print(f"; @launch grid=(256,1,1) block=(1024,1,1) lds={LDS_BYTES}")
print(f""".amdgcn_target "amdgcn-amd-amdhsa--gfx950"
.text
.globl {NAME}
.p2align {ALIGN}
.p2align 8
.type {NAME},@function
{NAME}:""")
print("\n".join(L))
print(f""".section .rodata,"a"
.p2align 6
.amdhsa_kernel {NAME}
  .amdhsa_next_free_vgpr 128
  .amdhsa_next_free_sgpr 100
  .amdhsa_accum_offset 128
  .amdhsa_group_segment_fixed_size 0
  .amdhsa_kernarg_size 96
  .amdhsa_user_sgpr_count 2
  .amdhsa_user_sgpr_kernarg_segment_ptr 1
  .amdhsa_system_sgpr_workgroup_id_x 1
.end_amdhsa_kernel""")
```
